```python
import torch

def _softmax(x, axis=-1):
    return torch.softmax(x, dim=axis)
def _gelu(x):
    return torch.nn.functional.gelu(x, approximate="tanh")
def _silu(x):
    return torch.nn.functional.silu(x)
def _sigmoid(x):
    return torch.sigmoid(x)
def _layernorm(x, axis=-1, eps=1e-5):
    m = x.mean(dim=axis, keepdim=True)
    v = x.var(dim=axis, keepdim=True, unbiased=False)
    return (x - m) / torch.sqrt(v + eps)
def _scatter_add(tgt, idx, src, axis=0):
    return tgt.clone().index_add_(axis, idx, src)
def _segment_sum(src, seg, n):
    out = torch.zeros((n,) + src.shape[1:], dtype=src.dtype)
    return out.index_add_(0, seg, src)
def _pad(x, pw):
    flat = tuple(v for pair in reversed(pw) for v in pair)
    return torch.nn.functional.pad(x, flat)

kernel_name = 'sequential_preLN__compressed_kv_cla__dense_activation_silu__prompt'

def setup_inputs():

    _w = (lambda a: (lambda t: t.to(torch.bfloat16) if t.is_floating_point() else t)(torch.as_tensor(a)))
    def _A_setup():
        B, H, Sq, Sk, D, M = 1, 16, 2048, 2048, 256, 448
        Dc = 4 * D
        return {
            "x": _w((lambda *s: torch.randn(*s, dtype=torch.bfloat16) * 0.05)(B, Sq, M)),
            "c_kv": _w((lambda *s: torch.randn(*s, dtype=torch.bfloat16) * 0.4)(B, Sk, Dc)),
            "w_q": _w((lambda *s: torch.randn(*s, dtype=torch.bfloat16) * 1.6)(M, H, D) * (M ** -0.5)),
            "w_uk": _w((lambda *s: torch.randn(*s, dtype=torch.bfloat16) * 1.6)(Dc, H, D) * (Dc ** -0.5)),
            "w_uv": _w((lambda *s: torch.randn(*s, dtype=torch.bfloat16) * 0.4)(Dc, H, D) * (Dc ** -0.5)),
            "w_o": _w((lambda *s: torch.randn(*s, dtype=torch.bfloat16) * 0.4)(H, D, M) * ((H * D) ** -0.5)),
        }
    _A_in = _A_setup()

    def _B_setup():
        B, S, D, F = 1, 2048, 448, 1792
        return {
            "x": _w((lambda *s: torch.randn(*s, dtype=torch.bfloat16) * 0.05)(B, S, D)),
            "w1": _w((lambda *s: torch.randn(*s, dtype=torch.bfloat16) * 0.8)(D, F) * (D ** -0.5)),
            "w2": _w((lambda *s: torch.randn(*s, dtype=torch.bfloat16) * 0.1)(F, D) * (F ** -0.5)),
        }
    _B_in = _B_setup()

    return {
        "A_x": _A_in["x"],
        "A_c_kv": _A_in["c_kv"],
        "A_w_q": _A_in["w_q"],
        "A_w_uk": _A_in["w_uk"],
        "A_w_uv": _A_in["w_uv"],
        "A_w_o": _A_in["w_o"],
        "B_x": _B_in["x"],
        "B_w1": _B_in["w1"],
        "B_w2": _B_in["w2"],
    }

def reference(A_x, A_c_kv, A_w_q, A_w_uk, A_w_uv, A_w_o, B_x, B_w1, B_w2):
    def _A_ref(x, c_kv, w_q, w_uk, w_uv, w_o):
        B, Sq, M = x.shape[0], x.shape[1], x.shape[2]
        Sk = c_kv.shape[1]
        H, D = w_q.shape[1], w_q.shape[2]
        q = torch.einsum("bqm,mhd->bhqd", x, w_q)
        k = torch.einsum("bkc,chd->bhkd", c_kv, w_uk)
        v = torch.einsum("bkc,chd->bhkd", c_kv, w_uv)
        scores = torch.einsum("bhqd,bhkd->bhqk", q, k) * (D ** -0.5)
        off = Sk - Sq
        qi = torch.arange(Sq)[:, None]
        kj = torch.arange(Sk)[None, :]
        cmask = kj <= (qi + off)
        scores = torch.where(cmask[None, None], scores, -1e9)
        p = _softmax(scores, axis=-1)
        ctx = torch.einsum("bhqk,bhkd->bhqd", p, v)
        return torch.einsum("bhqd,hdm->bqm", ctx, w_o)

    def _B_ref(x, w1, w2):
        h = torch.einsum("bsd,df->bsf", x, w1)
        h = _silu(h)
        out = torch.einsum("bsf,fd->bsd", h, w2)
        return out

    x = A_x
    h = x + _A_ref(_layernorm(x, axis=-1), A_c_kv, A_w_q, A_w_uk, A_w_uv, A_w_o)
    h2 = h + _B_ref(_layernorm(h, axis=-1), B_w1, B_w2)
    return h2
```

```python
def v(n, c=1):
    return f"v{n}" if c == 1 else f"v[{n}:{n+c-1}]"
def a(n, c=1):
    return f"a{n}" if c == 1 else f"a[{n}:{n+c-1}]"
def s(n, c=1):
    return f"s{n}" if c == 1 else f"s[{n}:{n+c-1}]"

class Asm:
    def __init__(self):
        self.lines = []
        self._lbl = 0
    def __call__(self, text):
        for ln in text.split("\n"):
            ln = ln.strip()
            if ln:
                self.lines.append("    " + ln if not ln.endswith(":") else ln)
    def label(self, name):
        self.lines.append(name + ":")
    def newlabel(self, base="L"):
        self._lbl += 1
        return f"{base}_{self._lbl}"
    def comment(self, t):
        self.lines.append("    ; " + t)
    def raw(self, t):
        self.lines.append(t)
    def text(self):
        return "\n".join(self.lines) + "\n"

def kernel_begin(A, name):
    A.raw(".text")
    A.raw(f".globl {name}")
    A.raw(".p2align 8")
    A.raw(f".type {name},@function")
    A.raw(f"{name}:")

def kernel_desc(name, vgpr, sgpr=102, accum=None, wgy=False):
    if accum is None:
        accum = (vgpr + 3) // 4 * 4
    t = ['.section .rodata,"a"', ".p2align 6", f".amdhsa_kernel {name}",
         f"  .amdhsa_next_free_vgpr {vgpr}",
         f"  .amdhsa_next_free_sgpr {sgpr}",
         f"  .amdhsa_accum_offset {accum}",
         "  .amdhsa_group_segment_fixed_size 0",
         "  .amdhsa_kernarg_size 96",
         "  .amdhsa_user_sgpr_count 2",
         "  .amdhsa_user_sgpr_kernarg_segment_ptr 1",
         "  .amdhsa_system_sgpr_workgroup_id_x 1"]
    if wgy:
        t.append("  .amdhsa_system_sgpr_workgroup_id_y 1")
    t.append(".end_amdhsa_kernel")
    return "\n".join(t) + "\n"

def srd(A, d, base, nbytes):
    A(f"s_mov_b32 s{d}, s{base}")
    A(f"s_and_b32 s{d+1}, s{base+1}, 0xffff")
    A(f"s_mov_b32 s{d+2}, {nbytes:#x}")
    A(f"s_mov_b32 s{d+3}, 0x00020000")
```

```python
from asmlib import *
from layout import *

def interleave(A, mfmas, fillers, per_gap=None, start=0):
    fi = 0
    for i, m in enumerate(mfmas):
        A(m)
        n = per_gap[i] if isinstance(per_gap, (list, tuple)) else per_gap
        if i < start:
            n = 0
        for _ in range(n):
            if fi < len(fillers):
                A(fillers[fi]); fi += 1
    while fi < len(fillers):
        A(fillers[fi]); fi += 1

def ws_srd(A, d, wsreg, off, nbytes):
    A(f"s_add_u32 s{d}, s{wsreg}, {off:#x}")
    A(f"s_addc_u32 s{d+1}, s{wsreg+1}, 0")
    A(f"s_and_b32 s{d+1}, s{d+1}, 0xffff")
    A(f"s_mov_b32 s{d+2}, {nbytes:#x}")
    A(f"s_mov_b32 s{d+3}, 0x00020000")

def bf16_round(A, dst, src, tmp=None):
    A(f"v_cvt_pk_bf16_f32 {dst}, {src}, {src}")
    A(f"v_lshlrev_b32 {dst}, 16, {dst}")

def relayout_pass(A, srd_src, srd_dst, row_stride, natural, s_srcoff, s_dstoff, nks, vb, tid_regs):
    vs, vd = tid_regs
    rows = [0,1,2,3,4,5,6,7] if natural else [0,1,2,3,8,9,10,11]
    for i, r in enumerate(rows):
        off = r * row_stride
        A(f"s_add_u32 s99, {s_srcoff}, {off}")
        A(f"buffer_load_dwordx4 {v(vb+4*i,4)}, {vs}, {srd_src}, s99 offen")
    def fin():
        for c in range(8):
            for p in range(4):
                lo = vb + 4*(2*p) + c//2
                hi = vb + 4*(2*p+1) + c//2
                sel = "s97" if c % 2 == 0 else "s98"
                A(f"v_perm_b32 v{vb+32+4*c+p}, v{hi}, v{lo}, {sel}")
        for c in range(8):
            A(f"buffer_store_dwordx4 {v(vb+32+4*c,4)}, {vd}, {srd_dst}, {s_dstoff} offen offset:{16*c}")
    return fin

def relayout_lane_offsets(A, vlane, vs, vd, row_stride, natural, nks, t0, t1):
    A(f"v_and_b32 {t0}, 7, {vlane}")
    A(f"v_lshlrev_b32 {vs}, 4, {t0}")
    A(f"v_lshrrev_b32 {t1}, 2, {t0}")
    A(f"v_mul_u32_u24 {vd}, {nks*1024}, {t1}")
    A(f"v_and_b32 {t0}, 3, {t0}")
    A(f"v_lshlrev_b32 {t0}, 7, {t0}")
    A(f"v_add_u32 {vd}, {vd}, {t0}")
    A(f"v_bfe_u32 {t0}, {vlane}, 3, 1")
    A(f"v_lshlrev_b32 {t1}, 9, {t0}")
    A(f"v_add_u32 {vd}, {vd}, {t1}")
    A(f"v_mul_u32_u24 {t1}, {(8 if natural else 4)*row_stride}, {t0}")
    A(f"v_add_u32 {vs}, {vs}, {t1}")
    A(f"v_lshrrev_b32 {t0}, 4, {vlane}")
    A(f"v_lshlrev_b32 {t1}, 10, {t0}")
    A(f"v_add_u32 {vd}, {vd}, {t1}")
    A(f"v_mul_u32_u24 {t1}, {16*row_stride}, {t0}")
    A(f"v_add_u32 {vs}, {vs}, {t1}")

def perm_sels(A):
    A("s_mov_b32 s97, 0x05040100")
    A("s_mov_b32 s98, 0x07060302")

def half_reduce_add(A, x, t):
    for off in (0x041F, 0x081F, 0x101F, 0x201F, 0x401F):
        A(f"ds_swizzle_b32 {t}, {x} offset:{off:#x}")
        A("s_waitcnt lgkmcnt(0)")
        A(f"v_add_f32 {x}, {x}, {t}")

STAMP_OFF = 80 << 20
def stamp(A, idx, on):
    if not on: return
    A(f"s_memtime s[{70+2*idx}:{71+2*idx}]")
def stamp_real(A, idx, on):
    if not on: return
    A(f"s_memrealtime s[{70+2*idx}:{71+2*idx}]")
def stamp_flush(A, n, on, wsreg=46, wave="s3"):
    if not on: return
    A("s_waitcnt vmcnt(0) lgkmcnt(0)")
    ws_srd(A, 96, wsreg, STAMP_OFF, 1 << 20)
    A("s_lshl_b32 s100, s2, 2")
    A(f"s_add_u32 s100, s100, {wave}")
    A("s_lshl_b32 s100, s100, 6")
    A("v_mov_b32 v1, s100")
    for i in range(n):
        A(f"v_mov_b32 v2, s{70+2*i}")
        A(f"buffer_store_dword v2, v1, s[96:99], 0 offen offset:{4*i}")
        A("s_nop 1")

def gen_k1(NS=4, stamps=False):
    A = Asm()
    name = "k1_kernel"
    kernel_begin(A, name)
    A("s_cmp_ge_u32 s2, 256")
    A("s_cbranch_scc1 K1_END")
    stamp(A, 0, stamps)
    stamp_real(A, 5, stamps)
    A("s_load_dwordx4 s[36:39], s[0:1], 0")
    A("s_load_dwordx4 s[40:43], s[0:1], 16")
    A("s_load_dwordx2 s[44:45], s[0:1], 32")
    A("s_load_dwordx2 s[46:47], s[0:1], 88")
    A("v_lshrrev_b32 v1, 6, v0")
    A("v_and_b32 v2, 63, v0")
    A("v_readfirstlane_b32 s3, v1")
    A("s_and_b32 s4, s2, 7")
    A("s_lshr_b32 s5, s2, 3")
    A("s_and_b32 s6, s5, 7")
    A("s_lshr_b32 s5, s5, 3")
    A("s_lshr_b32 s7, s5, 1")
    A("s_and_b32 s5, s5, 1")
    A("s_lshl_b32 s4, s4, 1")
    A("s_add_u32 s4, s4, s5")
    A("s_waitcnt lgkmcnt(0)")
    stamp(A, 7, stamps)
    srd(A, 8, 38, 2048*1024*2)
    A("s_cmp_eq_u32 s7, 0")
    A("s_cselect_b32 s12, s42, s44")
    A("s_cselect_b32 s13, s43, s45")
    A("s_and_b32 s13, s13, 0xffff")
    A(f"s_mov_b32 s14, {1024*4096*2:#x}")
    A("s_mov_b32 s15, 0x00020000")
    ws_srd(A, 16, 46, KV_OFF, KV_SZ)
    srd(A, 20, 36, 2048*448*2)
    ws_srd(A, 24, 46, XN_OFF, XN_SZ)
    srd(A, 28, 40, 448*4096*2)
    ws_srd(A, 32, 46, WQ_OFF, WQ_SZ)
    A("v_and_b32 v3, 31, v2")
    A("v_lshrrev_b32 v4, 5, v2")
    A("s_lshl_b32 s48, s2, 3")
    A("s_lshl_b32 s49, s3, 1")
    A("s_add_u32 s48, s48, s49")
    A("v_add_u32 v4, s48, v4")
    A("v_mul_u32_u24 v5, 896, v4")
    A("v_lshlrev_b32 v6, 5, v3")
    A("v_add_u32 v5, v5, v6")
    for i in range(8):
        A(f"v_mov_b32 v{128+i}, 0")
    A("v_cmp_gt_u32 vcc, 28, v3")
    A("s_and_saveexec_b64 s[50:51], vcc")
    A("buffer_load_dwordx4 v[128:131], v5, s[20:23], 0 offen")
    A("buffer_load_dwordx4 v[132:135], v5, s[20:23], 0 offen offset:16")
    A("s_mov_b64 exec, s[50:51]")
    A("v_lshrrev_b32 v6, 5, v4")
    A("v_mul_u32_u24 v6, 28672, v6")
    A("v_lshlrev_b32 v7, 10, v3")
    A("v_add_u32 v6, v6, v7")
    A("v_and_b32 v7, 31, v4")
    A("v_lshlrev_b32 v7, 4, v7")
    A("v_add_u32 v6, v6, v7")
    perm_sels(A)
    relayout_lane_offsets(A, "v2", "v8", "v9", 8192, True, 28, "v10", "v11")
    A("s_lshl_b32 s52, s2, 2")
    A("s_add_u32 s52, s52, s3")
    A("s_cmp_lt_u32 s52, 448")
    A("s_cselect_b32 s53, 1, 0")
    A("s_cbranch_scc0 K1_NOPASS1")
    A("s_mul_i32 s54, s52, 9363")
    A("s_lshr_b32 s54, s54, 16")
    A("s_mul_i32 s55, s54, 7")
    A("s_sub_u32 s55, s52, s55")
    A("s_mul_i32 s56, s55, %d" % (64*8192))
    A("s_lshl_b32 s57, s54, 7")
    A("s_add_u32 s56, s56, s57")
    A("s_mul_i32 s57, s54, %d" % (2*28*1024))
    A("s_lshl_b32 s58, s55, 12")
    A("s_add_u32 s57, s57, s58")
    fin = relayout_pass(A, "s[28:31]", "s[32:35]", 8192, True, "s56", "s57", 28, 160, ("v8", "v9"))
    A.label("K1_NOPASS1")
    stamp(A, 11, stamps)
    A("v_lshrrev_b32 v10, 2, v2")
    A("v_lshlrev_b32 v10, 11, v10")
    A("v_and_b32 v11, 3, v2")
    A("v_lshrrev_b32 v12, 4, v2")
    A("v_xor_b32 v11, v11, v12")
    A("v_lshlrev_b32 v11, 4, v11")
    A("v_add_u32 v10, v10, v11")
    A("s_lshl_b32 s59, s6, 19")
    A("s_lshl_b32 s60, s3, 17")
    A("s_add_u32 s59, s59, s60")
    A("v_add_u32 v16, s59, v10")
    for i in range(1, 4):
        A(f"v_add_u32 v{16+i}, {i*(32768-1024)}, v16")
    A("v_lshrrev_b32 v10, 5, v2")
    A("v_and_b32 v11, 31, v2")
    A("s_lshl_b32 s59, s4, 9")
    A("s_lshl_b32 s60, s3, 16")
    A("s_add_u32 s59, s59, s60")
    for i in range(4):
        A(f"v_add_u32 v12, {2*(i&1)}, v10")
        A("v_lshlrev_b32 v12, 2, v12")
        A("v_xor_b32 v12, v11, v12")
        A("v_lshlrev_b32 v12, 4, v12")
        A("v_lshlrev_b32 v13, 13, v10")
        A("v_add_u32 v12, v12, v13")
        A("v_add_u32 v12, s59, v12")
        A(f"v_add_u32 v{20+i}, {i*(16384-1024)}, v12")
    A("s_lshl_b32 s61, s3, 12")
    A("s_mov_b32 s62, 0")
    A("s_mov_b32 s63, 0")
    def dma(slot):
        out = []
        out.append(f"s_add_u32 m0, s61, {slot*32768}")
        for i in range(4):
            out.append(f"buffer_load_dwordx4 v{16+i}, s[8:11], s62 offen offset:{1024*i} lds")
        out.append(f"s_add_u32 m0, s61, {slot*32768+16384}")
        for i in range(4):
            out.append(f"buffer_load_dwordx4 v{20+i}, s[12:15], s63 offen offset:{1024*i} lds")
        out.append("s_add_u32 s62, s62, 64")
        out.append("s_add_u32 s63, s63, 262144")
        return out
    def emit_dma(slot):
        for x in dma(slot):
            A(x)
            if "m0" in x:
                A("s_nop 0")
    stamp(A, 9, stamps)
    for st in range(NS):
        emit_dma(st)
        if st == 0: stamp(A, 10, stamps)
    stamp(A, 8, stamps)
    A("s_and_b32 s64, s3, 1")
    A("s_lshr_b32 s65, s3, 1")
    A("v_and_b32 v10, 31, v2")
    A("v_lshlrev_b32 v10, 6, v10")
    A("v_lshrrev_b32 v11, 5, v2")
    A("v_bfe_u32 v12, v2, 2, 2")
    A("v_xor_b32 v11, v11, v12")
    A("v_lshlrev_b32 v11, 4, v11")
    A("v_add_u32 v10, v10, v11")
    A("s_lshl_b32 s66, s64, 13")
    A("v_add_u32 v24, s66, v10")
    A("v_xor_b32 v25, 32, v24")
    A("v_add_u32 v26, 0x10000, v24")
    A("v_add_u32 v27, 0x10000, v25")
    A("v_bfe_u32 v10, v2, 2, 2")
    A("v_lshrrev_b32 v11, 5, v2")
    A("v_lshlrev_b32 v11, 3, v11")
    A("v_add_u32 v11, v11, v10")
    A("v_lshlrev_b32 v11, 9, v11")
    A("v_bfe_u32 v12, v2, 4, 1")
    A("v_lshlrev_b32 v12, 5, v12")
    A("v_add_u32 v11, v11, v12")
    A("v_and_b32 v12, 3, v2")
    A("v_lshlrev_b32 v12, 3, v12")
    A("v_add_u32 v11, v11, v12")
    A("s_lshl_b32 s66, s65, 8")
    A("s_add_u32 s66, s66, 16384")
    A("v_add_u32 v11, s66, v11")
    for j in range(4):
        A(f"v_xor_b32 v12, {j}, v10")
        A("v_lshlrev_b32 v12, 6, v12")
        A(f"v_add_u32 v{28+j}, v11, v12")
        A(f"v_add_u32 v{32+j}, 0x10000, v{28+j}")
    nd = NS * 8
    A("s_cmp_eq_u32 s53, 1")
    A("s_cbranch_scc1 K1_LNW1")
    A(f"s_waitcnt vmcnt({nd})")
    A("s_branch K1_LNW2")
    A.label("K1_LNW1")
    A(f"s_waitcnt vmcnt({nd+8})")
    A.label("K1_LNW2")
    for i in range(8):
        A(f"v_lshlrev_b32 v{136+2*i}, 16, v{128+i}")
        A(f"v_and_b32 v{137+2*i}, 0xffff0000, v{128+i}")
    A("v_add_f32 v152, v136, v137")
    for i in range(2, 16):
        A(f"v_add_f32 v152, v152, v{136+i}")
    half_reduce_add(A, "v152", "v153")
    A("v_mul_f32 v152, 0x3b124925, v152")
    A("v_mov_b32 v154, 0")
    A("v_cmp_gt_u32 vcc, 28, v3")
    A("s_and_saveexec_b64 s[50:51], vcc")
    for i in range(16):
        A(f"v_sub_f32 v153, v{136+i}, v152")
        A("v_fmac_f32 v154, v153, v153")
    A("s_mov_b64 exec, s[50:51]")
    half_reduce_add(A, "v154", "v153")
    A("v_mul_f32 v154, 0x3b124925, v154")
    bf16_round(A, "v152", "v152")
    bf16_round(A, "v154", "v154")
    A("v_add_f32 v154, 0x3727c5ac, v154")
    bf16_round(A, "v154", "v154")
    A("v_sqrt_f32 v154, v154")
    A("s_nop 0")
    bf16_round(A, "v154", "v154")
    A("v_rcp_f32 v154, v154")
    for i in range(16):
        A(f"v_sub_f32 v{136+i}, v{136+i}, v152")
    for i in range(8):
        A(f"v_cvt_pk_bf16_f32 v{128+i}, v{136+2*i}, v{137+2*i}")
    for i in range(8):
        A(f"v_lshlrev_b32 v{136+2*i}, 16, v{128+i}")
        A(f"v_and_b32 v{137+2*i}, 0xffff0000, v{128+i}")
    for i in range(16):
        A(f"v_mul_f32 v{136+i}, v{136+i}, v154")
    for i in range(8):
        A(f"v_cvt_pk_bf16_f32 v{128+i}, v{136+2*i}, v{137+2*i}")
    A("v_cmp_gt_u32 vcc, 28, v3")
    A("s_and_saveexec_b64 s[50:51], vcc")
    A("buffer_store_dwordx4 v[128:131], v6, s[24:27], 0 offen")
    A("buffer_store_dwordx4 v[132:135], v6, s[24:27], 0 offen offset:512")
    A("s_mov_b64 exec, s[50:51]")
    A("s_cmp_eq_u32 s53, 1")
    A("s_cbranch_scc0 K1_NOPASS2")
    A(f"s_waitcnt vmcnt({nd+2})")
    fin()
    A.label("K1_NOPASS2")
    XA, XW, YA, YW = 64, 80, 96, 112
    def reads(slot, ks, fa, fw):
        out = []
        hi = slot >= 2
        base = (slot & 1) * 32768
        for i in range(4):
            out.append(f"ds_read_b128 {v(fa+4*i,4)}, v{24+ks+(2 if hi else 0)} offset:{base+2048*i}")
        for j in range(4):
            for t in range(2):
                out.append(f"ds_read_b64_tr_b16 {v(fw+4*j+2*t,2)}, v{28+j+(4 if hi else 0)} offset:{base+8192*ks+2048*t}")
        order = [0, 4, 5, 1, 6, 7, 2, 8, 9, 3, 10, 11]
        return [out[i] for i in order]
    def mfmas(typ, fa, fw, first=False):
        out = []
        for i in range(4):
            for j in range(4):
                acc = a((i*4+j)*16, 16)
                c = "0" if first else acc
                if typ == 0:
                    out.append(f"v_mfma_f32_32x32x16_bf16 {acc}, {v(fw+4*j,4)}, {v(fa+4*i,4)}, {c}")
                else:
                    out.append(f"v_mfma_f32_32x32x16_bf16 {acc}, {v(fa+4*i,4)}, {v(fw+4*j,4)}, {c}")
        return out
    def dma_fill(slot):
        out = []
        for x in dma(slot):
            out.append(x)
        return out
    def mix(reads_, dmas):
        return reads_ + dmas
    for typ in (0, 1):
        if typ == 0:
            A("s_cmp_eq_u32 s7, 1")
            A("s_cbranch_scc1 K1_V")
        else:
            A.label("K1_V")
        T = f"K1_T{typ}"
        A(f"s_waitcnt vmcnt({(NS-1)*8})")
        A("s_barrier")
        stamp(A, 1, stamps)
        for x in reads(0, 0, XA, XW):
            A(x)
        A("s_waitcnt lgkmcnt(0)")
        def stage(slot, first=False, do_dma=True, vm=16, last=False):
            interleave(A, mfmas(typ, XA, XW, first), reads(slot, 1, YA, YW), per_gap=2)
            if not last:
                A(f"s_waitcnt vmcnt({vm}) lgkmcnt(0)")
                A("s_barrier")
                fl = reads((slot+1) % NS, 0, XA, XW)
                gaps = [2]*6 + [1]*10
                if do_dma:
                    d = dma_fill(slot)
                    fl = fl + d
                interleave(A, mfmas(typ, YA, YW), fl, per_gap=gaps)
                A("s_waitcnt lgkmcnt(0)")
            else:
                A("s_waitcnt lgkmcnt(0)")
                interleave(A, mfmas(typ, YA, YW), [], per_gap=0)
        stage(0, first=True)
        for sl in (1, 2, 3):
            stage(sl)
        A("s_mov_b32 s67, 1")
        A.label(T + "_LOOP")
        for sl in range(4):
            stage(sl)
        A("s_add_u32 s67, s67, 1")
        A("s_cmp_lt_u32 s67, 7")
        A(f"s_cbranch_scc1 {T}_LOOP")
        stage(0, do_dma=False, vm=16)
        stage(1, do_dma=False, vm=8)
        stage(2, do_dma=False, vm=0)
        stage(3, last=True)
        stamp(A, 2, stamps)
        A("s_lshl_b32 s68, s4, 21")
        A("s_lshl_b32 s69, s6, 18")
        A("s_add_u32 s68, s68, s69")
        A("s_lshl_b32 s69, s64, 17")
        A("s_add_u32 s68, s68, s69")
        A("s_lshl_b32 s69, s65, 13")
        A("s_add_u32 s68, s68, s69")
        if typ:
            A("s_add_u32 s68, s68, 16384")
        A("v_lshlrev_b32 v10, 4, v2")
        A("s_nop 7")
        A("s_nop 3")
        n = 0
        for i in range(4):
            for jj in range(2):
                A(f"s_add_u32 s69, s68, {i*32768 + jj*4096}")
                for j2 in range(2):
                    j = jj*2 + j2
                    for sft in range(2):
                        b = (i*4+j)*16 + sft*8
                        t = 128 + (n % 4) * 16
                        n += 1
                        for r in range(8):
                            A(f"v_accvgpr_read_b32 v{t+r}, a{b+r}")
                        for r in range(4):
                            A(f"v_cvt_pk_bf16_f32 v{t+8+r}, v{t+2*r}, v{t+2*r+1}")
                        A(f"buffer_store_dwordx4 {v(t+8,4)}, v10, s[16:19], s69 offen offset:{(j2*2+sft)*1024}")
        stamp(A, 3, stamps)
        if stamps:
            A("s_waitcnt vmcnt(0)")
        stamp(A, 4, stamps)
        stamp_real(A, 6, stamps)
        stamp_flush(A, 12, stamps)
        A("s_endpgm")
    A.label("K1_END")
    A("s_endpgm")
    return name, A.text(), kernel_desc(name, 512, 102, 256), (256, 256, NS*32768)
```

```python
from asmlib import *
from layout import *
from k1 import ws_srd, stamp, stamp_real, stamp_flush, perm_sels
import math, struct

def f32bits(x): return struct.unpack("<I", struct.pack("<f", x))[0]
CSC = math.log2(math.e) / 16.0
TTHR = 8.0
BIG = 2.0 ** 100

class Stream:
    def __init__(self, A): self.A = A
    def run(self, items, fillers, budget=3, first_gap=0, min_dist=0):
        A = self.A; fi = 0; n = 0
        for g, (pre, m, post) in enumerate(items):
            for x in pre: A(x); n += 1
            A(m); n += 1
            for x in post: A(x); n += 1
            if g >= first_gap and n >= min_dist:
                k = 0
                while k < budget and fi < len(fillers):
                    x = fillers[fi]; fi += 1
                    if callable(x): x()
                    else: A(x)
                    n += 1
                    k += 2 if (not callable(x) and x.startswith("v_exp")) else 1
        while fi < len(fillers):
            x = fillers[fi]; fi += 1
            if callable(x): x()
            else: A(x)

def gen_k2(stamps=False, prefetch=False, relayout=False):
    A = Asm()
    name = "k2_kernel"
    kernel_begin(A, name)
    ST = Stream(A)
    VL16 = "v2"
    MC = ["v4", "v5"]; THR = ["v6", "v7"]; LS = ["v8", "v9"]; FAC = ["v10", "v11"]; TM = ["v12", "v13"]; MR = ["v14", "v15"]
    T0, T1, T2, T3 = "v16", "v17", "v18", "v19"
    SEL = [20, 24]
    VQROW = "v28"
    VSTAT = "v29"
    VSTR = "v30"
    SB = [32, 64]
    WIN = 128
    QA = 0
    def Oreg(g, dbl, qb):
        b = (g * 2 + dbl) * 2 + qb
        if b < 6: return ("a", 160 + b * 16)
        return ("v", 96 + (b - 6) * 16)
    def OR(g, dbl, qb, n=16, off=0):
        f, b = Oreg(g, dbl, qb)
        return (a if f == "a" else v)(b + off, n)
    allO = [(g, d, q) for g in range(4) for d in range(2) for q in range(2)]

    A("s_cmp_ge_u32 s2, 256")
    A("s_cbranch_scc1 K2_END")
    stamp(A, 0, stamps); stamp_real(A, 5, stamps)
    A("s_load_dwordx2 s[46:47], s[0:1], 88")
    A("s_load_dwordx2 s[32:33], s[0:1], 40")
    A("s_load_dwordx4 s[36:39], s[0:1], 56")
    A("v_lshrrev_b32 v1, 6, v0")
    A("v_and_b32 v3, 63, v0")
    A("v_readfirstlane_b32 s3, v1")
    A("v_lshlrev_b32 v2, 4, v3")
    A("s_and_b32 s4, s2, 7")
    A("s_lshr_b32 s5, s2, 3")
    A("s_lshr_b32 s6, s5, 4")
    A("s_lshl_b32 s4, s4, 1")
    A("s_add_u32 s4, s4, s6")
    A("s_and_b32 s5, s5, 15")
    A("s_waitcnt lgkmcnt(0)")
    ws_srd(A, 8, 46, KV_OFF, KV_SZ)
    ws_srd(A, 12, 46, XN_OFF, XN_SZ)
    ws_srd(A, 16, 46, WQ_OFF, WQ_SZ)
    ws_srd(A, 20, 46, CTX_OFF, CTX_SZ)
    A("s_lshl_b32 s40, s5, 1")
    A("s_add_u32 s41, s40, s3")
    A("s_sub_u32 s42, 60, s40")
    A("s_add_u32 s42, s42, s3")
    A("s_cmp_lt_u32 s3, 2")
    A("s_cselect_b32 s41, s41, s42")
    A("s_mul_i32 s41, s41, 28672")
    A("s_mul_i32 s42, s3, 28672")
    A("s_lshl_b32 s43, s4, 3")
    A("s_lshl_b32 s44, s3, 1")
    A("s_add_u32 s43, s43, s44")
    A("s_mul_i32 s43, s43, 28672")
    A("s_add_u32 s44, s43, 28672")
    def qloads(ks):
        sl = ks % 8
        return [f"s_add_u32 m0, s42, {ks*1024}",
                f"s_add_u32 s45, s41, {ks*1024}",
                f"buffer_load_dwordx4 {VL16}, s[12:15], s45 offen lds",
                f"s_add_u32 s45, s43, {ks*1024}",
                f"buffer_load_dwordx4 {a(sl*8,4)}, {VL16}, s[16:19], s45 offen",
                f"s_add_u32 s45, s44, {ks*1024}",
                f"buffer_load_dwordx4 {a(sl*8+4,4)}, {VL16}, s[16:19], s45 offen"]
    for ks in range(8):
        for x in qloads(ks): A(x)
    perm_sels(A)
    A("s_lshl_b32 s52, s2, 2")
    A("s_add_u32 s52, s52, s3")
    if not relayout: A("s_mov_b32 s52, 4000")
    A("s_mov_b32 s24, s32"); A("s_mov_b32 s25, s33"); A(f"s_mov_b32 s26, {4096*448*2}")
    A("s_mov_b32 s53, 896")
    A(f"s_mov_b32 s54, {256*1024}")
    A(f"s_mov_b32 s55, {WO_OFF}")
    A(f"s_mov_b32 s30, {WO_SZ}")
    A("s_mov_b32 s56, 7")
    A("s_mov_b32 s57, 9363")
    A("s_cmp_lt_u32 s52, 448")
    A("s_cbranch_scc1 K2_RL0")
    A("s_sub_u32 s52, s52, 448")
    A("s_mov_b32 s24, s36"); A("s_mov_b32 s25, s37"); A(f"s_mov_b32 s26, {448*1792*2}")
    A("s_mov_b32 s53, 3584")
    A(f"s_mov_b32 s54, {28*1024}")
    A(f"s_mov_b32 s55, {W1_OFF}")
    A(f"s_mov_b32 s30, {W1_SZ}")
    A("s_mov_b32 s56, 28")
    A("s_mov_b32 s57, 2341")
    A("s_cmp_lt_u32 s52, 196")
    A("s_cbranch_scc1 K2_RL0")
    A("s_sub_u32 s52, s52, 196")
    A("s_mov_b32 s24, s38"); A("s_mov_b32 s25, s39")
    A("s_mov_b32 s53, 896")
    A(f"s_mov_b32 s54, {112*1024}")
    A(f"s_mov_b32 s55, {W2_OFF}")
    A(f"s_mov_b32 s30, {W2_SZ}")
    A("s_mov_b32 s56, 7")
    A("s_mov_b32 s57, 9363")
    A("s_cmp_lt_u32 s52, 196")
    A("s_cbranch_scc1 K2_RL0")
    A("s_mov_b32 s26, 0")
    A("s_mov_b32 s30, 0")
    A.label("K2_RL0")
    A("s_and_b32 s25, s25, 0xffff")
    A("s_mov_b32 s27, 0x00020000")
    A("s_add_u32 s28, s46, s55")
    A("s_addc_u32 s29, s47, 0")
    A("s_and_b32 s29, s29, 0xffff")
    A("s_mov_b32 s31, 0x00020000")
    A("s_mul_i32 s58, s52, s57")
    A("s_lshr_b32 s58, s58, 16")
    A("s_mul_i32 s59, s58, s56")
    A("s_sub_u32 s59, s52, s59")
    A("s_mul_i32 s60, s58, s53")
    A("s_lshl_b32 s60, s60, 6")
    A("s_lshl_b32 s61, s59, 7")
    A("s_add_u32 s60, s60, s61")
    A("s_mul_i32 s61, s59, s54")
    A("s_lshl_b32 s61, s61, 1")
    A("s_lshl_b32 s62, s58, 12")
    A("s_add_u32 s61, s61, s62")
    A("v_lshrrev_b32 v16, 4, v3")
    A("v_lshlrev_b32 v17, 2, v16")
    A("v_bfe_u32 v18, v3, 3, 1")
    A("v_add_u32 v17, v17, v18")
    A("v_lshlrev_b32 v17, 2, v17")
    A("v_mul_lo_u32 v17, v17, s53")
    A("v_and_b32 v19, 7, v3")
    A("v_lshlrev_b32 v20, 4, v19")
    A("v_add_u32 v30, v17, v20")
    A("v_lshrrev_b32 v20, 2, v19")
    A("v_mul_lo_u32 v20, v20, s54")
    A("v_lshlrev_b32 v16, 10, v16")
    A("v_add_u32 v20, v20, v16")
    A("v_and_b32 v19, 3, v19")
    A("v_lshlrev_b32 v19, 7, v19")
    A("v_add_u32 v20, v20, v19")
    A("v_lshlrev_b32 v18, 9, v18")
    A("v_add_u32 v31, v20, v18")
    for i, r in enumerate([0, 1, 2, 3, 8, 9, 10, 11]):
        A(f"s_mul_i32 s62, s53, {r}")
        A("s_add_u32 s62, s62, s60")
        A(f"buffer_load_dwordx4 {v(224+4*i,4)}, v30, s[24:27], s62 offen")
    A("s_lshl_b32 s48, s4, 21")
    A("s_lshl_b32 s62, s5, 17")
    A("s_add_u32 s62, s62, s48")
    A("s_lshl_b32 s63, s3, 15")
    A("s_add_u32 s62, s62, s63")
    A("v_lshlrev_b32 v16, 7, v3")
    for i in range(4 if prefetch else 0):
        A(f"buffer_load_dword v{20+i}, v16, s[8:11], s62 offen")
        if i < 3: A("s_add_u32 s62, s62, 8192")
    NSIDE = 12 if prefetch else 8
    rl_fin = []
    for c in range(8):
        for p in range(4):
            lo = 224 + 4*(2*p) + c//2; hi = 224 + 4*(2*p+1) + c//2
            rl_fin.append(f"v_perm_b32 v{64+4*c+p}, v{hi}, v{lo}, {'s97' if c % 2 == 0 else 's98'}")
    rl_st = [f"buffer_store_dwordx4 {v(64+4*c,4)}, v31, s[28:31], s61 offen offset:{16*c}" for c in range(8)]
    for g in range(4):
        A(f"s_add_u32 s{64+g}, s3, {g}")
        A(f"s_and_b32 s{64+g}, s{64+g}, 3")
        A(f"s_lshl_b32 s{64+g}, s{64+g}, 12")
    QACC = 96
    XF = [32, 48]
    def xreads(ks):
        b = XF[ks % 2]
        return [f"ds_read_b128 {v(b+4*q,4)}, {VL16} offset:{q*28672 + ks*1024}" if q*28672 + ks*1024 < 65536 else
                f"ds_read_b128 {v(b+4*q,4)}, v1 offset:{q*28672 + ks*1024 - 65536}" for q in range(4)]
    A("v_add_u32 v1, 0x10000, v2")
    stamp(A, 1, stamps)
    order = []
    for ks in range(8): order += [("q", ks)] * 3
    order += [("side", 0)] * NSIDE
    def wait_for(tagpred):
        last = max(i for i, t in enumerate(order) if tagpred(t))
        return len(order) - 1 - last
    A(f"s_waitcnt vmcnt({wait_for(lambda t: t[0]=='q' and t[1] <= 3)})")
    A("s_barrier")
    for x in xreads(0): A(x)
    for ks in range(28):
        sl = ks % 8
        fill = []
        pre0 = ["s_waitcnt lgkmcnt(0)"]
        nxt = ks + 1
        if nxt < 28:
            if nxt % 4 == 0:
                fill.append(f"s_waitcnt vmcnt({wait_for(lambda t: t[0]=='q' and t[1] <= nxt+3)})")
                fill.append("s_barrier")
            fill += xreads(nxt)
        items = []
        for q in range(4):
            for d in range(2):
                acc = v(QACC + (d*4+q)*16, 16)
                c = "0" if ks == 0 else acc
                items.append((pre0 if (q == 0 and d == 0) else [], f"v_mfma_f32_32x32x16_bf16 {acc}, {a(sl*8+4*d,4)}, {v(XF[ks%2]+4*q,4)}, {c}", []))
        if 8 <= ks < 12:
            fill += rl_fin[(ks-8)*8:(ks-7)*8]
        if ks == 12:
            fill += rl_st
            order += [("st", 0)] * 8
        ST.run(items, fill, budget=3)
        if ks == 7:
            pass
        if ks + 8 < 28:
            for x in qloads(ks + 8): A(x)
            order += [("q", ks + 8)] * 3
        if ks == 7:
            assert True
    stamp(A, 2, stamps)
    A("s_lshl_b32 s49, s3, 15")
    A("s_add_u32 s49, s49, s48")
    for f in range(8):
        if f % 4 == 0: A(f"s_add_u32 s45, s49, {(f//4)*4096}")
        A(f"buffer_load_dwordx4 {a(WIN+4*f,4)}, {VL16}, s[8:11], s45 offen offset:{(f%4)*1024}")
    A("s_barrier")
    A("s_lshl_b32 s45, s3, 12")
    A(f"v_add_u32 {T0}, s45, {VL16}")
    for q in range(4):
        for d in range(2):
            b = QACC + (d*4+q)*16
            for r in range(8):
                A(f"v_cvt_pk_bf16_f32 v{b+r}, v{b+2*r}, v{b+2*r+1}")
            for s_ in range(2):
                A(f"ds_write_b128 {T0}, {v(b+4*s_,4)} offset:{q*16384 + (2*d+s_)*1024}")
    A("v_and_b32 v16, 31, v3")
    A("v_lshrrev_b32 v17, 5, v3")
    A(f"v_lshlrev_b32 {VSTR}, 5, v16")
    A(f"v_add_u32 {VSTR}, 0x8000, {VSTR}")
    A("s_lshl_b32 s45, s3, 3")
    A(f"v_add_u32 {VSTAT}, s45, {VSTR}")
    A("v_lshlrev_b32 v18, 2, v17")
    A("v_sub_u32 v18, v16, v18")
    A(f"v_cvt_f32_i32 {VQROW}, v18")
    A(f"v_add_f32 {VQROW}, 0.5, {VQROW}")
    for s_ in range(2):
        for p in range(4):
            e0, e1 = 2*p, 2*p+1
            c0 = 16*s_ + 8*(e0 >> 2) + (e0 & 3); c1 = c0 + 1
            A(f"v_cmp_eq_u32 vcc, {c0}, v18")
            A(f"v_cmp_eq_u32 s[50:51], {c1}, v18")
            A("v_mov_b32 v19, 0x3f80")
            A("v_mov_b32 v16, 0x3f800000")
            A(f"v_cndmask_b32 v{SEL[s_]+p}, 0, v19, vcc")
            A(f"v_cndmask_b32 v{SEL[s_]+p}, v{SEL[s_]+p}, v16, s[50:51]")
    A(f"s_mov_b32 s68, {f32bits(CSC):#x}")
    A(f"s_mov_b32 s69, {f32bits(TTHR/CSC):#x}")
    A("s_mov_b32 s34, 0")
    A("s_sub_u32 s6, 31, s5")
    A("s_waitcnt lgkmcnt(0)")
    A("s_barrier")
    A.label("K2_PHASE")
    A("s_cmp_eq_u32 s34, 0")
    A("s_cselect_b32 s45, 0x8000, 0")
    A(f"v_add_u32 {T0}, s45, {VL16}")
    for i in range(32):
        A(f"ds_read_b128 {a(QA+4*i,4)}, {T0} offset:{i*1024}")
    A("s_lshl_b32 s7, s6, 1")
    A("s_add_u32 s7, s7, 5")
    A("s_sub_u32 s7, s7, s3")
    A("s_lshr_b32 s7, s7, 2")
    A("s_mov_b32 s35, s49")
    A("s_mov_b32 s40, s3")
    A("s_lshl_b32 s41, s6, 1")
    A("s_mov_b32 s42, 0")
    A(f"v_mov_b32 {LS[0]}, 0"); A(f"v_mov_b32 {LS[1]}, 0")
    A("s_waitcnt lgkmcnt(0)")
    A("s_barrier")
    A("s_cmp_eq_u32 s7, 0")
    A("s_cbranch_scc1 K2_EMPTY")

    def zeroO():
        out = []
        for (g, d, q) in allO:
            f, b = Oreg(g, d, q)
            for r in range(16):
                out.append(f"v_mov_b32 v{b+r}, 0" if f == "v" else f"v_accvgpr_write_b32 a{b+r}, 0")
        return out
    def next_addrs(tplus):
        pass
    def X_items(p, loads2):
        items = []
        for f in range(16):
            sl = WIN + 4 * (f % 8)
            for q in range(2):
                acc = v(SB[p] + q*16, 16)
                c = "0" if f == 0 else acc
                pre = ["s_waitcnt vmcnt(7)"] if q == 0 else []
                post = []
                if q == 1:
                    if f < 8:
                        if f % 4 == 0: post.append(f"s_add_u32 s45, s36, {(2+f//4)*4096}")
                        post.append(f"buffer_load_dwordx4 {a(sl,4)}, {VL16}, s[8:11], s45 offen offset:{(f%4)*1024}")
                    else:
                        post.append(f"buffer_load_dwordx4 {a(sl,4)}, {VL16}, s[8:11], {loads2[(f-8)//4]} offen offset:{(f%4)*1024}")
                items.append((pre, f"v_mfma_f32_32x32x16_bf16 {acc}, {a(sl,4)}, {a(QA+(q*16+f)*4,4)}, {c}", post))
        return items
    def Y_items(p, loads2):
        items = []
        for f in range(16):
            sl = WIN + 4 * (f % 8)
            g, d, s_ = f // 4, (f // 2) % 2, f % 2
            for q in range(2):
                acc = OR(g, d, q)
                pre = ["s_waitcnt vmcnt(7)"] if q == 0 else []
                post = []
                if q == 1:
                    if f < 8:
                        if f % 4 == 0: post.append(f"s_add_u32 s45, s37, s{64+2+f//4}")
                        post.append(f"buffer_load_dwordx4 {a(sl,4)}, {VL16}, s[8:11], s45 offen offset:{(f%4)*1024}")
                    else:
                        post.append(f"buffer_load_dwordx4 {a(sl,4)}, {VL16}, s[8:11], {loads2[(f-8)//4]} offen offset:{(f%4)*1024}")
                items.append((pre, f"v_mfma_f32_32x32x16_bf16 {acc}, {a(sl,4)}, {v(SB[p]+q*16+4*s_,4)}, {acc}", post))
        return items
    def expq(p, q):
        b = SB[p] + q*16
        out = []
        def post(k):
            return [f"v_add_f32 {LS[q]}, {LS[q]}, v{b+2*k}", f"v_add_f32 {LS[q]}, {LS[q]}, v{b+2*k+1}",
                    f"v_cvt_pk_bf16_f32 v{b+k}, v{b+2*k}, v{b+2*k+1}"]
        for k in range(8):
            out.append(f"v_fma_f32 v{b+2*k}, v{b+2*k}, s68, -{MC[q]}")
            out.append(f"v_fma_f32 v{b+2*k+1}, v{b+2*k+1}, s68, -{MC[q]}")
            out.append(f"v_exp_f32 v{b+2*k}, v{b+2*k}")
            out.append(f"v_exp_f32 v{b+2*k+1}, v{b+2*k+1}")
            if k > 0: out += post(k-1)
        out.append("s_nop 0")
        out += post(7)
        return out
    def maxq(p, q):
        b = SB[p] + q*16
        out = [f"v_max3_f32 {TM[q]}, v{b}, v{b+1}, v{b+2}"]
        for r in range(3, 15, 2):
            out.append(f"v_max3_f32 {TM[q]}, {TM[q]}, v{b+r}, v{b+r+1}")
        out.append(f"v_max_f32 {TM[q]}, {TM[q]}, v{b+15}")
        return out
    def mask_code(p):
        A("s_lshl_b32 s63, s6, 1")
        A("s_sub_u32 s63, s63, s40")
        A("s_lshl_b32 s63, s63, 5")
        A("v_cvt_f32_i32 v16, s63")
        A(f"v_add_f32 v16, v16, {VQROW}")
        for q in range(2):
            A(f"v_add_f32 v17, {32.0*q if q else 0}, v16" if q == 0 else "v_add_f32 v17, 0x42000000, v16")
            A(f"v_mul_f32 v17, {f32bits(BIG):#x}, v17")
            b = SB[p] + q*16
            for r in range(16):
                cr = 8*(r >> 2) + (r & 3)
                A(f"v_add_f32 v18, {f32bits(-cr*BIG):#x}, v17" if cr else "v_mov_b32 v18, v17")
                A(f"v_min_f32 v{b+r}, v{b+r}, v18")
    def xhalf(op, x, t):
        A(f"v_mov_b32 {t}, {x}")
        A("s_nop 1")
        A(f"v_permlane32_swap_b32 {x}, {t}")
        A(f"{op} {x}, {x}, {t}")
    def rescaleO():
        A("s_nop 7"); A("s_nop 7")
        for (g, d, q) in allO:
            f, b = Oreg(g, d, q)
            for r in range(16):
                if f == "v":
                    A(f"v_mul_f32 v{b+r}, v{b+r}, {FAC[q]}")
                else:
                    A(f"v_accvgpr_read_b32 v16, a{b+r}")
                    A(f"v_mul_f32 v16, v16, {FAC[q]}")
                    A(f"v_accvgpr_write_b32 a{b+r}, v16")
        A("s_nop 1")
    rare_blocks = []
    def P1(p, tag):
        def maskbr():
            A("s_cmp_ge_u32 s40, s41")
            A(f"s_cbranch_scc1 K2_MASK_{tag}")
            A.label(f"K2_MASKRET_{tag}")
        def chk():
            A(f"v_cmp_gt_f32 vcc, {TM[0]}, {THR[0]}")
            A(f"v_cmp_gt_f32 s[50:51], {TM[1]}, {THR[1]}")
            A("s_or_b64 s[50:51], vcc, s[50:51]")
            A(f"s_cbranch_scc1 K2_RARE_{tag}")
            A.label(f"K2_RARERET_{tag}")
        rare_blocks.append((p, tag))
        return [maskbr] + maxq(p, 0) + maxq(p, 1) + [chk, "s_add_u32 s40, s40, 4"] + expq(p, 0)
    def pend(tag):
        A("s_cmp_lg_u32 s42, 0")
        A(f"s_cbranch_scc1 K2_PEND_{tag}")
        A.label(f"K2_PENDRET_{tag}")

    A("s_mov_b32 s36, s35")
    A(f"s_add_u32 s43, s35, 131072")
    A(f"s_add_u32 s44, s35, {131072+4096}")
    A("s_add_u32 s45, s35, 16384")
    A("s_add_u32 s38, s45, s64")
    A("s_add_u32 s39, s45, s65")
    A("s_cmp_gt_u32 s7, 1")
    A("s_cselect_b32 s43, s43, s38")
    A("s_cselect_b32 s44, s44, s39")
    ST.run(X_items(0, ["s43", "s44"]), zeroO(), budget=8)
    A("s_nop 7"); A("s_nop 3")
    A("s_cmp_ge_u32 s40, s41")
    A("s_cbranch_scc0 K2_NOMASK0")
    mask_code(0)
    A.label("K2_NOMASK0")
    for x in maxq(0, 0) + maxq(0, 1): A(x)
    xhalf("v_max_f32", TM[0], T0)
    xhalf("v_max_f32", TM[1], T1)
    A("s_branch K2_XCHG")
    A.label("K2_EMPTY")
    for x in zeroO(): A(x)
    A(f"v_mov_b32 {TM[0]}, {f32bits(-BIG):#x}")
    A(f"v_mov_b32 {TM[1]}, {f32bits(-BIG):#x}")
    A.label("K2_XCHG")
    A("s_lshl_b32 s45, s34, 12")
    A(f"v_add_u32 {T0}, s45, {VSTAT}")
    A(f"v_add_u32 {T1}, s45, {VSTR}")
    A(f"ds_write_b32 {T0}, {TM[0]}")
    A(f"ds_write_b32 {T0}, {TM[1]} offset:1024")
    A("s_waitcnt lgkmcnt(0)")
    A("s_barrier")
    for q in range(2):
        A(f"ds_read_b128 {v(SB[1]+q*8,4)}, {T1} offset:{q*1024}")
        A(f"ds_read_b128 {v(SB[1]+q*8+4,4)}, {T1} offset:{q*1024+16}")
    A("s_waitcnt lgkmcnt(0)")
    for q in range(2):
        b = SB[1] + q*8
        A(f"v_max3_f32 {MR[q]}, v{b}, v{b+2}, v{b+4}")
        A(f"v_max_f32 {MR[q]}, {MR[q]}, v{b+6}")
        A(f"v_mul_f32 {MC[q]}, s68, {MR[q]}")
        A(f"v_add_f32 {THR[q]}, s69, {MR[q]}")
    A("s_cmp_eq_u32 s7, 0")
    A("s_cbranch_scc1 K2_MERGE")
    A("s_add_u32 s40, s40, 4")
    for x in expq(0, 0): A(x)
    A("s_cmp_eq_u32 s7, 1")
    A("s_cbranch_scc1 K2_TAIL0")
    A.label("K2_LOOP")
    for p in range(2):
        A("s_add_u32 s36, s35, 131072")
        A("s_add_u32 s37, s35, 16384")
        A("s_add_u32 s43, s37, s64")
        A("s_add_u32 s44, s37, s65")
        ST.run(X_items(p ^ 1, ["s43", "s44"]), expq(p, 1), budget=3)
        A("s_add_u32 s43, s35, 262144")
        A(f"s_add_u32 s44, s35, {262144+4096}")
        A(f"s_add_u32 s45, s35, {131072+16384}")
        A("s_add_u32 s38, s45, s64")
        A("s_add_u32 s39, s45, s65")
        A("s_cmp_gt_u32 s7, 2")
        A("s_cselect_b32 s43, s43, s38")
        A("s_cselect_b32 s44, s44, s39")
        ST.run(Y_items(p, ["s43", "s44"]), P1(p ^ 1, f"B{p}"), budget=4, first_gap=2, min_dist=6)
        pend(f"B{p}")
        A("s_add_u32 s35, s35, 131072")
        A("s_sub_u32 s7, s7, 1")
        A("s_cmp_eq_u32 s7, 1")
        if p == 0:
            A("s_cbranch_scc1 K2_TAIL1")
        else:
            A("s_cbranch_scc0 K2_LOOP")
    for p in range(2):
        A.label(f"K2_TAIL{p}")
        for x in expq(p, 1): A(x)
        A("s_add_u32 s37, s35, 16384")
        A("s_cmp_eq_u32 s34, 0")
        A(f"s_cselect_b32 s43, s49, {KV_SZ:#x}")
        A("s_add_u32 s44, s43, 4096")
        ST.run(Y_items(p, ["s43", "s44"]), [], budget=0)
        if p == 0: A("s_branch K2_MERGE")
    A.label("K2_MERGE")
    stamp(A, 3, stamps)
    xhalf("v_add_f32", LS[0], T0)
    xhalf("v_add_f32", LS[1], T1)
    A("s_lshl_b32 s45, s34, 12")
    A("s_add_u32 s45, s45, 2048")
    A(f"v_add_u32 {T0}, s45, {VSTAT}")
    A(f"v_add_u32 {T1}, s45, {VSTR}")
    for q in range(2):
        A(f"v_mov_b32 v18, {MR[q]}")
        A(f"v_mov_b32 v19, {LS[q]}")
        A(f"ds_write_b64 {T0}, v[18:19] offset:{q*1024}")
    A("s_waitcnt lgkmcnt(0)")
    A("s_barrier")
    for q in range(2):
        A(f"ds_read_b128 {v(SB[0]+q*8,4)}, {T1} offset:{q*1024}")
        A(f"ds_read_b128 {v(SB[0]+q*8+4,4)}, {T1} offset:{q*1024+16}")
    A("s_waitcnt lgkmcnt(0)")
    for q in range(2):
        b = SB[0] + q*8
        A(f"v_max3_f32 v16, v{b}, v{b+2}, v{b+4}")
        A(f"v_max_f32 v16, v16, v{b+6}")
        for w_ in range(4):
            A(f"v_sub_f32 v{b+2*w_}, v{b+2*w_}, v16")
            A(f"v_mul_f32 v{b+2*w_}, s68, v{b+2*w_}")
            A(f"v_exp_f32 v{b+2*w_}, v{b+2*w_}")
        A(f"v_sub_f32 v17, {MR[q]}, v16")
        A("v_mul_f32 v17, s68, v17")
        A(f"v_exp_f32 {FAC[q]}, v17")
        A(f"v_mul_f32 {LS[q]}, v{b}, v{b+1}")
        for w_ in range(1, 4):
            A(f"v_fmac_f32 {LS[q]}, v{b+2*w_}, v{b+2*w_+1}")
        A(f"v_rcp_f32 {LS[q]}, {LS[q]}")
    A(f"v_cmp_neq_f32 vcc, 1.0, {FAC[0]}")
    A(f"v_cmp_neq_f32 s[50:51], 1.0, {FAC[1]}")
    A("s_or_b64 s[50:51], vcc, s[50:51]")
    A("s_cbranch_scc0 K2_NORESC")
    rescaleO()
    A.label("K2_NORESC")
    for g in range(1, 4):
        A(f"s_lshr_b32 s45, s{64+g}, 12")
        A("s_mul_i32 s45, s45, 24576")
        A(f"s_add_u32 s45, s45, {65536 + (g-1)*8192}")
        A(f"v_add_u32 {T0}, s45, {VL16}")
        for d in range(2):
            for q in range(2):
                f, b = Oreg(g, d, q)
                t = SB[1] + ((d*2+q) % 2) * 16
                if f == "a":
                    for r in range(16): A(f"v_accvgpr_read_b32 v{t+r}, a{b+r}")
                    b = t
                for r in range(8):
                    A(f"v_cvt_pk_bf16_f32 v{t+r}, v{b+2*r}, v{b+2*r+1}")
                for s_ in range(2):
                    A(f"ds_write_b128 {T0}, {v(t+4*s_,4)} offset:{((d*2+q)*2+s_)*1024}")
    A("s_waitcnt lgkmcnt(0)")
    A("s_barrier")
    A("s_mul_i32 s45, s3, 24576")
    A("s_add_u32 s45, s45, 65536")
    A(f"v_add_u32 {T0}, s45, {VL16}")
    RB = 96
    for i in range(24):
        A(f"ds_read_b128 {v(RB+4*i,4)}, {T0} offset:{i*1024}")
    for i in range(24):
        src, blk, s_ = i // 8, (i % 8) // 2, i % 2
        d, q = blk // 2, blk % 2
        A(f"s_waitcnt lgkmcnt({min(15, 23-i)})")
        acc = OR(0, d, q)
        A(f"v_mfma_f32_32x32x16_bf16 {acc}, {v(SEL[s_],4)}, {v(RB+4*i,4)}, {acc}")
    A("s_lshl_b32 s45, s6, 19")
    A("s_lshl_b32 s43, s4, 14")
    A("s_add_u32 s45, s45, s43")
    A("s_lshl_b32 s43, s3, 12")
    A("s_add_u32 s45, s45, s43")
    A("s_add_u32 s44, s45, 262144")
    A("s_nop 7"); A("s_nop 3")
    for d in range(2):
        for q in range(2):
            f, b = Oreg(0, d, q)
            t = SB[0] + ((d*2+q)) * 16
            for r in range(16): A(f"v_accvgpr_read_b32 v{t+r}, a{b+r}")
            for r in range(16): A(f"v_mul_f32 v{t+r}, v{t+r}, {LS[q]}")
            for r in range(8): A(f"v_cvt_pk_bf16_f32 v{t+r}, v{t+2*r}, v{t+2*r+1}")
            for s_ in range(2):
                A(f"buffer_store_dwordx4 {v(t+4*s_,4)}, {VL16}, s[20:23], {'s44' if q else 's45'} offen offset:{(2*d+s_)*1024}")
    A("s_cmp_eq_u32 s34, 1")
    A("s_cbranch_scc1 K2_DONE")
    A("s_mov_b32 s34, 1")
    A("s_mov_b32 s6, s5")
    A("s_branch K2_PHASE")
    A.label("K2_DONE")
    stamp(A, 4, stamps); stamp_real(A, 6, stamps)
    stamp_flush(A, 7, stamps)
    A("s_endpgm")
    for (p, tag) in rare_blocks:
        A.label(f"K2_MASK_{tag}")
        mask_code(p)
        A(f"s_branch K2_MASKRET_{tag}")
        A.label(f"K2_RARE_{tag}")
        for q in range(2):
            xhalf("v_max_f32", TM[q], T0)
            A(f"v_max_f32 {TM[q]}, {TM[q]}, {MR[q]}")
            A(f"v_sub_f32 v17, {MR[q]}, {TM[q]}")
            A("v_mul_f32 v17, s68, v17")
            A(f"v_exp_f32 {FAC[q]}, v17")
            A(f"v_mov_b32 {MR[q]}, {TM[q]}")
            A(f"v_mul_f32 {MC[q]}, s68, {MR[q]}")
            A(f"v_add_f32 {THR[q]}, s69, {MR[q]}")
            A(f"v_mul_f32 {LS[q]}, {LS[q]}, {FAC[q]}")
        A("s_mov_b32 s42, 1")
        A(f"s_branch K2_RARERET_{tag}")
        A.label(f"K2_PEND_{tag}")
        rescaleO()
        A("s_mov_b32 s42, 0")
        A(f"s_branch K2_PENDRET_{tag}")
    A.label("K2_END")
    A("s_endpgm")
    return name, A.text(), kernel_desc(name, 512, 102, 256), (256, 256, 163840)
```

```python
from asmlib import *
from layout import *
from k1 import ws_srd, stamp, stamp_real, stamp_flush, bf16_round
from k2 import f32bits

def xhalf(A, op, x, t):
    A(f"v_mov_b32 {t}, {x}")
    A("s_nop 1")
    A(f"v_permlane32_swap_b32 {x}, {t}")
    A(f"{op} {x}, {x}, {t}")

def gen_proj(which, stamps=False):
    A = Asm()
    name = f"k{which}_kernel"
    P = f"K{which}"
    NKS = 256 if which == 3 else 112
    KW = NKS // 4
    W = 16 if which == 3 else 14
    kernel_begin(A, name)
    A("s_cmp_ge_u32 s2, 224")
    A(f"s_cbranch_scc1 {P}_END")
    stamp(A, 0, stamps); stamp_real(A, 5, stamps)
    A("s_load_dwordx2 s[46:47], s[0:1], 88")
    A("s_load_dwordx2 s[32:33], s[0:1], %d" % (0 if which == 3 else 72))
    A("v_lshrrev_b32 v1, 6, v0")
    A("v_and_b32 v3, 63, v0")
    A("v_readfirstlane_b32 s3, v1")
    A("v_lshlrev_b32 v2, 4, v3")
    A("s_and_b32 s4, s2, 7")
    A("s_lshr_b32 s5, s2, 3")
    A("s_mul_i32 s6, s5, 9363")
    A("s_lshr_b32 s6, s6, 16")
    A("s_mul_i32 s7, s6, 7")
    A("s_sub_u32 s7, s5, s7")
    A("s_lshl_b32 s4, s4, 2")
    A("s_add_u32 s6, s6, s4")
    A("s_waitcnt lgkmcnt(0)")
    if which == 3:
        ws_srd(A, 8, 46, WO_OFF, WO_SZ); ws_srd(A, 12, 46, CTX_OFF, CTX_SZ)
    else:
        ws_srd(A, 8, 46, W2_OFF, W2_SZ); ws_srd(A, 12, 46, H1_OFF, H1_SZ)
    ws_srd(A, 16, 46, H_OFF, H_SZ)
    srd(A, 20, 32, 2048*448*2)
    A(f"s_mul_i32 s40, s7, {2*NKS*1024}")
    A(f"s_mul_i32 s41, s6, {2*NKS*1024}")
    A(f"s_mul_i32 s42, s3, {KW*1024}")
    A("s_add_u32 s40, s40, s42")
    A("s_add_u32 s41, s41, s42")
    A(f"v_add_u32 v4, {NKS*1024}, v2")
    def loads(ks, sl):
        o = (ks % 4) * 1024
        return [f"buffer_load_dwordx4 {a(sl*16,4)}, v2, s[8:11], s40 offen offset:{o}",
                f"buffer_load_dwordx4 {a(sl*16+4,4)}, v2, s[12:15], s41 offen offset:{o}",
                f"buffer_load_dwordx4 {a(sl*16+8,4)}, v4, s[8:11], s40 offen offset:{o}",
                f"buffer_load_dwordx4 {a(sl*16+12,4)}, v4, s[12:15], s41 offen offset:{o}"]
    def adv(ks):
        return ["s_add_u32 s40, s40, 4096", "s_add_u32 s41, s41, 4096"] if ks % 4 == 3 else []
    for ks in range(W):
        for x in loads(ks, ks) + adv(ks): A(x)
    A("s_lshr_b32 s43, s3, 1")
    A("s_and_b32 s44, s3, 1")
    A("s_lshl_b32 s45, s7, 1")
    A("s_add_u32 s43, s43, s45")
    A("s_lshl_b32 s45, s6, 1")
    A("s_add_u32 s44, s44, s45")
    A("v_and_b32 v5, 31, v3")
    A("v_lshrrev_b32 v6, 5, v3")
    A("s_lshl_b32 s45, s44, 5")
    A("v_add_u32 v5, s45, v5")
    A("v_mul_u32_u24 v7, 896, v5")
    A("v_lshlrev_b32 v6, 3, v6")
    A("v_add_u32 v7, v7, v6")
    A("s_lshl_b32 s48, s43, 6")
    A("s_mul_i32 s49, s44, 28672")
    A("s_lshl_b32 s45, s43, 11")
    A("s_add_u32 s49, s49, s45")
    NRES = 4 if which == 3 else 2
    stamp(A, 1, stamps)
    ACC = 32
    NIT = KW // W
    first = True
    def body(first, more, extra_newer=0):
        for sl in range(W):
            if more:
                A(f"s_waitcnt vmcnt({min(63, 4*(W-1) + extra_newer)})")
            else:
                A(f"s_waitcnt vmcnt({min(63, 4*(W-1-sl) + extra_newer)})")
            for i in range(2):
                for q in range(2):
                    acc = v(ACC + (i*2+q)*16, 16)
                    c = "0" if (first and sl == 0) else acc
                    A(f"v_mfma_f32_32x32x16_bf16 {acc}, {a(sl*16+8*i,4)}, {a(sl*16+4+8*q,4)}, {c}")
            if more:
                ks = W + sl
                for x in loads(ks, sl) + adv(ks): A(x)
    assert (W % 4 == 0) or NIT == 2
    if NIT > 2:
        body(True, True)
        A("s_mov_b32 s50, 0")
        A.label(f"{P}_LOOP")
        body(False, True)
        A("s_add_u32 s50, s50, 1")
        A(f"s_cmp_lt_u32 s50, {NIT-2}")
        A(f"s_cbranch_scc1 {P}_LOOP")
    else:
        body(True, True)
    if which == 3:
        for g in range(4):
            A(f"buffer_load_dwordx2 {v(8+2*g,2)}, v7, s[20:23], s48 offen offset:{16*g}")
    else:
        for s_ in range(2):
            A(f"buffer_load_dwordx4 {v(8+4*s_,4)}, v2, s[16:19], s49 offen offset:{1024*s_}")
    body(False, False, NRES)
    stamp(A, 2, stamps)
    A("s_nop 7"); A("s_nop 3")
    for g in range(1, 4):
        pass
    A("s_lshl_b32 s45, s3, 14")
    A("v_add_u32 v16, s45, v2")
    for b in range(4):
        for r in range(4):
            A(f"ds_write_b128 v16, {v(ACC+b*16+4*r,4)} offset:{b*4096 + r*1024}")
    A("s_waitcnt lgkmcnt(0)")
    A("s_barrier")
    A("s_lshl_b32 s45, s3, 12")
    A("v_add_u32 v16, s45, v2")
    for src in range(4):
        for r in range(4):
            A(f"ds_read_b128 {v(ACC+src*16+4*r,4)}, v16 offset:{src*16384 + r*1024}")
    A("s_waitcnt lgkmcnt(0)")
    for r in range(16):
        A(f"v_add_f32 v{ACC+r}, v{ACC+r}, v{ACC+16+r}")
        A(f"v_add_f32 v{ACC+32+r}, v{ACC+32+r}, v{ACC+48+r}")
    for r in range(16):
        A(f"v_add_f32 v{ACC+r}, v{ACC+r}, v{ACC+32+r}")
    for r in range(8):
        A(f"v_cvt_pk_bf16_f32 v{ACC+16+r}, v{ACC+2*r}, v{ACC+2*r+1}")
    A("s_waitcnt vmcnt(0)")
    for r in range(8):
        A(f"v_lshlrev_b32 v{ACC+2*r}, 16, v{ACC+16+r}")
        A(f"v_and_b32 v{ACC+2*r+1}, 0xffff0000, v{ACC+16+r}")
        A(f"v_lshlrev_b32 v{ACC+32+2*r}, 16, v{8+r}")
        A(f"v_and_b32 v{ACC+32+2*r+1}, 0xffff0000, v{8+r}")
    for r in range(16):
        A(f"v_add_f32 v{ACC+r}, v{ACC+r}, v{ACC+32+r}")
    for r in range(8):
        A(f"v_cvt_pk_bf16_f32 v{ACC+16+r}, v{ACC+2*r}, v{ACC+2*r+1}")
    if which == 3:
        for s_ in range(2):
            A(f"buffer_store_dwordx4 {v(ACC+16+4*s_,4)}, v2, s[16:19], s49 offen offset:{1024*s_}")
        for r in range(8):
            A(f"v_lshlrev_b32 v{ACC+2*r}, 16, v{ACC+16+r}")
            A(f"v_and_b32 v{ACC+2*r+1}, 0xffff0000, v{ACC+16+r}")
        A(f"v_add_f32 v16, v{ACC}, v{ACC+1}")
        for r in range(2, 16): A(f"v_add_f32 v16, v16, v{ACC+r}")
        xhalf(A, "v_add_f32", "v16", "v18")
        A("v_mul_f32 v19, 0x3d000000, v16")
        A("v_mov_b32 v17, 0")
        for r in range(16):
            A(f"v_sub_f32 v18, v{ACC+r}, v19")
            A("v_fmac_f32 v17, v18, v18")
        xhalf(A, "v_add_f32", "v17", "v18")
        ws_srd(A, 24, 46, HS_OFF, HS_SZ)
        A("v_mul_u32_u24 v18, 112, v5")
        A("s_lshl_b32 s45, s43, 3")
        A("v_cmp_gt_u32 vcc, 32, v3")
        A("s_and_saveexec_b64 s[50:51], vcc")
        A("buffer_store_dwordx2 v[16:17], v18, s[24:27], s45 offen")
    else:
        for g in range(4):
            A(f"buffer_store_dwordx2 {v(ACC+16+2*g,2)}, v7, s[20:23], s48 offen offset:{16*g}")
    stamp(A, 3, stamps)
    if stamps:
        A("s_mov_b64 exec, -1")
        A("s_waitcnt vmcnt(0)")
    stamp(A, 4, stamps); stamp_real(A, 6, stamps)
    stamp_flush(A, 7, stamps)
    A.label(f"{P}_END")
    A("s_endpgm")
    return name, A.text(), kernel_desc(name, 384, 102, 128), (224, 256, 65536)

def gen_k4(stamps=False):
    A = Asm()
    name = "k4_kernel"
    P = "K4"
    kernel_begin(A, name)
    A("s_cmp_ge_u32 s2, 224")
    A(f"s_cbranch_scc1 {P}_END")
    stamp(A, 0, stamps); stamp_real(A, 5, stamps)
    A("s_load_dwordx2 s[46:47], s[0:1], 88")
    A("v_lshrrev_b32 v1, 6, v0")
    A("v_and_b32 v3, 63, v0")
    A("v_readfirstlane_b32 s3, v1")
    A("v_lshlrev_b32 v2, 4, v3")
    A("s_and_b32 s4, s2, 7")
    A("s_lshr_b32 s5, s2, 3")
    A("s_mul_i32 s6, s5, 9363")
    A("s_lshr_b32 s6, s6, 16")
    A("s_mul_i32 s7, s6, 7")
    A("s_sub_u32 s7, s5, s7")
    A("s_lshl_b32 s4, s4, 2")
    A("s_add_u32 s6, s6, s4")
    A("s_waitcnt lgkmcnt(0)")
    ws_srd(A, 8, 46, W1_OFF, W1_SZ); ws_srd(A, 12, 46, H_OFF, H_SZ)
    ws_srd(A, 16, 46, H1_OFF, H1_SZ); ws_srd(A, 20, 46, HS_OFF, HS_SZ)
    A("s_mul_i32 s40, s6, 57344")
    A("s_mul_i32 s41, s3, 7168")
    A("s_add_u32 s40, s40, s41")
    A("s_mov_b32 m0, s41")
    A("s_add_u32 s42, s40, 4096")
    for i in range(4):
        A(f"buffer_load_dwordx4 v2, s[12:15], s40 offen offset:{i*1024} lds")
    A("s_add_u32 m0, s41, 4096")
    A("s_nop 0")
    for i in range(3):
        A(f"buffer_load_dwordx4 v2, s[12:15], s42 offen offset:{i*1024} lds")
    A("v_and_b32 v5, 31, v3")
    A("s_lshl_b32 s43, s6, 6")
    A("v_add_u32 v5, s43, v5")
    A("v_mul_u32_u24 v5, 112, v5")
    STB = [16, 44]
    for q in range(2):
        for i in range(7):
            A(f"buffer_load_dwordx4 {v(STB[q]+4*i,4)}, v5, s[20:23], 0 offen offset:{q*3584 + 16*i}")
    A("s_lshl_b32 s43, s7, 3")
    A("s_add_u32 s43, s43, s3")
    A("s_mul_i32 s44, s43, 28672")
    for ks in range(28):
        A(f"buffer_load_dwordx4 {a(4*ks,4)}, v2, s[8:11], s44 offen offset:{(ks%4)*1024}")
        if ks % 4 == 3: A("s_add_u32 s44, s44, 4096")
    for r in range(4): A(f"v_mov_b32 v{8+r}, 0x3f803f80")
    stamp(A, 1, stamps)
    A("s_waitcnt vmcnt(28)")
    MB_ = ["v12", "v13"]; RS = ["v14", "v15"]
    for q in range(2):
        b = STB[q]
        A(f"v_add_f32 v6, v{b}, v{b+2}")
        for i in range(2, 14): A(f"v_add_f32 v6, v6, v{b+2*i}")
        A("v_mul_f32 v6, 0x3b124925, v6")
        A(f"v_add_f32 v7, v{b+1}, v{b+3}")
        for i in range(2, 14): A(f"v_add_f32 v7, v7, v{b+2*i+1}")
        A("v_mov_b32 v4, 0")
        for i in range(14):
            A(f"v_fma_f32 v{b+2*i}, v{b+2*i}, {1/32}, -v6".replace(str(1/32), "s45") if False else f"v_mul_f32 v{b+2*i}, 0x3d000000, v{b+2*i}")
            A(f"v_sub_f32 v{b+2*i}, v{b+2*i}, v6")
            A(f"v_fmac_f32 v4, v{b+2*i}, v{b+2*i}")
        A("v_mul_f32 v4, 0x42000000, v4")
        A("v_add_f32 v7, v7, v4")
        A("v_mul_f32 v7, 0x3b124925, v7")
        bf16_round(A, MB_[q], "v6")
        bf16_round(A, "v7", "v7")
        A("v_add_f32 v7, 0x3727c5ac, v7")
        bf16_round(A, "v7", "v7")
        A("v_sqrt_f32 v7, v7")
        A("s_nop 0")
        bf16_round(A, "v7", "v7")
        A(f"v_rcp_f32 {RS[q]}, v7")
        A("s_nop 0")
        A(f"v_mul_f32 {MB_[q]}, {MB_[q]}, {RS[q]}")
    A("s_barrier")
    ACC = 72
    XF = [16, 24, 32, 40]
    def xr(ks):
        b = XF[ks % 4]
        return [f"ds_read_b128 {v(b+4*q,4)}, v2 offset:{q*28672+ks*1024}" for q in range(2)]
    for ks in range(3):
        for x in xr(ks): A(x)
    for ks in range(28):
        if ks + 3 < 28:
            for x in xr(ks + 3): A(x)
        rem = min(3, 27 - ks)
        A(f"s_waitcnt vmcnt({27-ks}) lgkmcnt({2*rem})")
        for q in range(3):
            acc = v(ACC + q*16, 16)
            c = "0" if ks == 0 else acc
            bop = v(XF[ks % 4] + 4*q, 4) if q < 2 else v(8, 4)
            A(f"v_mfma_f32_32x32x16_bf16 {acc}, {a(4*ks,4)}, {bop}, {c}")
    stamp(A, 2, stamps)
    A("s_mul_i32 s44, s6, %d" % (2*112*1024))
    A("s_lshl_b32 s45, s43, 11")
    A("s_add_u32 s44, s44, s45")
    A(f"s_add_u32 s45, s44, {112*1024}")
    A(f"s_mov_b32 s48, {f32bits(-1.4426950408889634):#x}")
    A("s_nop 7"); A("s_nop 1")
    for q in range(2):
        b = ACC + q*16; cs = ACC + 32
        for r in range(16):
            A(f"v_mul_f32 v{16+r}, {MB_[q]}, v{cs+r}")
        for r in range(16):
            A(f"v_fma_f32 v{b+r}, v{b+r}, {RS[q]}, -v{16+r}")
        for r in range(8):
            A(f"v_cvt_pk_bf16_f32 v{16+r}, v{b+2*r}, v{b+2*r+1}")
        for r in range(8):
            A(f"v_lshlrev_b32 v{b+2*r}, 16, v{16+r}")
            A(f"v_and_b32 v{b+2*r+1}, 0xffff0000, v{16+r}")
        for r in range(16):
            A(f"v_mul_f32 v{16+r}, s48, v{b+r}")
        for r in range(16):
            A(f"v_exp_f32 v{16+r}, v{16+r}")
        for r in range(16):
            A(f"v_add_f32 v{16+r}, 1.0, v{16+r}")
        for r in range(16):
            A(f"v_rcp_f32 v{16+r}, v{16+r}")
        for r in range(16):
            A(f"v_mul_f32 v{b+r}, v{b+r}, v{16+r}")
        for r in range(8):
            A(f"v_cvt_pk_bf16_f32 v{b+r}, v{b+2*r}, v{b+2*r+1}")
        for s_ in range(2):
            A(f"buffer_store_dwordx4 {v(b+4*s_,4)}, v2, s[16:19], {'s45' if q else 's44'} offen offset:{1024*s_}")
    stamp(A, 3, stamps)
    if stamps: A("s_waitcnt vmcnt(0)")
    stamp(A, 4, stamps); stamp_real(A, 6, stamps)
    if stamps:
        A("s_cmp_ge_u32 s3, 4")
        A(f"s_cbranch_scc1 {P}_END")
    stamp_flush(A, 7, stamps)
    A.label(f"{P}_END")
    A("s_endpgm")
    return name, A.text(), kernel_desc(name, 232, 102, 120), (224, 512, 57344)
```

```python
MB = 1 << 20
KV_OFF   = 0
KV_SZ    = 32 * MB
XN_OFF   = 32 * MB
XN_SZ    = 64 * 28 * 1024
WQ_OFF   = 34 * MB
WQ_SZ    = 128 * 28 * 1024
WO_OFF   = 38 * MB
WO_SZ    = 14 * 256 * 1024
W1_OFF   = 42 * MB
W1_SZ    = 56 * 28 * 1024
W2_OFF   = 44 * MB
W2_SZ    = 14 * 112 * 1024
CTX_OFF  = 46 * MB
CTX_SZ   = 16 * MB
H_OFF    = 62 * MB
H_SZ     = 64 * 28 * 1024
HS_OFF   = 64 * MB
HS_SZ    = 2048 * 14 * 8
H1_OFF   = 65 * MB
H1_SZ    = 64 * 112 * 1024
WS_USED  = 73 * MB
```

```python
import sys
from k1 import gen_k1
from k2 import gen_k2
from k3 import gen_proj, gen_k4
def build(kernels, path):
    hdr = open("sequential_preLN__compressed_kv_cla__dense_activation_silu__prompt.s.ref").read().split("; Override launch")[0]
    hdr += "".join(f"; @launch kernel={n} grid=({g},1,1) block=({b},1,1) lds={l}\n" for n, _, _, (g, b, l) in kernels)
    out = hdr + '.amdgcn_target "amdgcn-amd-amdhsa--gfx950"\n' + "".join(t for _, t, _, _ in kernels) + "".join(d for _, _, d, _ in kernels)
    open(path, "w").write(out)
if __name__ == "__main__":
    st = int(sys.argv[1]) if len(sys.argv) > 1 else 0
    build([gen_k1(stamps=st==1), gen_k2(stamps=st==2), gen_proj(3, stamps=st==3), gen_k4(stamps=st==4), gen_proj(5, stamps=st==5)], "dev.s" if st else "sequential_preLN__compressed_kv_cla__dense_activation_silu__prompt.s")
```

```python
from asmlib import *
from layout import *
import struct, math

def f32bits(x): return struct.unpack("<I", struct.pack("<f", x))[0]

STAMP_OFF = 80 << 20
def ws_srd(A, d, wsreg, off, nbytes):
    A(f"s_add_u32 s{d}, s{wsreg}, {off:#x}")
    A(f"s_addc_u32 s{d+1}, s{wsreg+1}, 0")
    A(f"s_and_b32 s{d+1}, s{d+1}, 0xffff")
    A(f"s_mov_b32 s{d+2}, {nbytes:#x}")
    A(f"s_mov_b32 s{d+3}, 0x00020000")

class Stamps:
    def __init__(self, A, on, vreg="v31"):
        self.A, self.on, self.vreg = A, on, vreg
    def init(self):
        if self.on: self.A(f"v_mov_b32 {self.vreg}, 0")
    def __call__(self, idx, real=False):
        if not self.on: return
        A = self.A
        import os
        if os.environ.get("REALST"): real = True
        A(f"{'s_memrealtime' if real else 's_memtime'} s[100:101]")
        A("s_waitcnt lgkmcnt(0)")
        A(f"v_writelane_b32 {self.vreg}, s100, {idx}")
    def flush(self, wsreg, wave, lane):
        if not self.on: return
        A = self.A
        A("s_waitcnt vmcnt(0) lgkmcnt(0)")
        ws_srd(A, 96, wsreg, STAMP_OFF, 1 << 20)
        A("s_lshl_b32 s100, s2, 2")
        A(f"s_add_u32 s100, s100, {wave}")
        A("s_lshl_b32 s100, s100, 7")
        A(f"v_lshlrev_b32 v1, 2, {lane}")
        A("v_cmp_gt_u32 vcc, 32, " + lane)
        A("s_and_saveexec_b64 s[94:95], vcc")
        A(f"buffer_store_dword {self.vreg}, v1, s[96:99], s100 offen")
        A("s_mov_b64 exec, s[94:95]")

class VM:
    def __init__(self): self.ops = []
    def issue(self, tag, n=1): self.ops += [tag] * n
    def newer(self, pred):
        idx = [i for i, t in enumerate(self.ops) if pred(t)]
        if not idx: return 63
        return min(63, len(self.ops) - 1 - max(idx))

def is_vmem(x): return isinstance(x, str) and (x.startswith("buffer_") or x.startswith("global_"))

def cost(x):
    if callable(x): return 1
    if x.startswith(("v_exp", "v_rcp", "v_rsq", "v_sqrt", "v_log")): return 2
    return 1

def run_stream(A, mfmas, queues, budget, vm=None):
    pos = [0] * len(queues)
    def emit(x):
        if isinstance(x, tuple):
            A(x[0]); vm.issue(x[1]); return 1
        if callable(x): x(); return 1
        A(x); return cost(x)
    for g, m in enumerate(mfmas):
        A(m)
        b = budget[g] if isinstance(budget, (list, tuple)) else budget
        for qi, (items, must) in enumerate(queues):
            while b > 0 and pos[qi] < len(items):
                b -= emit(items[pos[qi]]); pos[qi] += 1
    for qi, (items, must) in enumerate(queues):
        if must:
            while pos[qi] < len(items):
                emit(items[pos[qi]]); pos[qi] += 1
        else:
            del items[:pos[qi]]

def bf16_round_l(dst, src):
    return [f"v_cvt_pk_bf16_f32 {dst}, {src}, {src}", f"v_lshlrev_b32 {dst}, 16, {dst}"]

def half_sum_l(x, t):
    out = []
    for ctl in ("quad_perm:[1,0,3,2]", "quad_perm:[2,3,0,1]", "row_half_mirror", "row_mirror"):
        out += ["s_nop 1", f"v_add_f32_dpp {x}, {x}, {x} {ctl} row_mask:0xf bank_mask:0xf"]
    out += [f"v_mov_b32 {t}, {x}", "s_nop 1", f"v_permlane16_swap_b32 {x}, {t}", f"v_add_f32 {x}, {x}, {t}"]
    return out

def xhalf(A, op, x, t):
    A(f"v_mov_b32 {t}, {x}")
    A("s_nop 1")
    A(f"v_permlane32_swap_b32 {x}, {t}")
    A(f"{op} {x}, {x}, {t}")

RL = [(0,    448, 16, 448*4096*2,  8192, 28,  WQ_OFF, WQ_SZ, 64, 1024, True),
      (448,  448, 40, 4096*448*2,  896,  256, WO_OFF, WO_SZ, 7,  9363, False),
      (896,  196, 56, 448*1792*2,  3584, 28,  W1_OFF, W1_SZ, 28, 2341, False),
      (1092, 196, 64, 1792*448*2,  896,  112, W2_OFF, W2_SZ, 7,  9363, False)]
NPASS = 1288

def run_sched(A, mfmas, sched, side, side_budget, vm=None):
    def emit(x):
        if isinstance(x, tuple):
            A(x[0]); vm.issue(x[1]); return 1
        if callable(x): x(); return 1
        A(x); return cost(x)
    k = 0
    for g, m in enumerate(mfmas):
        A(m)
        b = side_budget
        for x in sched.get(g, []): b -= emit(x)
        while b > 0 and k < len(side):
            b -= emit(side[k]); k += 1
    del side[:k]

def spread(sched, items, g0, g1, keep_pairs=()):
    n = len(items)
    for i, x in enumerate(items):
        g = g0 + (i * (g1 - g0 + 1)) // n
        sched.setdefault(g, []).append(x)
```

```python
from common import *

def rl_setup(A, pid, srd_src, srd_dst, s_src, s_dst, s_stride, vs, vd, vd2, lane, t="s56"):
    PTR = {16: 40, 40: 46, 56: 50, 64: 52}
    f0 = RL[0]
    def setp(e, cond):
        first, cnt, ka, sb, st_, nks, do, dsz, ncg, magic, nat = e
        vals = [(f"s{srd_src}", f"s{PTR[ka]}"), (f"s{srd_src+1}", f"s{PTR[ka]+1}"), (f"s{srd_src+2}", sb), (s_stride, st_), ("s57", nks*1024),
                ("s58", do), (f"s{srd_dst+2}", dsz), ("s59", ncg), ("s60", magic), ("s61", first), ("s62", 8 if nat else 4)]
        for d, x in vals:
            A(f"s_mov_b32 {d}, {x}" if not cond else f"s_cselect_b32 {d}, {x}, {d}")
    setp(f0, False)
    for e in RL[1:]:
        A(f"s_cmp_ge_u32 {pid}, {e[0]}")
        setp(e, True)
    A(f"s_cmp_ge_u32 {pid}, {NPASS}")
    A(f"s_cselect_b32 s{srd_src+2}, 0, s{srd_src+2}")
    A(f"s_cselect_b32 s{srd_dst+2}, 0, s{srd_dst+2}")
    A(f"s_and_b32 s{srd_src+1}, s{srd_src+1}, 0xffff")
    A(f"s_mov_b32 s{srd_src+3}, 0x00020000")
    A(f"s_add_u32 s{srd_dst}, s54, s58")
    A(f"s_addc_u32 s{srd_dst+1}, s55, 0")
    A(f"s_and_b32 s{srd_dst+1}, s{srd_dst+1}, 0xffff")
    A(f"s_mov_b32 s{srd_dst+3}, 0x00020000")
    A(f"s_sub_u32 {pid}, {pid}, s61")
    A(f"s_mul_i32 s58, {pid}, s60")
    A("s_lshr_b32 s58, s58, 16")
    A("s_mul_i32 s61, s58, s59")
    A(f"s_sub_u32 s61, {pid}, s61")
    A(f"s_mul_i32 {s_src}, s58, {s_stride}")
    A(f"s_lshl_b32 {s_src}, {s_src}, 6")
    A("s_lshl_b32 s63, s61, 7")
    A(f"s_add_u32 {s_src}, {s_src}, s63")
    A(f"s_mul_i32 {s_dst}, s61, s57")
    A(f"s_lshl_b32 {s_dst}, {s_dst}, 1")
    A("s_lshl_b32 s63, s58, 12")
    A(f"s_add_u32 {s_dst}, {s_dst}, s63")
    A(f"v_lshrrev_b32 v60, 3, {lane}")
    A(f"v_mul_lo_u32 v60, v60, {s_stride}")
    A(f"v_and_b32 v61, 7, {lane}")
    A(f"v_lshl_add_u32 {vs}, v61, 4, v60")
    A(f"v_lshrrev_b32 v60, 5, {lane}")
    A("v_mul_lo_u32 v60, v60, s62")
    A(f"v_bfe_u32 v61, {lane}, 2, 2")
    A("v_add_u32 v60, v60, v61")
    A("v_lshlrev_b32 v60, 7, v60")
    A(f"v_bfe_u32 v61, {lane}, 4, 1")
    A("v_lshl_add_u32 v60, v61, 5, v60")
    A(f"v_and_b32 v61, 3, {lane}")
    A("v_lshl_add_u32 v60, v61, 3, v60")
    A(f"v_add_u32 {vd}, s91, v60")
    A("s_sub_u32 s63, 12, s62")
    A("s_lshl_b32 s63, s63, 7")
    A(f"v_add_u32 {vd2}, s63, {vd}")
    A(f"s_lshl_b32 {s_stride}, {s_stride}, 3")
    A(f"s_sub_u32 {s_stride}, {s_stride}, 1024")
    A(f"s_add_u32 {t}, {s_dst}, s57")

def rl_loads(srd_src, s_src, s_step, vs, tag):
    out = []
    for i in range(8):
        if i % 4 == 0:
            out.append(f"s_add_u32 m0, s91, {i*1024}")
            if i: out.append(f"s_add_u32 {s_src}, {s_src}, 4096")
        out.append("s_nop 0" if i == 0 else f"s_add_u32 {s_src}, {s_src}, {s_step}")
        out.append((f"buffer_load_dwordx4 {vs}, s[{srd_src}:{srd_src+3}], {s_src} offen offset:{(i%4)*1024} lds", tag))
    return out

def rl_reads(vd, vd2, vb):
    out = []
    for nb in range(2):
        for ks in range(4):
            f = nb*4 + ks
            out.append(f"ds_read_b64_tr_b16 {v(vb+4*f,2)}, {vd} offset:{ks*2048+nb*64}")
            out.append(f"ds_read_b64_tr_b16 {v(vb+4*f+2,2)}, {vd2} offset:{ks*2048+nb*64}")
    return out

def rl_stores(srd_dst, s_dst, s_dst2, vl16, vb, tag, sc):
    return [(f"buffer_store_dwordx4 {v(vb+4*f,4)}, {vl16}, s[{srd_dst}:{srd_dst+3}], {s_dst2 if f >= 4 else s_dst} offen offset:{(f%4)*1024}{sc}", tag) for f in range(8)]

BUD = 2
import os
NOSIDE = int(os.environ.get('NOSIDE', '0'))
RD_END = 54
def k1_body(A, ST, sc="", end=None):
    vm = VM()
    A("s_load_dwordx16 s[36:51], s[0:1], 0")
    A("s_load_dwordx2 s[52:53], s[0:1], 64")
    A("s_load_dwordx2 s[54:55], s[0:1], 88")
    A("v_lshrrev_b32 v1, 6, v0")
    A("v_and_b32 v2, 63, v0")
    A("v_readfirstlane_b32 s3, v1")
    ST.init()
    A("s_and_b32 s4, s2, 7")
    A("s_lshr_b32 s5, s2, 3")
    A("s_and_b32 s6, s5, 7")
    A("s_lshr_b32 s5, s5, 3")
    A("s_lshr_b32 s7, s5, 1")
    A("s_and_b32 s5, s5, 1")
    A("s_lshl_b32 s4, s4, 1")
    A("s_add_u32 s4, s4, s5")
    A("v_lshrrev_b32 v3, 2, v2")
    A("v_lshlrev_b32 v3, 11, v3")
    A("v_and_b32 v4, 3, v2")
    A("v_lshl_add_u32 v3, v4, 4, v3")
    A("s_lshl_b32 s56, s6, 19")
    A("s_lshl_b32 s57, s3, 17")
    A("s_add_u32 s56, s56, s57")
    A("v_add_u32 v8, s56, v3")
    A("v_xor_b32 v9, 32, v8")
    A(f"v_add_u32 v9, {32768-1024}, v9")
    A(f"v_add_u32 v10, {2*(32768-1024)}, v8")
    A(f"v_add_u32 v11, {2*(32768-1024)}, v9")
    A("v_lshrrev_b32 v3, 5, v2")
    A("v_and_b32 v4, 31, v2")
    A("s_and_b32 s57, s3, 1")
    A("v_xor_b32 v4, s57, v4")
    A("v_lshlrev_b32 v5, 2, v3")
    A("v_xor_b32 v4, v4, v5")
    A("v_lshlrev_b32 v4, 4, v4")
    A("v_lshl_add_u32 v4, v3, 13, v4")
    A("s_lshl_b32 s56, s4, 9")
    A("s_lshl_b32 s57, s3, 16")
    A("s_add_u32 s56, s56, s57")
    A("v_add_u32 v12, s56, v4")
    A("v_xor_b32 v13, 128, v12")
    A(f"v_add_u32 v13, {16384-1024}, v13")
    A(f"v_add_u32 v14, {2*(16384-1024)}, v12")
    A(f"v_add_u32 v15, {2*(16384-1024)}, v13")
    A("s_lshl_b32 s64, s3, 12")
    A("s_mov_b32 s65, 0")
    A("s_mov_b32 s66, 0")
    A("s_waitcnt lgkmcnt(0)")
    srd(A, 8, 38, 2048*1024*2)
    A("s_cmp_eq_u32 s7, 0")
    A("s_cselect_b32 s12, s42, s44")
    A("s_cselect_b32 s13, s43, s45")
    A("s_and_b32 s13, s13, 0xffff")
    A(f"s_mov_b32 s14, {1024*4096*2:#x}")
    A("s_mov_b32 s15, 0x00020000")
    def dma(stage):
        slot = stage % 4
        out = [f"s_add_u32 m0, s64, {slot*16384}", "s_nop 0"]
        for i in range(4):
            out.append((f"buffer_load_dwordx4 v{8+i}, s[8:11], s65 offen offset:{1024*i} lds", ("d", stage)))
        out += [f"s_add_u32 m0, s64, {65536+slot*16384}", "s_add_u32 s65, s65, 64"]
        for i in range(4):
            out.append((f"buffer_load_dwordx4 v{12+i}, s[12:15], s66 offen offset:{1024*i} lds", ("d", stage)))
        out.append("s_add_u32 s66, s66, 262144")
        return out
    def emit(items):
        for x in items:
            if isinstance(x, tuple): A(x[0]); vm.issue(x[1])
            elif callable(x): x()
            else: A(x)
    emit(dma(0)); emit(dma(1))
    ST(1)
    ws_srd(A, 16, 54, KV_OFF, KV_SZ)
    srd(A, 20, 36, 2048*448*2)
    ws_srd(A, 24, 54, XN_OFF, XN_SZ)
    A("v_and_b32 v3, 31, v2")
    A("v_lshrrev_b32 v4, 5, v2")
    A("s_lshl_b32 s56, s2, 3")
    A("s_lshl_b32 s57, s3, 1")
    A("s_add_u32 s56, s56, s57")
    A("v_add_u32 v4, s56, v4")
    A("v_mul_u32_u24 v25, 896, v4")
    A("v_lshl_add_u32 v25, v3, 5, v25")
    A("v_lshrrev_b32 v5, 5, v4")
    A("v_mul_u32_u24 v26, 28672, v5")
    A("v_lshl_add_u32 v26, v3, 10, v26")
    A("v_and_b32 v5, 31, v4")
    A("v_lshl_add_u32 v26, v5, 4, v26")
    A("v_cmp_gt_u32 vcc, 28, v3")
    A("v_mov_b32 v5, 0x7ffffff0")
    A("s_nop 0")
    A("v_cndmask_b32 v25, v5, v25, vcc")
    A("v_cndmask_b32 v26, v5, v26, vcc")
    A("v_cndmask_b32 v7, 0, 1.0, vcc")
    emit([("buffer_load_dwordx4 v[32:35], v25, s[20:23], 0 offen", "ln"), ("buffer_load_dwordx4 v[36:39], v25, s[20:23], 0 offen offset:16", "ln")])
    A("s_and_b32 s67, s3, 1")
    A("s_lshr_b32 s68, s3, 1")
    A("v_and_b32 v3, 15, v2")
    A("v_lshrrev_b32 v4, 4, v2")
    A("v_lshrrev_b32 v5, 3, v3")
    A("v_and_b32 v6, 7, v3")
    A("v_lshl_add_u32 v6, v5, 4, v6")
    A("v_lshlrev_b32 v5, 1, v5")
    A("v_xor_b32 v5, v4, v5")
    A("v_lshlrev_b32 v16, 6, v6")
    A("v_lshl_add_u32 v16, v5, 4, v16")
    A("s_lshl_b32 s56, s67, 13")
    A("v_add_u32 v16, s56, v16")
    A("v_lshlrev_b32 v6, 4, v6")
    A("v_lshrrev_b32 v5, 1, v4")
    A("v_lshl_add_u32 v6, v5, 10, v6")
    A("v_and_b32 v5, 1, v4")
    A("v_lshl_add_u32 v6, v5, 9, v6")
    A("v_lshrrev_b32 v60, 2, v3")
    A("v_lshl_add_u32 v61, v4, 3, v60")
    A("v_lshlrev_b32 v61, 9, v61")
    A("v_and_b32 v62, 1, v3")
    A("v_lshl_add_u32 v61, v62, 3, v61")
    A("s_lshl_b32 s56, s68, 8")
    A("s_add_u32 s56, s56, 65536")
    A("v_add_u32 v61, s56, v61")
    A("v_lshl_or_b32 v60, v60, 2, v5")
    A("v_and_b32 v62, 2, v3")
    A("v_xor_b32 v60, v60, v62")
    for j in range(8):
        A(f"v_xor_b32 v62, {4*(j>>1)+(j&1)}, v60")
        A(f"v_lshl_add_u32 v{17+j}, v62, 4, v61")
    A("s_lshl_b32 s91, s3, 13")
    A("s_add_u32 s91, s91, 131072")
    A("s_lshl_b32 s69, s2, 2")
    A("s_add_u32 s69, s69, s3")
    A("s_add_u32 s70, s69, 1024")
    rl_setup(A, "s69", 28, 32, "s71", "s72", "s73", "v27", "v28", "v3", "v2", t="s74")
    rl_setup(A, "s70", 76, 80, "s84", "s85", "s86", "v29", "v30", "v4", "v2", t="s87")
    A("v_lshlrev_b32 v5, 4, v2")
    side = []
    ln = [lambda: A(f"s_waitcnt vmcnt({vm.newer(lambda t: t == 'ln')})")]
    for i in range(8):
        ln += [f"v_lshlrev_b32 v{40+2*i}, 16, v{32+i}", f"v_and_b32 v{41+2*i}, 0xffff0000, v{32+i}"]
    ln += ["v_add_f32 v56, v40, v41"] + [f"v_add_f32 v56, v56, v{40+i}" for i in range(2, 16)]
    ln += half_sum_l("v56", "v57") + ["v_mul_f32 v56, 0x3b124925, v56", "v_mov_b32 v58, 0"]
    for i in range(16):
        ln += [f"v_sub_f32 v57, v{40+i}, v56", "v_fmac_f32 v58, v57, v57"]
    ln += ["v_mul_f32 v58, v58, v7"] + half_sum_l("v58", "v57") + ["v_mul_f32 v58, 0x3b124925, v58"]
    ln += bf16_round_l("v56", "v56") + bf16_round_l("v58", "v58") + ["v_add_f32 v58, 0x3727c5ac, v58"] + bf16_round_l("v58", "v58")
    ln += ["v_sqrt_f32 v58, v58", "s_nop 0"] + bf16_round_l("v58", "v58") + ["v_rcp_f32 v58, v58"]
    ln += [f"v_sub_f32 v{40+i}, v{40+i}, v56" for i in range(16)]
    ln += [f"v_cvt_pk_bf16_f32 v{32+i}, v{40+2*i}, v{41+2*i}" for i in range(8)]
    for i in range(8):
        ln += [f"v_lshlrev_b32 v{40+2*i}, 16, v{32+i}", f"v_and_b32 v{41+2*i}, 0xffff0000, v{32+i}"]
    ln += [f"v_mul_f32 v{40+i}, v{40+i}, v58" for i in range(16)]
    ln += [f"v_cvt_pk_bf16_f32 v{32+i}, v{40+2*i}, v{41+2*i}" for i in range(8)]
    ln += [(f"buffer_store_dwordx4 v[32:35], v26, s[24:27], 0 offen{sc}", "lnst"), (f"buffer_store_dwordx4 v[36:39], v26, s[24:27], 0 offen offset:512{sc}", "lnst")]
    SETS = [64, 128, 192]
    def reads(stage, st_):
        slot = stage % 4
        b = SETS[st_]
        ra = [f"ds_read_b128 {v(b+4*i,4)}, v16 offset:{slot*16384 + (32*(i>>1)+8*(i&1))*64}" for i in range(8)]
        rw = [[f"ds_read_b64_tr_b16 {v(b+32+4*j+2*t,2)}, v{17+j} offset:{slot*16384 + 2048*t}" for t in range(2)] for j in range(8)]
        out = []
        for i in range(8): out += [ra[i]] + rw[i]
        return out
    def mf(typ, i, j, st_, first=False):
        b = SETS[st_]
        acc = a((i*8+j)*4, 4)
        c = "0" if first else acc
        ca, w_ = v(b+4*i, 4), v(b+32+4*j, 4)
        return f"v_mfma_f32_16x16x32_bf16 {acc}, {w_}, {ca}, {c}" if typ == 0 else f"v_mfma_f32_16x16x32_bf16 {acc}, {ca}, {w_}, {c}"
    vm0 = list(vm.ops)
    A("s_cmp_eq_u32 s7, 1")
    A("s_cbranch_scc1 K1_V")
    for typ in (0, 1):
        if typ: A.label("K1_V")
        vm.ops = list(vm0)
        T = f"K1_T{typ}"
        A(f"s_waitcnt vmcnt({vm.newer(lambda t: t == ('d', 0))})")
        A("s_barrier")
        ST(2)
        emit(reads(0, 0))
        A("s_waitcnt lgkmcnt(0)")
        sidedma = {1: rl_loads(28, "s71", "s73", "v27", "rA"), 4: rl_loads(76, "s84", "s86", "v29", "rB")}
        sideq = {0: list(ln),
                 3: [lambda: A(f"s_waitcnt vmcnt({vm.newer(lambda t: t == 'rA')})")] + rl_reads("v28", "v3", 192),
                 4: rl_stores(32, "s72", "s74", "v5", 192, "rAs", sc),
                 6: [lambda: A(f"s_waitcnt vmcnt({vm.newer(lambda t: t == 'rB')})")] + rl_reads("v30", "v4", 224),
                 7: rl_stores(80, "s85", "s87", "v5", 224, "rBs", sc)}
        if NOSIDE: sidedma = {}; sideq = {}
        carry = []
        waits = {}
        def stage(s_, label_s=None):
            nonlocal carry
            def w():
                n = vm.newer(lambda t: t == ("d", 31 if s_ == 29 else s_ + 1))
                if s_ >= 8: n = min(n, 16)
                waits[s_] = n
                A(f"s_waitcnt vmcnt({n})")
            sched = {}
            g0 = 0
            if s_ == 0:
                spread(sched, dma(2) + dma(3), 0, 23); g0 = 24
            sched.setdefault(g0, []).extend([w, "s_barrier"])
            rd = reads(s_ + 1, (s_ + 1) % 2)
            if s_ == 29: rd += reads(31, 2)
            spread(sched, rd, g0 + 1, RD_END)
            if s_ + 4 < 32: spread(sched, dma(s_ + 4), g0 + 2, 30 if s_ in sidedma else 62)
            if s_ in sidedma: spread(sched, sidedma[s_], 32, 63)
            if s_ in (3, 4, 6, 7): assert not carry, (s_, len(carry))
            carry += sideq.pop(s_, [])
            ms = [mf(typ, i, j, s_ % 2, first=(s_ == 0)) for i in range(8) for j in range(8)]
            run_sched(A, ms, sched, carry, BUD, vm)
            A("s_waitcnt lgkmcnt(0)")
        for s_ in range(8):
            stage(s_)
            ST(9 + s_)
        assert not carry and not sideq, (len(carry), sideq.keys())
        ST(3)
        A("s_mov_b32 s69, 0")
        A.label(T + "_LOOP")
        for s_ in range(8, 12): stage(s_)
        assert all(waits[s_] == 16 for s_ in range(8, 12)), waits
        A("s_add_u32 s69, s69, 1")
        A("s_cmp_lt_u32 s69, 5")
        A(f"s_cbranch_scc1 {T}_LOOP")
        vm.ops = [("d", 29)] * 8 + [("d", 30)] * 8 + [("d", 31)] * 8
        stage(28); stage(29)
        ST(4)
        A("s_lshl_b32 s70, s4, 21")
        A("s_lshl_b32 s71, s6, 18")
        A("s_add_u32 s70, s70, s71")
        A("s_lshl_b32 s71, s67, 17")
        A("s_add_u32 s70, s70, s71")
        A("s_lshl_b32 s71, s68, 13")
        A("s_add_u32 s70, s70, s71")
        if typ: A("s_add_u32 s70, s70, 16384")
        for kb in range(4):
            A(f"s_add_u32 s{72+2*kb}, s70, {kb*32768}")
            A(f"s_add_u32 s{73+2*kb}, s70, {kb*32768+4096}")
        cnt = [0]
        def epi(u):
            out = []
            for pp in range(4):
                if typ == 0: i, j0 = u, 2*pp; t0, t1 = (i*8+j0)*4, (i*8+j0+1)*4; kb, odd, db = i >> 1, i & 1, pp
                else: j, i0 = u, 2*pp; t0, t1 = (i0*8+j)*4, ((i0+1)*8+j)*4; kb, odd, db = pp, j & 1, j >> 1
                t = 32 + (cnt[0] % 2) * 16; cnt[0] += 1
                out += [f"v_accvgpr_read_b32 v{t+r}, a{t0+r}" for r in range(4)]
                out += [f"v_accvgpr_read_b32 v{t+4+r}, a{t1+r}" for r in range(4)]
                out += [f"v_cvt_pk_bf16_f32 v{t+8+r}, v{t+2*r}, v{t+2*r+1}" for r in range(4)]
                out.append(f"buffer_store_dwordx4 {v(t+8,4)}, v6, s[16:19], s{72+2*kb+(db>>1)} offen offset:{(db&1)*2048 + odd*128}{sc}")
            return out
        pend = []
        for u in range(8):
            ms = []
            for o in range(8):
                i, j = (u, o) if typ == 0 else (o, u)
                ms += [mf(typ, i, j, 0), mf(typ, i, j, 2)]
            run_stream(A, ms, [(pend, True)], 3, vm)
            pend = epi(u)
        A("s_nop 7")
        emit(pend)
        ST(5)
        end(typ)

def gen_k1(stamps=False, sc=""):
    A = Asm()
    name = "k1_kernel"
    kernel_begin(A, name)
    A("s_cmp_ge_u32 s2, 256")
    A("s_cbranch_scc1 K1_END")
    ST = Stamps(A, stamps)
    if stamps:
        A("s_memtime s[88:89]"); A("s_memrealtime s[92:93]")
    def end(typ):
        if stamps:
            A("s_waitcnt vmcnt(0)")
            ST(6); ST(8, real=True)
            A("v_writelane_b32 v31, s88, 0"); A("v_writelane_b32 v31, s92, 7")
            ST.flush(54, "s3", "v2")
        A("s_endpgm")
    k1_body(A, ST, sc, end)
    A.label("K1_END")
    A("s_endpgm")
    return name, A.text(), kernel_desc(name, 512, 102, 256), (256, 256, 163840)
```

```python
MB = 1 << 20
KV_OFF   = 0
KV_SZ    = 32 * MB
XN_OFF   = 32 * MB
XN_SZ    = 64 * 28 * 1024
WQ_OFF   = 34 * MB
WQ_SZ    = 128 * 28 * 1024
WO_OFF   = 38 * MB
WO_SZ    = 14 * 256 * 1024
W1_OFF   = 42 * MB
W1_SZ    = 56 * 28 * 1024
W2_OFF   = 44 * MB
W2_SZ    = 14 * 112 * 1024
CTX_OFF  = 46 * MB
CTX_SZ   = 16 * MB
H_OFF    = 62 * MB
H_SZ     = 64 * 28 * 1024
HS_OFF   = 64 * MB
HS_SZ    = 2048 * 14 * 8
H1_OFF   = 65 * MB
H1_SZ    = 64 * 112 * 1024
WS_USED  = 73 * MB
FLAG_OFF = 74 * MB
FLAG_SZ  = 8192
F_SA, F_SB, F_KV, F_CTX, F_H, F_H1 = 0, 256, 512, 768, 1280, 1536
WS_USED  = 75 * MB
P_OFF    = 96 * MB
P_SZ     = 16 * 64 * 28 * 1024
```

```python
from common import *
from k1b import rl_setup, rl_reads
import os
CSC = math.log2(math.e) / 16.0
TTHR = 8.0
BIG = 2.0 ** 100
SC = " sc1"
SPIN = 1 << 16

class G:
    pass

def emit(g, items):
    for x in items:
        if isinstance(x, tuple): g.A(x[0]); g.vm.issue(x[1])
        elif callable(x): x()
        else: g.A(x)

def poll(g, vdst, voff, soff, n4=False, name=None):
    A = g.A
    L = A.newlabel("POLL")
    A(f"s_mov_b32 s87, 0")
    A.label(L)
    if n4:
        A(f"buffer_load_dwordx4 {v(vdst,4)}, {voff}, s[88:91], {soff} offen sc1")
        A("s_waitcnt vmcnt(0)")
        A(f"v_and_b32 v{vdst}, v{vdst}, v{vdst+1}")
        A(f"v_and_b32 v{vdst+2}, v{vdst+2}, v{vdst+3}")
        A(f"v_and_b32 v{vdst}, v{vdst}, v{vdst+2}")
    else:
        A(f"buffer_load_dword v{vdst}, {voff}, s[88:91], {soff} offen sc1")
        A("s_waitcnt vmcnt(0)")
    A(f"v_cmp_ne_u32 vcc, 1, v{vdst}")
    A(f"s_cbranch_vccz {L}_OK")
    A("s_sleep 1")
    A("s_add_u32 s87, s87, 1")
    A(f"s_cmp_lt_u32 s87, {SPIN}")
    A(f"s_cbranch_scc1 {L}")
    A.label(L + "_OK")
    g.vm.ops = []

def set_flag(g, soff_bytes):
    A = g.A
    L = A.newlabel("SETF")
    A("s_cmp_lg_u32 s3, 0")
    A(f"s_cbranch_scc1 {L}")
    A("s_mov_b64 exec, 1")
    A(f"buffer_store_dword v30, v29, s[88:91], {soff_bytes} offen sc1")
    A("s_mov_b64 exec, -1")
    A.label(L)

def phaseA(g):
    A, ST, vm = g.A, g.ST, g.vm
    A("s_load_dwordx16 s[36:51], s[0:1], 0")
    A("s_load_dwordx2 s[52:53], s[0:1], 64")
    A("s_load_dwordx4 s[92:95], s[0:1], 80")
    A("v_lshrrev_b32 v1, 6, v0")
    A("v_and_b32 v2, 63, v0")
    A("v_readfirstlane_b32 s3, v1")
    ST.init()
    A("s_and_b32 s4, s2, 7")
    A("s_lshr_b32 s5, s2, 3")
    A("s_and_b32 s6, s5, 7")
    A("s_lshr_b32 s5, s5, 3")
    A("s_lshr_b32 s7, s5, 1")
    A("s_and_b32 s5, s5, 1")
    A("s_lshl_b32 s4, s4, 1")
    A("s_add_u32 s4, s4, s5")
    A("v_lshrrev_b32 v3, 2, v2")
    A("v_lshlrev_b32 v3, 11, v3")
    A("v_and_b32 v4, 3, v2")
    A("v_lshl_add_u32 v3, v4, 4, v3")
    A("s_lshl_b32 s56, s6, 19")
    A("s_lshl_b32 s57, s3, 17")
    A("s_add_u32 s56, s56, s57")
    A("v_add_u32 v8, s56, v3")
    A("v_xor_b32 v9, 32, v8")
    A(f"v_add_u32 v9, {32768-1024}, v9")
    A(f"v_add_u32 v10, {2*(32768-1024)}, v8")
    A(f"v_add_u32 v11, {2*(32768-1024)}, v9")
    A("v_lshrrev_b32 v3, 5, v2")
    A("v_and_b32 v4, 31, v2")
    A("s_and_b32 s57, s3, 1")
    A("v_xor_b32 v4, s57, v4")
    A("v_lshlrev_b32 v5, 2, v3")
    A("v_xor_b32 v4, v4, v5")
    A("v_lshlrev_b32 v4, 4, v4")
    A("v_lshl_add_u32 v4, v3, 13, v4")
    A("s_lshl_b32 s56, s4, 9")
    A("s_lshl_b32 s57, s3, 16")
    A("s_add_u32 s56, s56, s57")
    A("v_add_u32 v12, s56, v4")
    A("v_xor_b32 v13, 128, v12")
    A(f"v_add_u32 v13, {16384-1024}, v13")
    A(f"v_add_u32 v14, {2*(16384-1024)}, v12")
    A(f"v_add_u32 v15, {2*(16384-1024)}, v13")
    A("s_lshl_b32 s64, s3, 12")
    A("s_mov_b32 s65, 0")
    A("s_mov_b32 s66, 0")
    A("s_waitcnt lgkmcnt(0)")
    A("s_mov_b32 s54, s94"); A("s_mov_b32 s55, s95")
    srd(A, 8, 38, 2048*1024*2)
    A("s_cmp_eq_u32 s7, 0")
    A("s_cselect_b32 s12, s42, s44")
    A("s_cselect_b32 s13, s43, s45")
    A("s_and_b32 s13, s13, 0xffff")
    A(f"s_mov_b32 s14, {1024*4096*2:#x}")
    A("s_mov_b32 s15, 0x00020000")
    def dma(stage):
        slot = stage % 4
        out = [f"s_add_u32 m0, s64, {slot*16384}", "s_nop 0"]
        for i in range(4):
            out.append((f"buffer_load_dwordx4 v{8+i}, s[8:11], s65 offen offset:{1024*i} lds", ("d", stage)))
        out += [f"s_add_u32 m0, s64, {65536+slot*16384}", "s_add_u32 s65, s65, 64"]
        for i in range(4):
            out.append((f"buffer_load_dwordx4 v{12+i}, s[12:15], s66 offen offset:{1024*i} lds", ("d", stage)))
        out.append("s_add_u32 s66, s66, 262144")
        return out
    emit(g, dma(0)); emit(g, dma(1))
    ST(1)
    ws_srd(A, 88, 54, FLAG_OFF, FLAG_SZ)
    A("v_mov_b32 v29, 0")
    A("v_mov_b32 v30, 1")
    A("s_cmp_lg_u32 s2, 0")
    A("s_cbranch_scc1 NOZERO")
    A("v_lshlrev_b32 v3, 5, v0")
    for r in range(4): A(f"v_mov_b32 v{32+r}, 0")
    A("buffer_store_dwordx4 v[32:35], v3, s[88:91], 0 offen sc1")
    A("buffer_store_dwordx4 v[32:35], v3, s[88:91], 0 offen offset:16 sc1")
    A("s_waitcnt vmcnt(0)")
    A("s_barrier")
    A("s_cmp_lg_u32 s3, 0")
    A("s_cbranch_scc1 NOZERO")
    A("s_mov_b64 exec, 1")
    A("global_store_dword v29, v30, s[92:93] sc1")
    A("s_mov_b64 exec, -1")
    A.label("NOZERO")
    ws_srd(A, 16, 54, KV_OFF, KV_SZ)
    srd(A, 20, 36, 2048*448*2)
    ws_srd(A, 24, 54, XN_OFF, XN_SZ)
    A("v_and_b32 v3, 31, v2")
    A("v_lshrrev_b32 v4, 5, v2")
    A("s_lshl_b32 s56, s2, 3")
    A("s_lshl_b32 s57, s3, 1")
    A("s_add_u32 s56, s56, s57")
    A("v_add_u32 v4, s56, v4")
    A("v_mul_u32_u24 v25, 896, v4")
    A("v_lshl_add_u32 v25, v3, 5, v25")
    A("v_lshrrev_b32 v5, 5, v4")
    A("v_mul_u32_u24 v26, 28672, v5")
    A("v_lshl_add_u32 v26, v3, 10, v26")
    A("v_and_b32 v5, 31, v4")
    A("v_lshl_add_u32 v26, v5, 4, v26")
    A("v_cmp_gt_u32 vcc, 28, v3")
    A("v_mov_b32 v5, 0x7ffffff0")
    A("s_nop 0")
    A("v_cndmask_b32 v25, v5, v25, vcc")
    A("v_cndmask_b32 v26, v5, v26, vcc")
    A("v_cndmask_b32 v7, 0, 1.0, vcc")
    emit(g, [("buffer_load_dwordx4 v[32:35], v25, s[20:23], 0 offen", "ln"), ("buffer_load_dwordx4 v[36:39], v25, s[20:23], 0 offen offset:16", "ln")])
    A("s_and_b32 s67, s3, 1")
    A("s_lshr_b32 s68, s3, 1")
    A("v_and_b32 v3, 15, v2")
    A("v_lshrrev_b32 v4, 4, v2")
    A("v_lshrrev_b32 v5, 3, v3")
    A("v_and_b32 v6, 7, v3")
    A("v_lshl_add_u32 v6, v5, 4, v6")
    A("v_lshlrev_b32 v5, 1, v5")
    A("v_xor_b32 v5, v4, v5")
    A("v_lshlrev_b32 v16, 6, v6")
    A("v_lshl_add_u32 v16, v5, 4, v16")
    A("s_lshl_b32 s56, s67, 13")
    A("v_add_u32 v16, s56, v16")
    A("v_lshlrev_b32 v6, 4, v6")
    A("v_lshrrev_b32 v5, 1, v4")
    A("v_lshl_add_u32 v6, v5, 10, v6")
    A("v_and_b32 v5, 1, v4")
    A("v_lshl_add_u32 v6, v5, 9, v6")
    A("v_lshrrev_b32 v60, 2, v3")
    A("v_lshl_add_u32 v61, v4, 3, v60")
    A("v_lshlrev_b32 v61, 9, v61")
    A("v_and_b32 v62, 1, v3")
    A("v_lshl_add_u32 v61, v62, 3, v61")
    A("s_lshl_b32 s56, s68, 8")
    A("s_add_u32 s56, s56, 65536")
    A("v_add_u32 v61, s56, v61")
    A("v_lshl_or_b32 v60, v60, 2, v5")
    A("v_and_b32 v62, 2, v3")
    A("v_xor_b32 v60, v60, v62")
    for j in range(8):
        A(f"v_xor_b32 v62, {4*(j>>1)+(j&1)}, v60")
        A(f"v_lshl_add_u32 v{17+j}, v62, 4, v61")
    A("s_lshl_b32 s86, s3, 13")
    A("s_add_u32 s86, s86, 131072")
    class AP:
        def __call__(self, t): A(t.replace("s91", "s86"))
    A("s_lshl_b32 s69, s2, 2")
    A("s_add_u32 s69, s69, s3")
    A("s_add_u32 s70, s69, 1024")
    rl_setup(AP(), "s69", 28, 32, "s71", "s72", "s73", "v27", "v28", "v3", "v2", t="s74")
    rl_setup(AP(), "s70", 76, 80, "s84", "s85", "s75", "v1", "v0", "v4", "v2", t="s70")
    A("v_lshlrev_b32 v5, 4, v2")
    A("s_add_u32 s73, s73, 1024"); A("s_add_u32 s75, s75, 1024")
    ln = [lambda: A(f"s_waitcnt vmcnt({vm.newer(lambda t: t == 'ln')})")]
    for i in range(8):
        ln += [f"v_lshlrev_b32 v{40+2*i}, 16, v{32+i}", f"v_and_b32 v{41+2*i}, 0xffff0000, v{32+i}"]
    ln += ["v_add_f32 v56, v40, v41"] + [f"v_add_f32 v56, v56, v{40+i}" for i in range(2, 16)]
    ln += half_sum_l("v56", "v57") + ["v_mul_f32 v56, 0x3b124925, v56", "v_mov_b32 v58, 0"]
    for i in range(16):
        ln += [f"v_sub_f32 v57, v{40+i}, v56", "v_fmac_f32 v58, v57, v57"]
    ln += ["v_mul_f32 v58, v58, v7"] + half_sum_l("v58", "v57") + ["v_mul_f32 v58, 0x3b124925, v58"]
    ln += bf16_round_l("v56", "v56") + bf16_round_l("v58", "v58") + ["v_add_f32 v58, 0x3727c5ac, v58"] + bf16_round_l("v58", "v58")
    ln += ["v_sqrt_f32 v58, v58", "s_nop 0"] + bf16_round_l("v58", "v58") + ["v_rcp_f32 v58, v58"]
    ln += [f"v_sub_f32 v{40+i}, v{40+i}, v56" for i in range(16)]
    ln += [f"v_cvt_pk_bf16_f32 v{32+i}, v{40+2*i}, v{41+2*i}" for i in range(8)]
    for i in range(8):
        ln += [f"v_lshlrev_b32 v{40+2*i}, 16, v{32+i}", f"v_and_b32 v{41+2*i}, 0xffff0000, v{32+i}"]
    ln += [f"v_mul_f32 v{40+i}, v{40+i}, v58" for i in range(16)]
    ln += [f"v_cvt_pk_bf16_f32 v{32+i}, v{40+2*i}, v{41+2*i}" for i in range(8)]
    ln += [(f"buffer_store_dwordx4 v[32:35], v26, s[24:27], 0 offen{SC}", "sA"), (f"buffer_store_dwordx4 v[36:39], v26, s[24:27], 0 offen offset:512{SC}", "sA")]
    SETS = [64, 128]
    def reads(stage, st_):
        slot = stage % 4
        b = SETS[st_]
        ra = [f"ds_read_b128 {v(b+4*i,4)}, v16 offset:{slot*16384 + (32*(i>>1)+8*(i&1))*64}" for i in range(8)]
        rw = [[f"ds_read_b64_tr_b16 {v(b+32+4*j+2*t,2)}, v{17+j} offset:{slot*16384 + 2048*t}" for t in range(2)] for j in range(8)]
        out = []
        for i in range(8): out += [ra[i]] + rw[i]
        return out
    def mf(typ, i, j, st_, first=False):
        b = SETS[st_]
        acc = a((i*8+j)*4, 4)
        c = "0" if first else acc
        ca, w_ = v(b+4*i, 4), v(b+32+4*j, 4)
        return f"v_mfma_f32_16x16x32_bf16 {acc}, {w_}, {ca}, {c}" if typ == 0 else f"v_mfma_f32_16x16x32_bf16 {acc}, {ca}, {w_}, {c}"
    A("s_lshr_b32 s56, s2, 3")
    A("s_and_b32 s5, s56, 15")
    A("s_lshl_b32 s57, s5, 1")
    A("s_add_u32 s58, s57, s3")
    A("s_sub_u32 s59, 60, s57")
    A("s_add_u32 s59, s59, s3")
    A("s_cmp_lt_u32 s3, 2")
    A("s_cselect_b32 s58, s58, s59")
    A("s_mul_i32 s69, s58, 28672")
    XCH = [131072, 147456, 0, 65536, 16384, 81920, 32768]
    g.XCH = XCH
    def xdma(c):
        out = [f"s_add_u32 m0, s64, {XCH[c]}", f"s_add_u32 s56, s69, {c*4096}"]
        out += [(f"buffer_load_dwordx4 v5, s[24:27], s56 offen offset:{1024*i}{SC} lds", ("x", c)) for i in range(4)]
        return out
    def rdma(sb, ssrc, sstep, vs, i, tag):
        return [f"s_add_u32 m0, s86, {i*1024}", "s_nop 0", (f"buffer_load_dwordx4 {vs}, s[{sb}:{sb+3}], {ssrc} offen lds", (tag, i)), f"s_add_u32 {ssrc}, {ssrc}, {sstep}"]
    def rrd(vd, vd2, vb, f, tag):
        ks, nb = f >> 1, f & 1
        return [lambda: A(f"s_waitcnt vmcnt({vm.newer(lambda t: t == (tag, 2*ks+1))})"),
                f"ds_read_b64_tr_b16 {v(vb+4*(f%4),2)}, {vd} offset:{ks*2048+nb*64}", f"ds_read_b64_tr_b16 {v(vb+4*(f%4)+2,2)}, {vd2} offset:{ks*2048+nb*64}"]
    def rst(sb, sd, sd2, vb, f, tag):
        ks, nb = f >> 1, f & 1
        return [(f"buffer_store_dwordx4 {v(vb+4*(f%4),4)}, v5, s[{sb}:{sb+3}], {sd2 if nb else sd} offen offset:{ks*1024}{SC}", tag)]
    vm0 = list(vm.ops)
    A("s_cmp_eq_u32 s7, 1")
    A("s_cbranch_scc1 PA_V")
    for typ in (0, 1):
        if typ: A.label("PA_V")
        vm.ops = list(vm0)
        A(f"s_waitcnt vmcnt({vm.newer(lambda t: t == ('d', 0))})")
        A("s_barrier")
        ST(2)
        emit(g, reads(0, 0))
        A("s_waitcnt lgkmcnt(0)")
        carry = []
        for s_ in range(32):
            sched = {}
            g0 = 0
            if s_ == 0:
                spread(sched, dma(2) + dma(3), 0, 23); g0 = 24
            def w(s_=s_):
                n = vm.newer(lambda t: t == ("d", s_ + 1))
                if s_ == 17: n = min(n, vm.newer(lambda t: t == "sA"))
                if s_ == 25: n = min(n, vm.newer(lambda t: t == "sB"))
                A(f"s_waitcnt vmcnt({n})")
            if s_ < 31:
                sched.setdefault(g0, []).extend([w, "s_barrier"])
                spread(sched, reads(s_ + 1, (s_ + 1) % 2), g0 + 1, 54)
            if s_ == 31: sched.setdefault(0, []).append("s_barrier")
            if s_ + 4 < 32: spread(sched, dma(s_ + 4), g0 + 2, 48)
            late = []
            if 1 <= s_ <= 8: late += rdma(28, "s71", "s73", "v27", s_ - 1, "rA")
            if 9 <= s_ <= 16: late += rdma(76, "s84", "s75", "v1", s_ - 9, "rB")
            if late: spread(sched, late, 52, 60)
            early = []
            if 6 <= s_ <= 13: early += rst(32, "s72", "s74", 192, s_ - 6, "sA")
            if 14 <= s_ <= 21: early += rst(80, "s85", "s70", 208, s_ - 14, "sB")
            if 5 <= s_ <= 12: early += rrd("v28", "v3", 192, s_ - 5, "rA")
            if 13 <= s_ <= 20: early += rrd("v0", "v4", 208, s_ - 13, "rB")
            if early: spread(sched, early, 4, 40)
            if s_ == 17: sched[g0].append(lambda: (A("s_lshl_b32 s56, s2, 2"), set_flag(g, "s56")))
            if s_ == 25: sched[g0].append(lambda: (A("s_lshl_b32 s56, s2, 2"), A(f"s_add_u32 s56, s56, {F_SB*4}"), set_flag(g, "s56")))
            if s_ == 1: carry += ln
            if s_ == 10:
                sched.setdefault(50, []).append(("global_load_dword v59, v29, s[92:93] sc1", "dbg"))
            if s_ == 13:
                def chk_dbg():
                    L = A.newlabel("DBG")
                    A(f"s_waitcnt vmcnt({vm.newer(lambda t: t == 'dbg')})")
                    A("s_mov_b32 s87, 0")
                    A.label(L)
                    A("v_cmp_ne_u32 vcc, 1, v59")
                    A(f"s_cbranch_vccz {L}_OK")
                    A("s_sleep 1")
                    A("global_load_dword v59, v29, s[92:93] sc1")
                    A("s_waitcnt vmcnt(0)")
                    A("s_add_u32 s87, s87, 1")
                    A(f"s_cmp_lt_u32 s87, {SPIN}")
                    A(f"s_cbranch_scc1 {L}")
                    A.label(L + "_OK")
                sched.setdefault(50, []).append(chk_dbg)
            if s_ == 21:
                sched.setdefault(50, []).append((f"buffer_load_dwordx4 v[56:59], v5, s[88:91], 0 offen offset:{F_SA*4} sc1", "pf"))
            if s_ == 23:
                def chk_sa():
                    L = A.newlabel("PSA")
                    A(f"s_waitcnt vmcnt({vm.newer(lambda t: t == 'pf')})")
                    A("s_mov_b32 s87, 0")
                    A.label(L)
                    A("v_and_b32 v56, v56, v57"); A("v_and_b32 v58, v58, v59"); A("v_and_b32 v56, v56, v58")
                    A("v_cmp_ne_u32 vcc, 1, v56")
                    A(f"s_cbranch_vccz {L}_OK")
                    A("s_sleep 1")
                    A(f"buffer_load_dwordx4 v[56:59], v5, s[88:91], 0 offen offset:{F_SA*4} sc1")
                    A("s_waitcnt vmcnt(0)")
                    A("s_add_u32 s87, s87, 1")
                    A(f"s_cmp_lt_u32 s87, {SPIN}")
                    A(f"s_cbranch_scc1 {L}")
                    A.label(L + "_OK")
                sched.setdefault(50, []).append(chk_sa)
            xc = {24: [0], 25: [1], 28: [2, 3], 29: [4, 5], 30: [6]}.get(s_, [])
            if xc:
                items = []
                for c in xc: items += xdma(c)
                spread(sched, items, 50 if s_ < 28 else 4, 62)
            if s_ == 30:
                def wq_setup():
                    ws_srd(A, 12, 54, WQ_OFF, WQ_SZ)
                    A("s_and_b32 s56, s2, 7"); A("s_lshr_b32 s57, s2, 7"); A("s_lshl_b32 s56, s56, 1"); A("s_add_u32 s58, s56, s57")
                    A("s_lshl_b32 s56, s58, 3"); A("s_lshl_b32 s57, s3, 1"); A("s_add_u32 s56, s56, s57")
                    A("s_mul_i32 s60, s56, 28672"); A("s_add_u32 s61, s60, 28672")
                sched.setdefault(2, []).append(wq_setup)
            if s_ == 31:
                items = []
                for ks in range(4): items += g.wload(ks)
                spread(sched, items, 2, 40)
            ms = [mf(typ, i, j, s_ % 2, first=(s_ == 0)) for i in range(8) for j in range(8)]
            run_sched(A, ms, sched, carry, 2, vm)
            if s_ < 31: A("s_waitcnt lgkmcnt(0)")
            if s_ in (7, 15, 23): ST(3 + s_ // 8)
        assert not carry
        ST(6)
        phaseB(g, typ)
        if typ == 0: A("s_branch PB_JOIN")
    A.label("PB_JOIN")

def phaseB(g, typ):
    A, ST, vm = g.A, g.ST, g.vm
    A("s_lshl_b32 s70, s4, 21")
    A("s_lshl_b32 s71, s6, 18")
    A("s_add_u32 s70, s70, s71")
    A("s_lshl_b32 s71, s67, 17")
    A("s_add_u32 s70, s70, s71")
    A("s_lshl_b32 s71, s68, 13")
    A("s_add_u32 s70, s70, s71")
    if typ: A("s_add_u32 s70, s70, 16384")
    for kb in range(4):
        A(f"s_add_u32 s{72+2*kb}, s70, {kb*32768}")
        A(f"s_add_u32 s{73+2*kb}, s70, {kb*32768+4096}")
    epi = []
    cnt = 0
    for u in range(8):
        for pp in range(4):
            if typ == 0: i, j0 = u, 2*pp; t0, t1 = (i*8+j0)*4, (i*8+j0+1)*4; kb, odd, db = i >> 1, i & 1, pp
            else: j, i0 = u, 2*pp; t0, t1 = (i0*8+j)*4, ((i0+1)*8+j)*4; kb, odd, db = pp, j & 1, j >> 1
            t = 32 + (cnt % 2) * 16; cnt += 1
            epi += [f"v_accvgpr_read_b32 v{t+r}, a{t0+r}" for r in range(4)]
            epi += [f"v_accvgpr_read_b32 v{t+4+r}, a{t1+r}" for r in range(4)]
            epi += [f"v_cvt_pk_bf16_f32 v{t+8+r}, v{t+2*r}, v{t+2*r+1}" for r in range(4)]
            epi.append((f"buffer_store_dwordx4 {v(t+8,4)}, v6, s[16:19], s{72+2*kb+(db>>1)} offen offset:{(db&1)*2048 + odd*128}{SC}", "kv"))
    QACC = 96
    XF = [64, 80]
    A("v_add_u32 v7, 0x10000, v5"); A("v_add_u32 v8, 0x20000, v5")
    def xreads(ks):
        b = XF[ks % 2]
        out = []
        for q in range(4):
            o = g.XCH[ks // 4] + q * 4096 + (ks % 4) * 1024
            out.append(f"ds_read_b128 {v(b+4*q,4)}, {['v5','v7','v8'][o >> 16]} offset:{o & 0xffff}")
        return out
    A(f"s_waitcnt vmcnt({vm.newer(lambda t: t[0] == 'x')})")
    A("s_barrier")
    emit(g, xreads(0))
    EPB = int(os.environ.get("EPB", "3"))
    for ks in range(28):
        sched = {}
        def w(ks=ks): A(f"s_waitcnt vmcnt({vm.newer(lambda t: t == ('w', ks))}) lgkmcnt(0)")
        w()
        if ks + 1 < 28: spread(sched, xreads(ks + 1), 0, 3)
        ms = []
        for q in range(4):
            for d in range(2):
                acc = v(QACC + (d*4+q)*16, 16)
                c = "0" if ks == 0 else acc
                ms.append(f"v_mfma_f32_32x32x16_bf16 {acc}, {v(224+(ks%4)*8+4*d,4)}, {v(XF[ks%2]+4*q,4)}, {c}")
        run_sched(A, ms, sched, epi, EPB, vm)
        if ks + 4 < 28: emit(g, g.wload(ks + 4))
    assert not epi, len(epi)
    ST(7)
    A("s_waitcnt vmcnt(0)")
    A("s_barrier")
    A("s_lshl_b32 s56, s4, 6"); A("s_lshl_b32 s57, s7, 5"); A("s_add_u32 s56, s56, s57"); A("s_lshl_b32 s57, s6, 2"); A("s_add_u32 s56, s56, s57")
    A(f"s_add_u32 s56, s56, {F_KV*4}")
    set_flag(g, "s56")

def wload_factory(g):
    def wload(ks):
        return [f"s_add_u32 s62, s60, {ks*1024}",
                (f"buffer_load_dwordx4 {v(224+(ks%4)*8,4)}, v5, s[12:15], s62 offen{SC}", ("w", ks)),
                f"s_add_u32 s62, s61, {ks*1024}",
                (f"buffer_load_dwordx4 {v(224+(ks%4)*8+4,4)}, v5, s[12:15], s62 offen{SC}", ("w", ks))]
    return wload

def phaseC(g):
    A, ST, vm = g.A, g.ST, g.vm
    VL16 = "v5"
    MC = ["v8", "v9"]; THR = ["v10", "v11"]; LS = ["v12", "v13"]; FAC = ["v14", "v15"]; TM = ["v16", "v17"]; MR = ["v18", "v19"]
    T0, T1, T2 = "v4", "v6", "v7"
    SEL = [20, 24]
    VQROW, VSTAT, VSTR = "v0", "v1", "v3"
    SB = [32, 64]
    WIN = 128
    QA = 0
    KV = "s[16:19]"
    def Oreg(gq, dbl, qb):
        b = (gq * 2 + dbl) * 2 + qb
        if b < 6: return ("a", 160 + b * 16)
        return ("v", 96 + (b - 6) * 16)
    def OR(gq, dbl, qb):
        f, b = Oreg(gq, dbl, qb)
        return (a if f == "a" else v)(b, 16)
    allO = [(gq, d, q) for gq in range(4) for d in range(2) for q in range(2)]
    QACC = 96
    A("s_mov_b32 s4, s58")
    A("s_lshl_b32 s45, s3, 12")
    A(f"v_add_u32 {T0}, s45, {VL16}")
    for q in range(4):
        for d in range(2):
            b = QACC + (d*4+q)*16
            for r in range(8):
                A(f"v_cvt_pk_bf16_f32 v{b+r}, v{b+2*r}, v{b+2*r+1}")
            for s_ in range(2):
                A(f"ds_write_b128 {T0}, {v(b+4*s_,4)} offset:{q*16384 + (2*d+s_)*1024}")
    ws_srd(A, 20, 54, CTX_OFF, CTX_SZ)
    for gq in range(4):
        A(f"s_add_u32 s{64+gq}, s3, {gq}")
        A(f"s_and_b32 s{64+gq}, s{64+gq}, 3")
        A(f"s_lshl_b32 s{64+gq}, s{64+gq}, 12")
    A("v_and_b32 v32, 31, v2")
    A("v_lshrrev_b32 v33, 5, v2")
    A(f"v_lshlrev_b32 {VSTR}, 5, v32")
    A(f"v_add_u32 {VSTR}, 0x8000, {VSTR}")
    A("s_lshl_b32 s45, s3, 3")
    A(f"v_add_u32 {VSTAT}, s45, {VSTR}")
    A("v_lshlrev_b32 v34, 2, v33")
    A("v_sub_u32 v34, v32, v34")
    A(f"v_cvt_f32_i32 {VQROW}, v34")
    A(f"v_add_f32 {VQROW}, 0.5, {VQROW}")
    A("v_mov_b32 v35, 0x3f80")
    A("v_mov_b32 v36, 0x3f800000")
    for s_ in range(2):
        for p in range(4):
            e0 = 2*p
            c0 = 16*s_ + 8*(e0 >> 2) + (e0 & 3)
            A(f"v_cmp_eq_u32 vcc, {c0}, v34")
            A(f"v_cmp_eq_u32 s[50:51], {c0+1}, v34")
            A("s_nop 1")
            A(f"v_cndmask_b32 v{SEL[s_]+p}, 0, v35, vcc")
            A(f"v_cndmask_b32 v{SEL[s_]+p}, v{SEL[s_]+p}, v36, s[50:51]")
    A(f"s_mov_b32 s68, {f32bits(CSC):#x}")
    A(f"s_mov_b32 s69, {f32bits(TTHR/CSC):#x}")
    A("s_mov_b32 s34, 0")
    A("s_sub_u32 s6, 31, s5")
    poll(g, 36, VL16, f"{F_SB*4:#x}".replace("0x400", "s45") if False else "s45", n4=True) if False else None
    A(f"s_mov_b32 s45, {F_SB*4}")
    poll(g, 36, VL16, "s45", n4=True)
    A("v_and_b32 v32, 15, v2")
    A("v_lshlrev_b32 v32, 2, v32")
    A("s_lshl_b32 s45, s4, 6")
    A(f"s_add_u32 s45, s45, {F_KV*4}")
    poll(g, 36, "v32", "s45")
    ST(8)
    A("s_lshl_b32 s48, s4, 21")
    A("s_lshl_b32 s49, s3, 15")
    A("s_add_u32 s49, s49, s48")
    for f in range(8):
        if f % 4 == 0: A(f"s_add_u32 s45, s49, {(f//4)*4096}")
        A(f"buffer_load_dwordx4 {a(WIN+4*f,4)}, {VL16}, {KV}, s45 offen offset:{(f%4)*1024}{SC}")
    A("s_waitcnt lgkmcnt(0)")
    A("s_barrier")
    A.label("PC_PHASE")
    A("s_cmp_eq_u32 s34, 0")
    A("s_cselect_b32 s45, 0x8000, 0")
    A(f"v_add_u32 {T0}, s45, {VL16}")
    for i in range(32):
        A(f"ds_read_b128 {a(QA+4*i,4)}, {T0} offset:{i*1024}")
    A("s_lshl_b32 s7, s6, 1")
    A("s_add_u32 s7, s7, 5")
    A("s_sub_u32 s7, s7, s3")
    A("s_lshr_b32 s7, s7, 2")
    A("s_mov_b32 s35, s49")
    A("s_mov_b32 s40, s3")
    A("s_lshl_b32 s41, s6, 1")
    A("s_mov_b32 s42, 0")
    A(f"v_mov_b32 {LS[0]}, 0"); A(f"v_mov_b32 {LS[1]}, 0")
    A("s_waitcnt lgkmcnt(0)")
    A("s_barrier")
    A("s_cmp_eq_u32 s7, 0")
    A("s_cbranch_scc1 PC_EMPTY")
    def zeroO():
        out = []
        for (gq, d, q) in allO:
            f, b = Oreg(gq, d, q)
            for r in range(16):
                out.append(f"v_mov_b32 v{b+r}, 0" if f == "v" else f"v_accvgpr_write_b32 a{b+r}, 0")
        return out
    def stream(items, fillers, budget, first_gap=0):
        fi = 0
        for gi, (pre, m, post) in enumerate(items):
            for x in pre: A(x)
            A(m)
            for x in post: A(x)
            k = len(post)//2
            while gi >= first_gap and k < budget and fi < len(fillers):
                x = fillers[fi]; fi += 1
                if callable(x): x(); k += 2
                else: A(x); k += cost(x)
        while fi < len(fillers):
            x = fillers[fi]; fi += 1
            if callable(x): x()
            else: A(x)
    def ld(sl, soff, f): return f"buffer_load_dwordx4 {a(sl,4)}, {VL16}, {KV}, {soff} offen offset:{(f%4)*1024}{SC}"
    def X_items(p, loads2):
        items = []
        for f in range(16):
            sl = WIN + 4 * (f % 8)
            for q in range(2):
                acc = v(SB[p] + q*16, 16)
                c = "0" if f == 0 else acc
                pre = ["s_waitcnt vmcnt(7)"] if q == 0 else []
                post = []
                if q == 1:
                    if f < 8:
                        if f % 4 == 0: post.append(f"s_add_u32 s45, s36, {(2+f//4)*4096}")
                        post.append(ld(sl, "s45", f))
                    else: post.append(ld(sl, loads2[(f-8)//4], f))
                items.append((pre, f"v_mfma_f32_32x32x16_bf16 {acc}, {a(sl,4)}, {a(QA+(q*16+f)*4,4)}, {c}", post))
        return items
    def Y_items(p, loads2):
        items = []
        for f in range(16):
            sl = WIN + 4 * (f % 8)
            gq, d, s_ = f // 4, (f // 2) % 2, f % 2
            for q in range(2):
                acc = OR(gq, d, q)
                pre = ["s_waitcnt vmcnt(7)"] if q == 0 else []
                post = []
                if q == 1:
                    if f < 8:
                        if f % 4 == 0: post.append(f"s_add_u32 s45, s37, s{64+2+f//4}")
                        post.append(ld(sl, "s45", f))
                    else: post.append(ld(sl, loads2[(f-8)//4], f))
                items.append((pre, f"v_mfma_f32_32x32x16_bf16 {acc}, {a(sl,4)}, {v(SB[p]+q*16+4*s_,4)}, {acc}", post))
        return items
    def expq(p, q):
        b = SB[p] + q*16
        out = []
        def post(k):
            return [f"v_add_f32 {LS[q]}, {LS[q]}, v{b+2*k}", f"v_add_f32 {LS[q]}, {LS[q]}, v{b+2*k+1}",
                    f"v_cvt_pk_bf16_f32 v{b+k}, v{b+2*k}, v{b+2*k+1}"]
        for k in range(8):
            out.append(f"v_fma_f32 v{b+2*k}, v{b+2*k}, s68, -{MC[q]}")
            out.append(f"v_fma_f32 v{b+2*k+1}, v{b+2*k+1}, s68, -{MC[q]}")
            out.append(f"v_exp_f32 v{b+2*k}, v{b+2*k}")
            out.append(f"v_exp_f32 v{b+2*k+1}, v{b+2*k+1}")
            if k > 0: out += post(k-1)
        out.append("s_nop 0")
        out += post(7)
        return out
    def maxq(p, q):
        b = SB[p] + q*16
        out = [f"v_max3_f32 {TM[q]}, v{b}, v{b+1}, v{b+2}"]
        for r in range(3, 15, 2):
            out.append(f"v_max3_f32 {TM[q]}, {TM[q]}, v{b+r}, v{b+r+1}")
        out.append(f"v_max_f32 {TM[q]}, {TM[q]}, v{b+15}")
        return out
    def mask_code(p):
        A("s_lshl_b32 s63, s6, 1")
        A("s_sub_u32 s63, s63, s40")
        A("s_lshl_b32 s63, s63, 5")
        A(f"v_cvt_f32_i32 {T0}, s63")
        A(f"v_add_f32 {T0}, {T0}, {VQROW}")
        for q in range(2):
            A(f"v_mov_b32 {T1}, {T0}" if q == 0 else f"v_add_f32 {T1}, 0x42000000, {T0}")
            A(f"v_mul_f32 {T1}, {f32bits(BIG):#x}, {T1}")
            b = SB[p] + q*16
            for r in range(16):
                cr = 8*(r >> 2) + (r & 3)
                A(f"v_add_f32 {T2}, {f32bits(-cr*BIG):#x}, {T1}" if cr else f"v_mov_b32 {T2}, {T1}")
                A(f"v_min_f32 v{b+r}, v{b+r}, {T2}")
    def rescaleO():
        A("s_nop 7"); A("s_nop 7")
        for (gq, d, q) in allO:
            f, b = Oreg(gq, d, q)
            for r in range(16):
                if f == "v":
                    A(f"v_mul_f32 v{b+r}, v{b+r}, {FAC[q]}")
                else:
                    A(f"v_accvgpr_read_b32 {T0}, a{b+r}")
                    A(f"v_mul_f32 {T0}, {T0}, {FAC[q]}")
                    A(f"v_accvgpr_write_b32 a{b+r}, {T0}")
        A("s_nop 1")
    rare_blocks = []
    def P1(p, tag):
        def maskbr():
            A("s_cmp_ge_u32 s40, s41")
            A(f"s_cbranch_scc1 PC_MASK_{tag}")
            A.label(f"PC_MASKRET_{tag}")
        def chk():
            A(f"v_cmp_gt_f32 vcc, {TM[0]}, {THR[0]}")
            A(f"v_cmp_gt_f32 s[50:51], {TM[1]}, {THR[1]}")
            A("s_or_b64 s[50:51], vcc, s[50:51]")
            A(f"s_cbranch_scc1 PC_RARE_{tag}")
            A.label(f"PC_RARERET_{tag}")
        rare_blocks.append((p, tag))
        return [maskbr] + maxq(p, 0) + maxq(p, 1) + [chk, "s_add_u32 s40, s40, 4"] + expq(p, 0)
    A("s_mov_b32 s36, s35")
    A(f"s_add_u32 s43, s35, 131072")
    A(f"s_add_u32 s44, s35, {131072+4096}")
    A("s_add_u32 s45, s35, 16384")
    A("s_add_u32 s38, s45, s64")
    A("s_add_u32 s39, s45, s65")
    A("s_cmp_gt_u32 s7, 1")
    A("s_cselect_b32 s43, s43, s38")
    A("s_cselect_b32 s44, s44, s39")
    stream(X_items(0, ["s43", "s44"]), zeroO(), 8)
    A("s_nop 7"); A("s_nop 3")
    A("s_cmp_ge_u32 s40, s41")
    A("s_cbranch_scc0 PC_NOMASK0")
    mask_code(0)
    A.label("PC_NOMASK0")
    for x in maxq(0, 0) + maxq(0, 1): A(x)
    xhalf(A, "v_max_f32", TM[0], T0)
    xhalf(A, "v_max_f32", TM[1], T1)
    A("s_branch PC_XCHG")
    A.label("PC_EMPTY")
    for x in zeroO(): A(x)
    A(f"v_mov_b32 {TM[0]}, {f32bits(-BIG):#x}")
    A(f"v_mov_b32 {TM[1]}, {f32bits(-BIG):#x}")
    A("s_waitcnt vmcnt(0)")
    A.label("PC_XCHG")
    A("s_lshl_b32 s45, s34, 12")
    A(f"v_add_u32 {T0}, s45, {VSTAT}")
    A(f"v_add_u32 {T1}, s45, {VSTR}")
    A(f"ds_write_b32 {T0}, {TM[0]}")
    A(f"ds_write_b32 {T0}, {TM[1]} offset:1024")
    A("s_waitcnt lgkmcnt(0)")
    A("s_barrier")
    for q in range(2):
        A(f"ds_read_b128 {v(SB[1]+q*8,4)}, {T1} offset:{q*1024}")
        A(f"ds_read_b128 {v(SB[1]+q*8+4,4)}, {T1} offset:{q*1024+16}")
    A("s_cmp_eq_u32 s34, 0")
    A("s_cbranch_scc1 PC_NOF")
    A("s_sub_u32 s45, 31, s5"); A("s_lshl_b32 s45, s45, 6"); A("s_lshl_b32 s43, s4, 2"); A("s_add_u32 s45, s45, s43")
    A(f"s_add_u32 s45, s45, {F_CTX*4}")
    set_flag(g, "s45")
    A.label("PC_NOF")
    A("s_waitcnt lgkmcnt(0)")
    for q in range(2):
        b = SB[1] + q*8
        A(f"v_max3_f32 {MR[q]}, v{b}, v{b+2}, v{b+4}")
        A(f"v_max_f32 {MR[q]}, {MR[q]}, v{b+6}")
        A(f"v_mul_f32 {MC[q]}, s68, {MR[q]}")
        A(f"v_add_f32 {THR[q]}, s69, {MR[q]}")
    A("s_cmp_eq_u32 s7, 0")
    A("s_cbranch_scc1 PC_MERGE")
    A("s_add_u32 s40, s40, 4")
    for x in expq(0, 0): A(x)
    A("s_cmp_eq_u32 s7, 1")
    A("s_cbranch_scc1 PC_TAIL0")
    A.label("PC_LOOP")
    for p in range(2):
        A("s_add_u32 s36, s35, 131072")
        A("s_add_u32 s37, s35, 16384")
        A("s_add_u32 s43, s37, s64")
        A("s_add_u32 s44, s37, s65")
        stream(X_items(p ^ 1, ["s43", "s44"]), expq(p, 1), 3)
        A("s_add_u32 s43, s35, 262144")
        A(f"s_add_u32 s44, s35, {262144+4096}")
        A(f"s_add_u32 s45, s35, {131072+16384}")
        A("s_add_u32 s38, s45, s64")
        A("s_add_u32 s39, s45, s65")
        A("s_cmp_gt_u32 s7, 2")
        A("s_cselect_b32 s43, s43, s38")
        A("s_cselect_b32 s44, s44, s39")
        stream(Y_items(p, ["s43", "s44"]), P1(p ^ 1, f"B{p}"), 4, first_gap=2)
        A("s_cmp_lg_u32 s42, 0")
        A(f"s_cbranch_scc1 PC_PEND_B{p}")
        A.label(f"PC_PENDRET_B{p}")
        A("s_add_u32 s35, s35, 131072")
        A("s_sub_u32 s7, s7, 1")
        A("s_cmp_eq_u32 s7, 1")
        A("s_cbranch_scc1 PC_TAIL1" if p == 0 else "s_cbranch_scc0 PC_LOOP")
    for p in range(2):
        A.label(f"PC_TAIL{p}")
        for x in expq(p, 1): A(x)
        A("s_add_u32 s37, s35, 16384")
        A("s_cmp_eq_u32 s34, 0")
        A(f"s_cselect_b32 s43, s49, {KV_SZ:#x}")
        A("s_add_u32 s44, s43, 4096")
        stream(Y_items(p, ["s43", "s44"]), [], 0)
        if p == 0: A("s_branch PC_MERGE")
    A.label("PC_MERGE")
    ST(9)
    xhalf(A, "v_add_f32", LS[0], T0)
    xhalf(A, "v_add_f32", LS[1], T1)
    A("s_lshl_b32 s45, s34, 12")
    A("s_add_u32 s45, s45, 2048")
    A(f"v_add_u32 {T0}, s45, {VSTAT}")
    A(f"v_add_u32 {T1}, s45, {VSTR}")
    for q in range(2):
        A(f"v_mov_b32 v{SB[1]+2*q}, {MR[q]}")
        A(f"v_mov_b32 v{SB[1]+2*q+1}, {LS[q]}")
        A(f"ds_write_b64 {T0}, {v(SB[1]+2*q,2)} offset:{q*1024}")
    A("s_waitcnt lgkmcnt(0)")
    A("s_barrier")
    for q in range(2):
        A(f"ds_read_b128 {v(SB[0]+q*8,4)}, {T1} offset:{q*1024}")
        A(f"ds_read_b128 {v(SB[0]+q*8+4,4)}, {T1} offset:{q*1024+16}")
    A("s_waitcnt lgkmcnt(0)")
    for q in range(2):
        b = SB[0] + q*8
        A(f"v_max3_f32 {T0}, v{b}, v{b+2}, v{b+4}")
        A(f"v_max_f32 {T0}, {T0}, v{b+6}")
        for w_ in range(4):
            A(f"v_sub_f32 v{b+2*w_}, v{b+2*w_}, {T0}")
            A(f"v_mul_f32 v{b+2*w_}, s68, v{b+2*w_}")
            A(f"v_exp_f32 v{b+2*w_}, v{b+2*w_}")
        A(f"v_sub_f32 {T1}, {MR[q]}, {T0}")
        A(f"v_mul_f32 {T1}, s68, {T1}")
        A(f"v_exp_f32 {FAC[q]}, {T1}")
        A(f"v_mul_f32 {LS[q]}, v{b}, v{b+1}")
        for w_ in range(1, 4):
            A(f"v_fmac_f32 {LS[q]}, v{b+2*w_}, v{b+2*w_+1}")
        A(f"v_rcp_f32 {LS[q]}, {LS[q]}")
    A(f"v_cmp_neq_f32 vcc, 1.0, {FAC[0]}")
    A(f"v_cmp_neq_f32 s[50:51], 1.0, {FAC[1]}")
    A("s_or_b64 s[50:51], vcc, s[50:51]")
    A("s_cbranch_scc0 PC_NORESC")
    rescaleO()
    A.label("PC_NORESC")
    for gq in range(1, 4):
        A(f"s_lshr_b32 s45, s{64+gq}, 12")
        A("s_mul_i32 s45, s45, 24576")
        A(f"s_add_u32 s45, s45, {65536 + (gq-1)*8192}")
        A(f"v_add_u32 {T0}, s45, {VL16}")
        for d in range(2):
            for q in range(2):
                f, b = Oreg(gq, d, q)
                t = SB[1] + ((d*2+q) % 2) * 16
                if f == "a":
                    for r in range(16): A(f"v_accvgpr_read_b32 v{t+r}, a{b+r}")
                    b = t
                for r in range(8):
                    A(f"v_cvt_pk_bf16_f32 v{t+r}, v{b+2*r}, v{b+2*r+1}")
                for s_ in range(2):
                    A(f"ds_write_b128 {T0}, {v(t+4*s_,4)} offset:{((d*2+q)*2+s_)*1024}")
    A("s_waitcnt lgkmcnt(0)")
    A("s_barrier")
    A("s_mul_i32 s45, s3, 24576")
    A("s_add_u32 s45, s45, 65536")
    A(f"v_add_u32 {T0}, s45, {VL16}")
    RB = 96
    for i in range(24):
        A(f"ds_read_b128 {v(RB+4*i,4)}, {T0} offset:{i*1024}")
    for i in range(24):
        blk, s_ = (i % 8) // 2, i % 2
        d, q = blk // 2, blk % 2
        A(f"s_waitcnt lgkmcnt({min(15, 23-i)})")
        acc = OR(0, d, q)
        A(f"v_mfma_f32_32x32x16_bf16 {acc}, {v(SEL[s_],4)}, {v(RB+4*i,4)}, {acc}")
    A("s_lshl_b32 s45, s6, 19")
    A("s_lshl_b32 s43, s4, 14")
    A("s_add_u32 s45, s45, s43")
    A("s_lshl_b32 s43, s3, 12")
    A("s_add_u32 s45, s45, s43")
    A("s_add_u32 s44, s45, 262144")
    A("s_nop 7"); A("s_nop 3")
    for d in range(2):
        for q in range(2):
            f, b = Oreg(0, d, q)
            t = SB[0] + ((d*2+q)) * 16
            for r in range(16): A(f"v_accvgpr_read_b32 v{t+r}, a{b+r}")
            for r in range(16): A(f"v_mul_f32 v{t+r}, v{t+r}, {LS[q]}")
            for r in range(8): A(f"v_cvt_pk_bf16_f32 v{t+r}, v{t+2*r}, v{t+2*r+1}")
            for s_ in range(2):
                A(f"buffer_store_dwordx4 {v(t+4*s_,4)}, {VL16}, s[20:23], {'s44' if q else 's45'} offen offset:{(2*d+s_)*1024}{SC}")
    A("s_cmp_eq_u32 s34, 1")
    A("s_cbranch_scc1 PC_DONE")
    A("s_mov_b32 s34, 1")
    A("s_mov_b32 s6, s5")
    A("s_branch PC_PHASE")
    for (p, tag) in rare_blocks:
        A.label(f"PC_MASK_{tag}")
        mask_code(p)
        A(f"s_branch PC_MASKRET_{tag}")
        A.label(f"PC_RARE_{tag}")
        for q in range(2):
            xhalf(A, "v_max_f32", TM[q], T0)
            A(f"v_max_f32 {TM[q]}, {TM[q]}, {MR[q]}")
            A(f"v_sub_f32 {T1}, {MR[q]}, {TM[q]}")
            A(f"v_mul_f32 {T1}, s68, {T1}")
            A(f"v_exp_f32 {FAC[q]}, {T1}")
            A(f"v_mov_b32 {MR[q]}, {TM[q]}")
            A(f"v_mul_f32 {MC[q]}, s68, {MR[q]}")
            A(f"v_add_f32 {THR[q]}, s69, {MR[q]}")
            A(f"v_mul_f32 {LS[q]}, {LS[q]}, {FAC[q]}")
        A("s_mov_b32 s42, 1")
        A(f"s_branch PC_RARERET_{tag}")
        A.label(f"PC_PEND_{tag}")
        rescaleO()
        A("s_mov_b32 s42, 0")
        A(f"s_branch PC_PENDRET_{tag}")
    A.label("PC_DONE")
    ST(10)

def reduce4(A, ACC):
    A("s_lshl_b32 s45, s3, 14")
    A("v_add_u32 v4, s45, v5")
    A("s_nop 7"); A("s_nop 1")
    for b in range(4):
        for r in range(4):
            A(f"ds_write_b128 v4, {v(ACC+b*16+4*r,4)} offset:{b*4096 + r*1024}")
    A("s_waitcnt lgkmcnt(0)")
    A("s_barrier")
    A("s_lshl_b32 s45, s3, 12")
    A("v_add_u32 v4, s45, v5")
    for src in range(4):
        for r in range(4):
            A(f"ds_read_b128 {v(ACC+src*16+4*r,4)}, v4 offset:{src*16384 + r*1024}")
    A("s_waitcnt lgkmcnt(0)")
    for r in range(16):
        A(f"v_add_f32 v{ACC+r}, v{ACC+r}, v{ACC+16+r}")
        A(f"v_add_f32 v{ACC+32+r}, v{ACC+32+r}, v{ACC+48+r}")
    for r in range(16):
        A(f"v_add_f32 v{ACC+r}, v{ACC+r}, v{ACC+32+r}")

def add_resid(A, ACC, RES, OUT):
    for r in range(8):
        A(f"v_cvt_pk_bf16_f32 v{ACC+16+r}, v{ACC+2*r}, v{ACC+2*r+1}")
    for r in range(8):
        A(f"v_lshlrev_b32 v{ACC+2*r}, 16, v{ACC+16+r}")
        A(f"v_and_b32 v{ACC+2*r+1}, 0xffff0000, v{ACC+16+r}")
        A(f"v_lshlrev_b32 v{ACC+32+2*r}, 16, v{RES+r}")
        A(f"v_and_b32 v{ACC+32+2*r+1}, 0xffff0000, v{RES+r}")
    for r in range(16):
        A(f"v_add_f32 v{ACC+r}, v{ACC+r}, v{ACC+32+r}")
    for r in range(8):
        A(f"v_cvt_pk_bf16_f32 v{OUT+r}, v{ACC+2*r}, v{ACC+2*r+1}")

def phaseDEF(g):
    A, ST, vm = g.A, g.ST, g.vm
    vm.ops = []
    ACC = 32
    A("s_load_dwordx2 s[36:37], s[0:1], 0")
    A("s_load_dwordx2 s[38:39], s[0:1], 72")
    A("s_lshr_b32 s40, s2, 3")
    A("s_mul_i32 s6, s40, 9363")
    A("s_lshr_b32 s6, s6, 16")
    A("s_mul_i32 s7, s6, 7")
    A("s_sub_u32 s7, s40, s7")
    A("s_and_b32 s41, s2, 7")
    A("s_lshl_b32 s41, s41, 2")
    A("s_add_u32 s6, s6, s41")
    ws_srd(A, 8, 54, WO_OFF, WO_SZ)
    A(f"s_mul_i32 s42, s7, {2*256*1024}")
    A(f"s_mul_i32 s43, s6, {2*256*1024}")
    A("s_lshl_b32 s44, s3, 16")
    A("s_add_u32 s42, s42, s44")
    A("s_add_u32 s43, s43, s44")
    A(f"v_add_u32 v6, {256*1024}, v5")
    A("s_cmp_lt_u32 s40, 28")
    A("s_cbranch_scc0 PD_SKIPW")
    W = 16
    def ldA(ks, sl, sreg="s42"):
        o = (ks % 4) * 1024
        return [(f"buffer_load_dwordx4 {a(sl*16,4)}, v5, s[8:11], {sreg} offen offset:{o}{SC}", ("a", ks)),
                (f"buffer_load_dwordx4 {a(sl*16+8,4)}, v6, s[8:11], {sreg} offen offset:{o}{SC}", ("a", ks))]
    def ldB(ks, sl):
        o = (ks % 4) * 1024
        return [(f"buffer_load_dwordx4 {a(sl*16+4,4)}, v5, s[20:23], s43 offen offset:{o}{SC}", ("b", ks)),
                (f"buffer_load_dwordx4 {a(sl*16+12,4)}, v6, s[20:23], s43 offen offset:{o}{SC}", ("b", ks))]
    for ks in range(W):
        for x in ldA(ks, ks): A(x[0])
        if ks % 4 == 3: A("s_add_u32 s42, s42, 4096")
    A.label("PD_SKIPW")
    A("s_cmp_lt_u32 s40, 28")
    A("s_cbranch_scc1 PD_W32")
    A("s_waitcnt vmcnt(0)")
    A.label("PD_W32")
    A("s_waitcnt vmcnt(32) lgkmcnt(0)")
    A("s_barrier")
    A("s_lshl_b32 s45, s5, 6"); A("s_lshl_b32 s44, s4, 2"); A("s_add_u32 s45, s45, s44")
    A(f"s_add_u32 s45, s45, {F_CTX*4}")
    set_flag(g, "s45")
    A("s_cmp_lt_u32 s40, 28")
    A("s_cbranch_scc0 MEGA_FIN")
    ws_srd(A, 16, 54, H_OFF, H_SZ)
    srd(A, 24, 36, 2048*448*2)
    srd(A, 28, 38, 2048*448*2)
    ws_srd(A, 32, 54, HS_OFF, HS_SZ)
    A("s_lshr_b32 s46, s3, 1"); A("s_lshl_b32 s45, s7, 1"); A("s_add_u32 s46, s46, s45")
    A("s_and_b32 s47, s3, 1"); A("s_lshl_b32 s45, s6, 1"); A("s_add_u32 s47, s47, s45")
    A("v_and_b32 v7, 31, v2")
    A("v_lshrrev_b32 v8, 5, v2")
    A("s_lshl_b32 s45, s47, 5")
    A("v_add_u32 v7, s45, v7")
    A("v_mul_u32_u24 v9, 896, v7")
    A("v_lshl_add_u32 v9, v8, 3, v9")
    A("s_lshl_b32 s48, s46, 6")
    A("s_mul_i32 s49, s47, 28672")
    A("s_lshl_b32 s45, s46, 11")
    A("s_add_u32 s49, s49, s45")
    for gq in range(4):
        A(f"buffer_load_dwordx2 {v(12+2*gq,2)}, v9, s[24:27], s48 offen offset:{16*gq}")
    A("v_and_b32 v10, 15, v2")
    A("v_lshlrev_b32 v10, 2, v10")
    A("s_lshl_b32 s45, s6, 6")
    A(f"s_add_u32 s45, s45, {F_CTX*4}")
    poll(g, 11, "v10", "s45")
    ST(11)
    for ks in range(W):
        emit(g, ldB(ks, ks))
        if ks % 4 == 3: A("s_add_u32 s43, s43, 4096")
    def body(k0, first, more, fixed=None):
        for sl in range(W):
            ks = k0 + sl
            n = vm.newer(lambda t: t[1] == ks) if fixed is None else fixed
            A(f"s_waitcnt vmcnt({n})")
            for i in range(2):
                for q in range(2):
                    acc = v(ACC + (i*2+q)*16, 16)
                    c = "0" if (first and sl == 0) else acc
                    A(f"v_mfma_f32_32x32x16_bf16 {acc}, {a(sl*16+8*i,4)}, {a(sl*16+4+8*q,4)}, {c}")
            if more:
                emit(g, ldA(ks + W, sl) + ldB(ks + W, sl))
                if ks % 4 == 3:
                    A("s_add_u32 s42, s42, 4096"); A("s_add_u32 s43, s43, 4096")
    body(0, True, True)
    A("s_mov_b32 s50, 0")
    A.label("PD_LOOP")
    body(16, False, True, fixed=60)
    A("s_add_u32 s50, s50, 1")
    A("s_cmp_lt_u32 s50, 2")
    A("s_cbranch_scc1 PD_LOOP")
    vm.ops = [("x", ks) for ks in range(48, 64) for _ in range(4)]
    body(48, False, False)
    ST(12)
    reduce4(A, ACC)
    HP = 20
    add_resid(A, ACC, 12, HP)
    for s_ in range(2):
        A(f"buffer_store_dwordx4 {v(HP+4*s_,4)}, v5, s[16:19], s49 offen offset:{1024*s_}{SC}")
    for r in range(8):
        A(f"v_lshlrev_b32 v{ACC+2*r}, 16, v{HP+r}")
        A(f"v_and_b32 v{ACC+2*r+1}, 0xffff0000, v{HP+r}")
    A(f"v_add_f32 v10, v{ACC}, v{ACC+1}")
    for r in range(2, 16): A(f"v_add_f32 v10, v10, v{ACC+r}")
    xhalf(A, "v_add_f32", "v10", "v12")
    A("v_mul_f32 v13, 0x3d000000, v10")
    A("v_mov_b32 v11, 0")
    for r in range(16):
        A(f"v_sub_f32 v12, v{ACC+r}, v13")
        A("v_fmac_f32 v11, v12, v12")
    xhalf(A, "v_add_f32", "v11", "v12")
    A("v_mul_u32_u24 v12, 112, v7")
    A("s_lshl_b32 s45, s46, 3")
    A(f"buffer_store_dwordx2 v[10:11], v12, s[32:35], s45 offen{SC}")
    ws_srd(A, 8, 54, W1_OFF, W1_SZ)
    A("s_lshl_b32 s51, s7, 3"); A("s_lshl_b32 s45, s3, 1"); A("s_add_u32 s51, s51, s45")
    A("s_mul_i32 s42, s51, 28672")
    vm.ops = []
    for f in range(56):
        emit(g, [(f"buffer_load_dwordx4 {a(4*f,4)}, v5, s[8:11], s42 offen offset:{(f%4)*1024}{SC}", ("w1", f))])
        if f % 4 == 3: A("s_add_u32 s42, s42, 4096")
    A("s_waitcnt vmcnt(56)")
    A("s_barrier")
    A("s_lshl_b32 s45, s6, 5"); A("s_lshl_b32 s44, s7, 2"); A("s_add_u32 s45, s45, s44")
    A(f"s_add_u32 s52, s45, {F_H1*4}")
    A(f"s_add_u32 s45, s45, {F_H*4}")
    set_flag(g, "s45")
    ST(13)
    for r in range(4): A(f"v_mov_b32 v{12+r}, 0x3f803f80")
    CS = 96
    A("s_nop 1")
    for i in range(2):
        for ks in range(28):
            f = i*28 + ks
            A(f"s_waitcnt vmcnt({55-f})")
            acc = v(CS + i*16, 16)
            A(f"v_mfma_f32_32x32x16_bf16 {acc}, {a(4*f,4)}, v[12:15], {'0' if ks == 0 else acc}")
    A("v_and_b32 v10, 7, v2")
    A("v_min_u32 v10, 6, v10")
    A("v_lshlrev_b32 v10, 2, v10")
    A("s_lshl_b32 s45, s6, 5")
    A(f"s_add_u32 s45, s45, {F_H*4}")
    poll(g, 11, "v10", "s45")
    ST(14)
    A("s_mul_i32 s42, s6, 57344")
    A("s_mul_i32 s43, s3, 14336")
    A("s_add_u32 s42, s42, s43")
    A("s_add_u32 s43, s43, 65536")
    for i in range(14):
        if i % 4 == 0:
            A(f"s_add_u32 m0, s43, {i*1024}")
            A(f"s_add_u32 s44, s42, {i*1024}")
        A(f"buffer_load_dwordx4 v5, s[16:19], s44 offen offset:{(i%4)*1024}{SC} lds")
    A("v_and_b32 v10, 31, v2")
    A("s_lshl_b32 s45, s6, 6")
    A("v_add_u32 v10, s45, v10")
    A("v_mul_u32_u24 v10, 112, v10")
    STB = [128, 156]
    for q in range(2):
        for i in range(7):
            A(f"buffer_load_dwordx4 {v(STB[q]+4*i,4)}, v10, s[32:35], 0 offen offset:{q*3584 + 16*i}{SC}")
    A("v_add_u32 v6, 0x10000, v5")
    A("s_waitcnt vmcnt(14)")
    A("s_barrier")
    MB_ = ["v16", "v17"]; RS = ["v18", "v19"]
    stats = ["s_waitcnt vmcnt(0)"]
    for q in range(2):
        b = STB[q]
        stats += [f"v_add_f32 v10, v{b}, v{b+2}"] + [f"v_add_f32 v10, v10, v{b+2*i}" for i in range(2, 14)]
        stats += ["v_mul_f32 v10, 0x3b124925, v10", f"v_add_f32 v11, v{b+1}, v{b+3}"] + [f"v_add_f32 v11, v11, v{b+2*i+1}" for i in range(2, 14)]
        stats += ["v_mov_b32 v4, 0"]
        for i in range(14):
            stats += [f"v_mul_f32 v{b+2*i}, 0x3d000000, v{b+2*i}", f"v_sub_f32 v{b+2*i}, v{b+2*i}, v10", f"v_fmac_f32 v4, v{b+2*i}, v{b+2*i}"]
        stats += ["v_mul_f32 v4, 0x42000000, v4", "v_add_f32 v11, v11, v4", "v_mul_f32 v11, 0x3b124925, v11"]
        stats += bf16_round_l(MB_[q], "v10") + bf16_round_l("v11", "v11") + ["v_add_f32 v11, 0x3727c5ac, v11"] + bf16_round_l("v11", "v11")
        stats += ["v_sqrt_f32 v11, v11", "s_nop 0"] + bf16_round_l("v11", "v11") + [f"v_rcp_f32 {RS[q]}, v11", "s_nop 0", f"v_mul_f32 {MB_[q]}, {MB_[q]}, {RS[q]}"]
    XF = [192, 200, 208, 216]
    def xr(ks): return [f"ds_read_b128 {v(XF[ks%4]+4*q,4)}, v6 offset:{q*28672+ks*1024}" for q in range(2)]
    for ks in range(3): emit(g, xr(ks))
    for ks in range(28):
        sched = {}
        if ks + 3 < 28: spread(sched, xr(ks + 3), 0, 1)
        A(f"s_waitcnt lgkmcnt({2*min(2, 27-ks)})")
        ms = []
        for i in range(2):
            for q in range(2):
                acc = v(ACC + (i*2+q)*16, 16)
                ms.append(f"v_mfma_f32_32x32x16_bf16 {acc}, {a(4*(i*28+ks),4)}, {v(XF[ks%4]+4*q,4)}, {'0' if ks == 0 else acc}")
        run_sched(A, ms, sched, stats if ks >= 4 else [], 4, vm)
    assert not stats
    ST(15)
    ws_srd(A, 8, 54, W2_OFF, W2_SZ)
    A(f"s_mul_i32 s42, s7, {2*112*1024}")
    A("s_mul_i32 s43, s3, 28672")
    A("s_add_u32 s42, s42, s43")
    for f in range(56):
        A(f"buffer_load_dwordx4 {a(4*f,4)}, v5, s[8:11], s42 offen offset:{(f%4)*1024}{SC}")
        if f % 4 == 3: A(f"s_add_u32 s42, s42, {4096 if f != 27 else 4096 + 84*1024}")
    ws_srd(A, 20, 54, H1_OFF, H1_SZ)
    A(f"s_mul_i32 s44, s6, {2*112*1024}")
    A("s_lshl_b32 s45, s51, 11")
    A("s_add_u32 s44, s44, s45")
    A(f"s_add_u32 s45, s44, {112*1024}")
    A(f"s_mov_b32 s50, {f32bits(-1.4426950408889634):#x}")
    T = 128
    for i in range(2):
        for q in range(2):
            b = ACC + (i*2+q)*16; cs = CS + i*16
            for r in range(16): A(f"v_mul_f32 v{T+r}, {MB_[q]}, v{cs+r}")
            for r in range(16): A(f"v_fma_f32 v{b+r}, v{b+r}, {RS[q]}, -v{T+r}")
            for r in range(8): A(f"v_cvt_pk_bf16_f32 v{T+r}, v{b+2*r}, v{b+2*r+1}")
            for r in range(8):
                A(f"v_lshlrev_b32 v{b+2*r}, 16, v{T+r}")
                A(f"v_and_b32 v{b+2*r+1}, 0xffff0000, v{T+r}")
            for r in range(16): A(f"v_mul_f32 v{T+r}, s50, v{b+r}")
            for r in range(16): A(f"v_exp_f32 v{T+r}, v{T+r}")
            for r in range(16): A(f"v_add_f32 v{T+r}, 1.0, v{T+r}")
            for r in range(16): A(f"v_rcp_f32 v{T+r}, v{T+r}")
            for r in range(16): A(f"v_mul_f32 v{b+r}, v{b+r}, v{T+r}")
            for r in range(8): A(f"v_cvt_pk_bf16_f32 v{b+r}, v{b+2*r}, v{b+2*r+1}")
            for s_ in range(2):
                A(f"buffer_store_dwordx4 {v(b+4*s_,4)}, v5, s[20:23], {'s45' if q else 's44'} offen offset:{(2*i+s_)*1024}{SC}")
    A("s_waitcnt vmcnt(0)")
    A("s_barrier")
    set_flag(g, "s52")
    ST(16)
    A("v_and_b32 v10, 7, v2")
    A("v_min_u32 v10, 6, v10")
    A("v_lshlrev_b32 v10, 2, v10")
    A("s_lshl_b32 s45, s6, 5")
    A(f"s_add_u32 s45, s45, {F_H1*4}")
    poll(g, 11, "v10", "s45")
    ST(17)
    A(f"s_mul_i32 s42, s6, {2*112*1024}")
    A("s_mul_i32 s43, s3, 28672")
    A("s_add_u32 s42, s42, s43")
    A(f"v_add_u32 v6, {112*1024}, v5")
    def ldH(ks):
        sl = ks % 14
        out = [(f"buffer_load_dwordx4 {v(96+sl*8,4)}, v5, s[20:23], s42 offen offset:{(ks%4)*1024}{SC}", ("h", ks)),
               (f"buffer_load_dwordx4 {v(96+sl*8+4,4)}, v6, s[20:23], s42 offen offset:{(ks%4)*1024}{SC}", ("h", ks))]
        if ks % 4 == 3: out.append("s_add_u32 s42, s42, 4096")
        return out
    for ks in range(14): emit(g, ldH(ks))
    for ks in range(28):
        A(f"s_waitcnt vmcnt({vm.newer(lambda t: t == ('h', ks))})")
        for i in range(2):
            for q in range(2):
                acc = v(ACC + (i*2+q)*16, 16)
                A(f"v_mfma_f32_32x32x16_bf16 {acc}, {a(4*(i*28+ks),4)}, {v(96+(ks%14)*8+4*q,4)}, {'0' if ks == 0 else acc}")
        if ks + 14 < 28: emit(g, ldH(ks + 14))
    ST(18)
    reduce4(A, ACC)
    add_resid(A, ACC, HP, 12)
    for gq in range(4):
        A(f"buffer_store_dwordx2 {v(12+2*gq,2)}, v9, s[28:31], s48 offen offset:{16*gq}")

def gen_mega(stamps=False):
    g = G()
    g.A = A = Asm()
    name = "mega_kernel"
    kernel_begin(A, name)
    A("s_cmp_ge_u32 s2, 256")
    A("s_cbranch_scc1 MEGA_END")
    g.ST = Stamps(A, stamps)
    g.ST.tmp = "s[100:101]"
    g.vm = VM()
    g.wload = wload_factory(g)
    if stamps:
        A("s_memtime s[96:97]"); A("s_memrealtime s[98:99]")
    phaseA(g)
    phaseC(g)
    phaseDEF(g)
    A.label("MEGA_FIN")
    if stamps:
        A("s_waitcnt vmcnt(0)")
        g.ST(19); g.ST(21, real=True)
        A("v_writelane_b32 v31, s96, 0"); A("v_writelane_b32 v31, s98, 20")
        g.ST.flush(54, "s3", "v2")
    A.label("MEGA_END")
    A("s_endpgm")
    return name, A.text(), kernel_desc(name, 512, 102, 256), (256, 256, 163840)
```

```python
import sys
from k1b import gen_k1
from k2 import gen_k2
from k3 import gen_proj, gen_k4
def build(kernels, path):
    hdr = open("sequential_preLN__compressed_kv_cla__dense_activation_silu__prompt.s.ref").read().split("; Override launch")[0]
    hdr += "".join(f"; @launch kernel={n} grid=({g},1,1) block=({b},1,1) lds={l}\n" for n, _, _, (g, b, l) in kernels)
    out = hdr + '.amdgcn_target "amdgcn-amd-amdhsa--gfx950"\n' + "".join(t for _, t, _, _ in kernels) + "".join(d for _, _, d, _ in kernels)
    open(path, "w").write(out)
if __name__ == "__main__" and len(sys.argv) > 1 and sys.argv[1].startswith('m'):
    from mega import gen_mega
    st = sys.argv[1] == 'ms'
    build([gen_mega(stamps=st)], "dev.s" if st else "sequential_preLN__compressed_kv_cla__dense_activation_silu__prompt.s")
elif __name__ == "__main__":
    st = int(sys.argv[1]) if len(sys.argv) > 1 else 0
    build([gen_k1(stamps=st==1), gen_k2(stamps=st==2), gen_proj(3, stamps=st==3), gen_k4(stamps=st==4), gen_proj(5, stamps=st==5)], "dev.s" if st else "sequential_preLN__compressed_kv_cla__dense_activation_silu__prompt.s")
```

```python
from common import *
from k1b import rl_setup, rl_reads
import os
CSC = math.log2(math.e) / 16.0
TTHR = 8.0
BIG = 2.0 ** 100
SC = " sc1"
SPIN = 1 << 16
TQ = int(os.environ.get('TQ', '2'))
TD = int(os.environ.get('TD', '1'))
NOSIDE = int(os.environ.get('NOSIDE', '0'))
TR1 = int(os.environ.get('TR1', '1'))
TR2 = int(os.environ.get('TR2', '8'))
FSA = int(os.environ.get('FSA', '14'))
LNS = int(os.environ.get('LNS', '5'))
CUT = int(os.environ.get('CUT', '46'))
W1EV = int(os.environ.get('W1EV', '6'))
W2EV = int(os.environ.get('W2EV', '40'))
TW = eval(os.environ.get('TW', '(0, 3, 6, 9, 13, 17)'))
TA = int(os.environ.get('TA', '7'))
TOUCH = int(os.environ.get('TOUCH', '1'))

class G:
    pass

def emit(g, items):
    for x in items:
        if isinstance(x, tuple): g.A(x[0]); g.vm.issue(x[1])
        elif callable(x): x()
        else: g.A(x)

def poll(g, vdst, voff, soff, n4=False, name=None):
    A = g.A
    L = A.newlabel("POLL")
    A(f"s_mov_b32 s87, 0")
    A.label(L)
    if n4:
        A(f"buffer_load_dwordx4 {v(vdst,4)}, {voff}, s[88:91], {soff} offen sc1")
        A("s_waitcnt vmcnt(0)")
        A(f"v_and_b32 v{vdst}, v{vdst}, v{vdst+1}")
        A(f"v_and_b32 v{vdst+2}, v{vdst+2}, v{vdst+3}")
        A(f"v_and_b32 v{vdst}, v{vdst}, v{vdst+2}")
    else:
        A(f"buffer_load_dword v{vdst}, {voff}, s[88:91], {soff} offen sc1")
        A("s_waitcnt vmcnt(0)")
    A(f"v_cmp_ne_u32 vcc, 1, v{vdst}")
    A(f"s_cbranch_vccz {L}_OK")
    A("s_sleep 1")
    A("s_add_u32 s87, s87, 1")
    A(f"s_cmp_lt_u32 s87, {SPIN}")
    A(f"s_cbranch_scc1 {L}")
    A.label(L + "_OK")
    g.vm.ops = []

def set_flag(g, soff_bytes):
    A = g.A
    L = A.newlabel("SETF")
    A("s_cmp_lg_u32 s3, 0")
    A(f"s_cbranch_scc1 {L}")
    A("s_mov_b64 exec, 1")
    A(f"buffer_store_dword v30, v29, s[88:91], {soff_bytes} offen sc1")
    A("s_mov_b64 exec, -1")
    A.label(L)


class Stager:
    def __init__(self, g, srd, stride, s_off, s_ring, slots, vA, vB, vT0, vT1, tag):
        self.__dict__.update(locals())
    def setup(self, tmp=("v60", "v61")):
        A = self.g.A; t0, t1 = tmp
        A(f"v_lshrrev_b32 {t0}, 3, v2")
        A(f"v_mul_u32_u24 {self.vA}, {self.stride}, {t0}")
        A(f"v_bfe_u32 {t0}, v2, 4, 1")
        A(f"v_lshlrev_b32 {t0}, 2, {t0}")
        A(f"v_and_b32 {t1}, 7, v2")
        A(f"v_xor_b32 {t0}, {t0}, {t1}")
        A(f"v_lshl_add_u32 {self.vA}, {t0}, 4, {self.vA}")
        A(f"v_add_u32 {self.vB}, {8*self.stride - 1024}, {self.vA}")
    def setup_tr(self, tmp=("v60", "v61")):
        A = self.g.A; t0, t1 = tmp
        A(f"v_lshrrev_b32 {t0}, 5, v2")
        A(f"v_bfe_u32 {t1}, v2, 2, 2")
        A(f"v_lshl_add_u32 {t0}, {t0}, 2, {t1}")
        A(f"v_lshlrev_b32 {t0}, 7, {t0}")
        A(f"v_bfe_u32 {t1}, v2, 3, 1")
        A(f"v_lshl_add_u32 {t0}, {t1}, 6, {t0}")
        A(f"v_bfe_u32 {t1}, v2, 4, 1")
        A(f"v_lshl_add_u32 {t0}, {t1}, 5, {t0}")
        A(f"v_and_b32 {t1}, 3, v2")
        A(f"v_lshl_add_u32 {t0}, {t1}, 3, {t0}")
        A(f"v_add_u32 {self.vT0}, {self.s_ring}, {t0}")
        A(f"v_xor_b32 {self.vT1}, 64, {self.vT0}")
    def dma(self, ks):
        o = self.slots[ks % len(self.slots)]
        return [f"s_add_u32 m0, {self.s_ring}, {o}", "s_nop 0",
                (f"buffer_load_dwordx4 {self.vA}, {self.srd}, {self.s_off} offen lds", (self.tag, ks)),
                (f"buffer_load_dwordx4 {self.vB}, {self.srd}, {self.s_off} offen offset:1024 lds", (self.tag, ks)),
                f"s_add_u32 {self.s_off}, {self.s_off}, {16*self.stride}"]
    def tr(self, ks, d0, d1, rf=v):
        o = self.slots[ks % len(self.slots)]
        return [f"ds_read_b64_tr_b16 {rf(d0,2)}, {self.vT0} offset:{o}", f"ds_read_b64_tr_b16 {rf(d0+2,2)}, {self.vT0} offset:{o+1024}",
                f"ds_read_b64_tr_b16 {rf(d1,2)}, {self.vT1} offset:{o}", f"ds_read_b64_tr_b16 {rf(d1+2,2)}, {self.vT1} offset:{o+1024}"]

def phaseA(g):
    A, ST, vm = g.A, g.ST, g.vm
    A("s_load_dwordx16 s[36:51], s[0:1], 0")
    A("s_load_dwordx2 s[52:53], s[0:1], 64")
    A("s_load_dwordx4 s[92:95], s[0:1], 80")
    A("v_lshrrev_b32 v1, 6, v0")
    A("v_and_b32 v2, 63, v0")
    A("v_readfirstlane_b32 s3, v1")
    A("s_and_b32 s4, s2, 7")
    A("s_lshr_b32 s5, s2, 3")
    A("s_and_b32 s6, s5, 7")
    A("s_lshr_b32 s5, s5, 3")
    A("s_lshr_b32 s7, s5, 1")
    A("s_and_b32 s5, s5, 1")
    A("s_lshl_b32 s4, s4, 1")
    A("s_add_u32 s4, s4, s5")
    A("v_lshrrev_b32 v3, 2, v2")
    A("v_lshlrev_b32 v3, 11, v3")
    A("v_and_b32 v4, 3, v2")
    A("v_lshl_add_u32 v3, v4, 4, v3")
    A("s_lshl_b32 s56, s6, 19")
    A("s_lshl_b32 s57, s3, 17")
    A("s_add_u32 s56, s56, s57")
    A("v_add_u32 v8, s56, v3")
    A("v_xor_b32 v9, 32, v8")
    A(f"v_add_u32 v9, {32768-1024}, v9")
    A(f"v_add_u32 v10, {2*(32768-1024)}, v8")
    A(f"v_add_u32 v11, {2*(32768-1024)}, v9")
    A("v_lshrrev_b32 v3, 5, v2")
    A("v_and_b32 v4, 31, v2")
    A("s_and_b32 s57, s3, 1")
    A("v_xor_b32 v4, s57, v4")
    A("v_lshlrev_b32 v5, 2, v3")
    A("v_xor_b32 v4, v4, v5")
    A("v_lshlrev_b32 v4, 4, v4")
    A("v_lshl_add_u32 v4, v3, 13, v4")
    A("s_lshl_b32 s56, s4, 9")
    A("s_lshl_b32 s57, s3, 16")
    A("s_add_u32 s56, s56, s57")
    A("v_add_u32 v12, s56, v4")
    A("v_xor_b32 v13, 128, v12")
    A(f"v_add_u32 v13, {16384-1024}, v13")
    A(f"v_add_u32 v14, {2*(16384-1024)}, v12")
    A(f"v_add_u32 v15, {2*(16384-1024)}, v13")
    A("s_lshl_b32 s64, s3, 12")
    A("s_mov_b32 s65, 0")
    A("s_mov_b32 s66, 0")
    A("s_waitcnt lgkmcnt(0)")
    A("s_mov_b32 s54, s94"); A("s_mov_b32 s55, s95")
    srd(A, 8, 38, 2048*1024*2)
    A("s_cmp_eq_u32 s7, 0")
    A("s_cselect_b32 s12, s42, s44")
    A("s_cselect_b32 s13, s43, s45")
    A("s_and_b32 s13, s13, 0xffff")
    A(f"s_mov_b32 s14, {1024*4096*2:#x}")
    A("s_mov_b32 s15, 0x00020000")
    def dma(stage):
        slot = stage % 4
        out = [f"s_add_u32 m0, s64, {slot*16384}", "s_nop 0"]
        for i in range(4):
            out.append((f"buffer_load_dwordx4 v{8+i}, s[8:11], s65 offen offset:{1024*i} lds", ("d", stage)))
        out += [f"s_add_u32 m0, s64, {65536+slot*16384}", "s_add_u32 s65, s65, 64"]
        for i in range(4):
            out.append((f"buffer_load_dwordx4 v{12+i}, s[12:15], s66 offen offset:{1024*i} lds", ("d", stage)))
        out.append("s_add_u32 s66, s66, 262144")
        return out
    emit(g, dma(0)); emit(g, dma(1))
    ST(1)
    A("v_bfe_u32 v240, v2, 3, 1")
    A("v_lshlrev_b32 v240, 11, v240")
    A("v_and_b32 v241, 7, v2")
    A("v_lshl_add_u32 v240, v241, 7, v240")
    A("s_lshl_b32 s56, s2, 14")
    A("s_lshl_b32 s57, s3, 12")
    A("s_add_u32 s56, s56, s57")
    A("v_add_u32 v241, s56, v240")
    A("s_cmp_lt_u32 s2, 128")
    A("s_cselect_b32 s98, s42, s44")
    A("s_cselect_b32 s99, s43, s45")
    A("s_and_b32 s56, s2, 127")
    A("s_lshl_b32 s56, s56, 13")
    A("s_lshl_b32 s57, s3, 11")
    A("s_add_u32 s56, s56, s57")
    A("v_and_b32 v242, 15, v2")
    A("v_lshlrev_b32 v242, 7, v242")
    A("v_add_u32 v242, s56, v242")
    def touchA(i): return [(f"buffer_load_dword v244, v241, s[8:11], 0 offen offset:{1024*i}", "t")]
    def touchW(): return ["v_add_u32 v242, 0x100000, v242", ("global_load_dword v245, v242, s[98:99]", "t")]
    if TOUCH:
        emit(g, touchA(0) + touchW())
        A("s_getpc_b64 s[56:57]")
        A.label("PCREF")
        A("s_lshr_b32 s58, s2, 3")
        A("s_lshl_b32 s58, s58, 2")
        A("s_add_u32 s58, s58, s3")
        A("s_mul_i32 s58, s58, 1280")
        A("v_min_u32 v249, 9, v2")
        A("v_lshlrev_b32 v249, 7, v249")
        A("v_add_u32 v249, s58, v249")
        A("v_min_u32 v249, (MEGA_END - PCREF), v249")
        emit(g, [("global_load_dword v250, v249, s[56:57]", "t")])
    ws_srd(A, 88, 54, FLAG_OFF, FLAG_SZ)
    A("v_mov_b32 v29, 0")
    A("v_mov_b32 v30, 1")
    A("s_cmp_lg_u32 s2, 0")
    A("s_cbranch_scc1 NOZERO")
    A("v_lshlrev_b32 v3, 5, v0")
    for r in range(4): A(f"v_mov_b32 v{32+r}, 0")
    A("buffer_store_dwordx4 v[32:35], v3, s[88:91], 0 offen sc1")
    A("buffer_store_dwordx4 v[32:35], v3, s[88:91], 0 offen offset:16 sc1")
    A.label("NOZERO")
    ws_srd(A, 16, 54, KV_OFF, KV_SZ)
    srd(A, 20, 36, 2048*448*2)
    ws_srd(A, 24, 54, XN_OFF, XN_SZ)
    A("v_and_b32 v3, 31, v2")
    A("v_lshrrev_b32 v4, 5, v2")
    A("s_lshl_b32 s56, s2, 3")
    A("s_lshl_b32 s57, s3, 1")
    A("s_add_u32 s56, s56, s57")
    A("v_add_u32 v4, s56, v4")
    A("v_mul_u32_u24 v25, 896, v4")
    A("v_lshl_add_u32 v25, v3, 5, v25")
    A("v_lshrrev_b32 v5, 5, v4")
    A("v_mul_u32_u24 v26, 28672, v5")
    A("v_lshl_add_u32 v26, v3, 10, v26")
    A("v_and_b32 v5, 31, v4")
    A("v_lshl_add_u32 v26, v5, 4, v26")
    A("v_cmp_gt_u32 vcc, 28, v3")
    A("v_mov_b32 v5, 0x7ffffff0")
    A("s_nop 0")
    A("v_cndmask_b32 v25, v5, v25, vcc")
    A("v_cndmask_b32 v26, v5, v26, vcc")
    A("v_cndmask_b32 v7, 0, 1.0, vcc")
    A("s_and_b32 s67, s3, 1")
    A("s_lshr_b32 s68, s3, 1")
    A("v_and_b32 v3, 15, v2")
    A("v_lshrrev_b32 v4, 4, v2")
    A("v_lshrrev_b32 v5, 3, v3")
    A("v_and_b32 v6, 7, v3")
    A("v_lshl_add_u32 v6, v5, 4, v6")
    A("v_lshlrev_b32 v5, 1, v5")
    A("v_xor_b32 v5, v4, v5")
    A("v_lshlrev_b32 v16, 6, v6")
    A("v_lshl_add_u32 v16, v5, 4, v16")
    A("s_lshl_b32 s56, s67, 13")
    A("v_add_u32 v16, s56, v16")
    A("v_lshlrev_b32 v6, 4, v6")
    A("v_lshrrev_b32 v5, 1, v4")
    A("v_lshl_add_u32 v6, v5, 10, v6")
    A("v_and_b32 v5, 1, v4")
    A("v_lshl_add_u32 v6, v5, 9, v6")
    A("v_lshrrev_b32 v60, 2, v3")
    A("v_lshl_add_u32 v61, v4, 3, v60")
    A("v_lshlrev_b32 v61, 9, v61")
    A("v_and_b32 v62, 1, v3")
    A("v_lshl_add_u32 v61, v62, 3, v61")
    A("s_lshl_b32 s56, s68, 8")
    A("s_add_u32 s56, s56, 65536")
    A("v_add_u32 v61, s56, v61")
    A("v_lshl_or_b32 v60, v60, 2, v5")
    A("v_and_b32 v62, 2, v3")
    A("v_xor_b32 v60, v60, v62")
    for j in range(8):
        A(f"v_xor_b32 v62, {4*(j>>1)+(j&1)}, v60")
        A(f"v_lshl_add_u32 v{17+j}, v62, 4, v61")
    A("v_lshlrev_b32 v5, 4, v2")
    A("s_and_b32 s56, s2, 7"); A("s_lshr_b32 s57, s2, 7"); A("s_lshl_b32 s56, s56, 1"); A("s_add_u32 s85, s56, s57")
    A("s_lshl_b32 s60, s85, 9"); A("s_lshl_b32 s56, s3, 7"); A("s_add_u32 s60, s60, s56")
    A("s_lshl_b32 s86, s3, 12")
    A("s_add_u32 s86, s86, 114688")
    srd(A, 28, 40, 448*4096*2)
    g.wq = Stager(g, "s[28:31]", 8192, "s60", "s86", [16384, 18432, 32768, 34816, 0, 2048], "v27", "v28", "v3", "v4", "w")
    g.wq.setup(); g.wq.setup_tr()
    A("s_lshl_b32 s69, s2, 2")
    A("s_add_u32 s69, s69, s3")
    A("s_lshl_b32 s70, s69, 12")
    A("v_and_b32 v246, 15, v2")
    A("v_lshlrev_b32 v246, 7, v246")
    A("v_add_u32 v247, s70, v246")
    A("s_lshl_b32 s70, s69, 11")
    A("v_add_u32 v246, s70, v246")
    srd(A, 32, 46, 4096*448*2); srd(A, 76, 50, 448*1792*2); srd(A, 80, 52, 448*1792*2)
    TWT = {TQ: ("v247", 28, 0), TQ + 2: ("v247", 28, 2048), 19: ("v247", 32, 0), 21: ("v247", 32, 2048), 23: ("v246", 76, 0), 25: ("v246", 80, 0)}
    ln = [lambda: A(f"s_waitcnt vmcnt({vm.newer(lambda t: t == 'ln')})")]
    for i in range(8):
        ln += [f"v_lshlrev_b32 v{40+2*i}, 16, v{32+i}", f"v_and_b32 v{41+2*i}, 0xffff0000, v{32+i}"]
    ln += ["v_add_f32 v56, v40, v41"] + [f"v_add_f32 v56, v56, v{40+i}" for i in range(2, 16)]
    ln += half_sum_l("v56", "v57") + ["v_mul_f32 v56, 0x3b124925, v56", "v_mov_b32 v58, 0"]
    for i in range(16):
        ln += [f"v_sub_f32 v57, v{40+i}, v56", "v_fmac_f32 v58, v57, v57"]
    ln += ["v_mul_f32 v58, v58, v7"] + half_sum_l("v58", "v57") + ["v_mul_f32 v58, 0x3b124925, v58"]
    ln += bf16_round_l("v56", "v56") + bf16_round_l("v58", "v58") + ["v_add_f32 v58, 0x3727c5ac, v58"] + bf16_round_l("v58", "v58")
    ln += ["v_sqrt_f32 v58, v58", "s_nop 0"] + bf16_round_l("v58", "v58") + ["v_rcp_f32 v58, v58"]
    ln += [f"v_sub_f32 v{40+i}, v{40+i}, v56" for i in range(16)]
    ln += [f"v_cvt_pk_bf16_f32 v{32+i}, v{40+2*i}, v{41+2*i}" for i in range(8)]
    for i in range(8):
        ln += [f"v_lshlrev_b32 v{40+2*i}, 16, v{32+i}", f"v_and_b32 v{41+2*i}, 0xffff0000, v{32+i}"]
    ln += [f"v_mul_f32 v{40+i}, v{40+i}, v58" for i in range(16)]
    ln += [f"v_cvt_pk_bf16_f32 v{32+[0,1,4,5,2,3,6,7][i]}, v{40+2*i}, v{41+2*i}" for i in range(8)]
    ln += [(f"buffer_store_dwordx4 v[32:35], v26, s[24:27], 0 offen{SC}", "sA"), (f"buffer_store_dwordx4 v[36:39], v26, s[24:27], 0 offen offset:512{SC}", "sA")]
    SETS = [64, 128]
    def reads(stage, st_):
        slot = stage % 4
        b = SETS[st_]
        ra = [f"ds_read_b128 {v(b+4*i,4)}, v16 offset:{slot*16384 + (32*(i>>1)+8*(i&1))*64}" for i in range(8)]
        rw = [[f"ds_read_b64_tr_b16 {v(b+32+4*j+2*t,2)}, v{17+j} offset:{slot*16384 + 2048*t}" for t in range(2)] for j in range(8)]
        out = []
        for i in range(8): out += [ra[i]] + rw[i]
        return out
    def mf(typ, i, j, st_, first=False):
        b = SETS[st_]
        acc = a((i*8+j)*4, 4)
        c = "0" if first else acc
        ca, w_ = v(b+4*i, 4), v(b+32+4*j, 4)
        return f"v_mfma_f32_16x16x32_bf16 {acc}, {w_}, {ca}, {c}" if typ == 0 else f"v_mfma_f32_16x16x32_bf16 {acc}, {ca}, {w_}, {c}"
    A("s_lshr_b32 s56, s2, 3")
    A("s_and_b32 s5, s56, 15")
    A("s_lshl_b32 s57, s5, 1")
    A("s_add_u32 s58, s57, s3")
    A("s_sub_u32 s59, 60, s57")
    A("s_add_u32 s59, s59, s3")
    A("s_cmp_lt_u32 s3, 2")
    A("s_cselect_b32 s58, s58, s59")
    A("s_mul_i32 s69, s58, 28672")
    XCH = [0, 65536, 16384, 81920, 32768, 98304, 49152]
    g.XCH = XCH
    def xdma(c):
        out = [f"s_add_u32 m0, s64, {XCH[c]}", f"s_add_u32 s56, s69, {c*4096}"]
        out += [(f"buffer_load_dwordx4 v5, s[24:27], s56 offen offset:{1024*i}{SC} lds", ("x", c)) for i in range(4)]
        return out
    vm0 = list(vm.ops)
    A("s_cmp_eq_u32 s7, 1")
    A("s_cbranch_scc1 PA_V")
    for typ in (0, 1):
        if typ: A.label("PA_V")
        vm.ops = list(vm0)
        A(f"s_waitcnt vmcnt({vm.newer(lambda t: t == ('d', 0))})")
        A("s_barrier")
        ST(2)
        emit(g, reads(0, 0))
        A("s_waitcnt lgkmcnt(0)")
        carry = []
        for s_ in range(32):
            sched = {}
            g0 = 0
            if s_ == 0:
                spread(sched, dma(2) + dma(3), 0, 23); g0 = 24
            def w(s_=s_):
                n = vm.newer(lambda t: t == ("d", s_ + 1))
                if s_ == FSA: n = min(n, vm.newer(lambda t: t == "sA"))
                A(f"s_waitcnt vmcnt({n})")
            if s_ < 31:
                sched.setdefault(g0, []).extend([w, "s_barrier"])
                spread(sched, reads(s_ + 1, (s_ + 1) % 2), g0 + 1, 54)
            if s_ == 31: sched.setdefault(0, []).append("s_barrier")
            if s_ + 4 < 32: spread(sched, dma(s_ + 4), g0 + 2, 48)
            if s_ == FSA: sched[g0].append(lambda: (A("s_lshl_b32 s56, s2, 2"), set_flag(g, "s56")))
            if TOUCH and s_ in TWT:
                tv, ts, to = TWT[s_]
                sched.setdefault(52, []).append((f"buffer_load_dword v248, {tv}, s[{ts}:{ts+3}], 0 offen offset:{to}", "t"))
            if s_ == LNS - 3 and not NOSIDE: sched.setdefault(51, []).extend([("buffer_load_dwordx4 v[32:35], v25, s[20:23], 0 offen", "ln"), ("buffer_load_dwordx4 v[36:39], v25, s[20:23], 0 offen offset:16", "ln")])
            if s_ == LNS and not NOSIDE: carry += ln
            if s_ == 5:
                def raise_dbg():
                    L = A.newlabel("RDBG")
                    A("s_or_b32 s56, s2, s3")
                    A(f"s_cbranch_scc1 {L}")
                    A("s_mov_b64 exec, 1")
                    A("global_store_dword v29, v30, s[92:93] sc1")
                    A("s_mov_b64 exec, -1")
                    A.label(L)
                sched[g0].append(raise_dbg)
            if TOUCH and s_ in TW: sched.setdefault(50, []).extend(touchW())
            if TOUCH and s_ == TA: sched.setdefault(50, []).extend(touchA(1))
            if s_ == FSA - 4:
                sched.setdefault(50, []).append(("global_load_dword v59, v29, s[92:93] sc1", "dbg"))
            if s_ == FSA - 1:
                def chk_dbg():
                    L = A.newlabel("DBG")
                    A(f"s_waitcnt vmcnt({vm.newer(lambda t: t == 'dbg')})")
                    A("s_mov_b32 s87, 0")
                    A.label(L)
                    A("v_cmp_ne_u32 vcc, 1, v59")
                    A(f"s_cbranch_vccz {L}_OK")
                    A("s_sleep 1")
                    A("global_load_dword v59, v29, s[92:93] sc1")
                    A("s_waitcnt vmcnt(0)")
                    A("s_add_u32 s87, s87, 1")
                    A(f"s_cmp_lt_u32 s87, {SPIN}")
                    A(f"s_cbranch_scc1 {L}")
                    A.label(L + "_OK")
                sched.setdefault(50, []).append(chk_dbg)
            if s_ == 24:
                sched.setdefault(50, []).append((f"buffer_load_dwordx4 v[56:59], v5, s[88:91], 0 offen offset:{F_SA*4} sc1", "pf"))
            if s_ == 26:
                def chk_sa():
                    L = A.newlabel("PSA")
                    A(f"s_waitcnt vmcnt({vm.newer(lambda t: t == 'pf')})")
                    A("s_mov_b32 s87, 0")
                    A.label(L)
                    A("v_and_b32 v56, v56, v57"); A("v_and_b32 v58, v58, v59"); A("v_and_b32 v56, v56, v58")
                    A("v_cmp_ne_u32 vcc, 1, v56")
                    A(f"s_cbranch_vccz {L}_OK")
                    A("s_sleep 1")
                    A(f"buffer_load_dwordx4 v[56:59], v5, s[88:91], 0 offen offset:{F_SA*4} sc1")
                    A("s_waitcnt vmcnt(0)")
                    A("s_add_u32 s87, s87, 1")
                    A(f"s_cmp_lt_u32 s87, {SPIN}")
                    A(f"s_cbranch_scc1 {L}")
                    A.label(L + "_OK")
                sched.setdefault(50, []).append(chk_sa)
            xc = {28: [0, 1], 29: [2, 3], 30: [4, 5], 31: [6]}.get(s_, [])
            if xc:
                items = []
                for c in xc: items += xdma(c)
                spread(sched, items, 2, 30)
            wk = {28: [0, 1], 29: [2, 3], 31: [4, 5]}.get(s_, [])
            if wk:
                items = []
                for ks in wk: items += g.wq.dma(ks)
                spread(sched, items, 34, 60)
            ms = [mf(typ, i, j, s_ % 2, first=(s_ == 0)) for i in range(8) for j in range(8)]
            run_sched(A, ms, sched, carry, 2, vm)
            if s_ < 31: A("s_waitcnt lgkmcnt(0)")
            if s_ in (7, 15, 23): ST(3 + s_ // 8)
            if g.ST2: g.ST2(s_)
        assert not carry
        ST(6)
        if g.ST2:
            ws_srd(A, 24, 54, STAMP_OFF + (1 << 20), 1 << 20)
            A("s_lshl_b32 s56, s2, 2"); A("s_add_u32 s56, s56, s3"); A("s_lshl_b32 s56, s56, 8")
            A("v_lshlrev_b32 v62, 2, v2")
            A("buffer_store_dword v63, v62, s[24:27], s56 offen")
        phaseB(g, typ)
        if typ == 0: A("s_branch PB_JOIN")
    A.label("PB_JOIN")

def phaseB(g, typ):
    A, ST, vm = g.A, g.ST, g.vm
    A("s_lshl_b32 s70, s4, 21")
    A("s_lshl_b32 s71, s6, 18")
    A("s_add_u32 s70, s70, s71")
    A("s_lshl_b32 s71, s67, 17")
    A("s_add_u32 s70, s70, s71")
    A("s_lshl_b32 s71, s68, 13")
    A("s_add_u32 s70, s70, s71")
    if typ: A("s_add_u32 s70, s70, 16384")
    for kb in range(4):
        A(f"s_add_u32 s{72+2*kb}, s70, {kb*32768}")
        A(f"s_add_u32 s{73+2*kb}, s70, {kb*32768+4096}")
    epi = []
    cnt = 0
    for u in range(8):
        for pp in range(4):
            if typ == 0: i, j0 = u, 2*pp; t0, t1 = (i*8+j0)*4, (i*8+j0+1)*4; kb, odd, db = i >> 1, i & 1, pp
            else: j, i0 = u, 2*pp; t0, t1 = (i0*8+j)*4, ((i0+1)*8+j)*4; kb, odd, db = pp, j & 1, j >> 1
            t = 32 + (cnt % 2) * 16; cnt += 1
            epi += [f"v_accvgpr_read_b32 v{t+r}, a{t0+r}" for r in range(4)]
            epi += [f"v_accvgpr_read_b32 v{t+4+r}, a{t1+r}" for r in range(4)]
            epi += [f"v_cvt_pk_bf16_f32 v{t+8+r}, v{t+2*r}, v{t+2*r+1}" for r in range(4)]
            epi.append((f"buffer_store_dwordx4 {v(t+8,4)}, v6, s[16:19], s{72+2*kb+(db>>1)} offen offset:{(db&1)*2048 + odd*128}{SC}", "kv"))
    QACC = 96
    XF = [64, 80]
    A("v_add_u32 v7, 0x10000, v5"); A("v_add_u32 v8, 0x20000, v5")
    def xreads(ks):
        b = XF[ks % 2]
        out = []
        for q in range(4):
            o = g.XCH[ks // 4] + q * 4096 + (ks % 4) * 1024
            out.append(f"ds_read_b128 {v(b+4*q,4)}, {['v5','v7','v8'][o >> 16]} offset:{o & 0xffff}")
        return out
    WF = [224, 232]
    A(f"s_waitcnt vmcnt({min(vm.newer(lambda t: t == ('x', 3)), vm.newer(lambda t: t == ('w', 0)))})")
    A("s_barrier")
    emit(g, xreads(0) + g.wq.tr(0, WF[0], WF[0] + 4))
    EPB = int(os.environ.get("EPB", "3"))
    for ks in range(28):
        sched = {}
        A("s_waitcnt lgkmcnt(0)")
        if ks + 1 < 28:
            def w(ks=ks):
                n = vm.newer(lambda t: t == ('w', ks + 1))
                if ks == 15: n = min(n, vm.newer(lambda t: t == ('x', 6)))
                A(f"s_waitcnt vmcnt({n})")
                if ks == 15: A("s_barrier")
            items = [w] + g.wq.tr(ks + 1, WF[(ks+1) % 2], WF[(ks+1) % 2] + 4) + xreads(ks + 1)
            if ks + 6 < 28: items += g.wq.dma(ks + 6)
            spread(sched, items, 0, 6)
        ms = []
        for q in range(4):
            for d in range(2):
                acc = v(QACC + (d*4+q)*16, 16)
                c = "0" if ks == 0 else acc
                ms.append(f"v_mfma_f32_32x32x16_bf16 {acc}, {v(WF[ks%2]+4*d,4)}, {v(XF[ks%2]+4*q,4)}, {c}")
        run_sched(A, ms, sched, epi, EPB + 1, vm)
    assert not epi, len(epi)
    ST(7)
    A("s_waitcnt vmcnt(0)")
    A("s_barrier")
    A("s_lshl_b32 s56, s4, 6"); A("s_lshl_b32 s57, s7, 5"); A("s_add_u32 s56, s56, s57"); A("s_lshl_b32 s57, s6, 2"); A("s_add_u32 s56, s56, s57")
    A(f"s_add_u32 s56, s56, {F_KV*4}")
    set_flag(g, "s56")

def phaseC(g):
    A, ST, vm = g.A, g.ST, g.vm
    VL16 = "v5"
    MC = ["v8", "v9"]; THR = ["v10", "v11"]; LS = ["v12", "v13"]; FAC = ["v14", "v15"]; TM = ["v16", "v17"]; MR = ["v18", "v19"]
    T0, T1, T2 = "v4", "v6", "v7"
    SEL = [20, 24]
    VQROW, VSTAT, VSTR = "v0", "v1", "v3"
    SB = [32, 64]
    WIN = 128
    QA = 0
    KV = "s[16:19]"
    def Oreg(gq, dbl, qb):
        b = (gq * 2 + dbl) * 2 + qb
        if b < 8: return ("v", 128 + b * 16)
        if b < 10: return ("v", 96 + (b - 8) * 16)
        return ("a", 160 + (b - 10) * 16)
    def OR(gq, dbl, qb):
        f, b = Oreg(gq, dbl, qb)
        return (a if f == "a" else v)(b, 16)
    allO = [(gq, d, q) for gq in range(4) for d in range(2) for q in range(2)]
    QACC = 96
    A("s_mov_b32 s4, s85")
    A("s_lshl_b32 s45, s3, 12")
    A(f"v_add_u32 {T0}, s45, {VL16}")
    for q in range(4):
        for d in range(2):
            b = QACC + (d*4+q)*16
            for r in range(8):
                A(f"v_cvt_pk_bf16_f32 v{b+r}, v{b+2*r}, v{b+2*r+1}")
            for s_ in range(2):
                A(f"ds_write_b128 {T0}, {v(b+4*s_,4)} offset:{q*16384 + (2*d+s_)*1024}")
    ws_srd(A, 20, 54, CTX_OFF, CTX_SZ)
    A("s_and_b32 s45, s3, 1")
    A("s_lshl_b32 s45, s45, 1")
    for gq in range(4):
        A(f"s_add_u32 s{64+gq}, s45, {gq+2}")
        A(f"s_and_b32 s{64+gq}, s{64+gq}, 3")
        A(f"s_lshl_b32 s{64+gq}, s{64+gq}, 12")
    A("s_lshl_b32 s45, s5, 1")
    A("s_sub_u32 s56, 64, s45")
    A("s_mul_i32 s57, s3, 17")
    A("s_min_u32 s57, s57, 50")
    A("s_add_u32 s58, s57, 17")
    A("s_cmp_ge_u32 s3, 2")
    A("s_cselect_b32 s45, 1, 0")
    A("s_sub_u32 s58, s58, s45")
    A("s_min_u32 s59, s58, s56")
    A("s_sub_i32 s59, s59, s57")
    A("s_max_i32 s59, s59, 0")
    A("s_max_u32 s60, s57, s56")
    A("s_sub_i32 s53, s58, s60")
    A("s_max_i32 s53, s53, 0")
    A("s_sub_u32 s60, s60, s56")
    A("s_cmp_gt_u32 s59, 0")
    A("s_cselect_b32 s34, 0, 1")
    A("s_cselect_b32 s40, s57, s60")
    A("s_cselect_b32 s7, s59, s53")
    A("s_cselect_b32 s53, s53, 0")
    A("s_mov_b32 s52, 0")
    A("s_cmp_gt_u32 s56, 50")
    A("s_cselect_b32 s61, 0x8000, 0")
    A("s_add_u32 s61, s61, 98304")
    A("v_and_b32 v32, 31, v2")
    A("v_lshrrev_b32 v33, 5, v2")
    A(f"v_lshlrev_b32 {VSTR}, 6, v32")
    A(f"v_add_u32 {VSTR}, s61, {VSTR}")
    A(f"v_lshlrev_b32 {VSTAT}, 4, v32")
    A(f"v_add_u32 {VSTAT}, s61, {VSTAT}")
    A(f"v_add_u32 {VSTAT}, 4096, {VSTAT}")
    A("v_lshlrev_b32 v34, 2, v33")
    A("v_sub_u32 v34, v32, v34")
    A(f"v_cvt_f32_i32 {VQROW}, v34")
    A(f"v_add_f32 {VQROW}, 0.5, {VQROW}")
    A("v_mov_b32 v35, 0x3f80")
    A("v_mov_b32 v36, 0x3f800000")
    for s_ in range(2):
        for p in range(4):
            e0 = 2*p
            c0 = 16*s_ + 8*(e0 >> 2) + (e0 & 3)
            A(f"v_cmp_eq_u32 vcc, {c0}, v34")
            A(f"v_cmp_eq_u32 s[50:51], {c0+1}, v34")
            A("s_nop 1")
            A(f"v_cndmask_b32 v{SEL[s_]+p}, 0, v35, vcc")
            A(f"v_cndmask_b32 v{SEL[s_]+p}, v{SEL[s_]+p}, v36, s[50:51]")
    A(f"s_mov_b32 s68, {f32bits(CSC):#x}")
    A(f"s_mov_b32 s69, {f32bits(TTHR/CSC):#x}")
    A("v_and_b32 v32, 15, v2")
    A("v_lshlrev_b32 v32, 2, v32")
    A("s_lshl_b32 s45, s4, 6")
    A(f"s_add_u32 s45, s45, {F_KV*4}")
    poll(g, 36, "v32", "s45")
    ST(8)
    A("s_lshl_b32 s48, s4, 21")
    A("s_lshl_b32 s35, s40, 15")
    A("s_add_u32 s35, s35, s48")
    for f in range(8):
        if f % 4 == 0: A(f"s_add_u32 s45, s35, {(f//4)*4096}")
        A(f"buffer_load_dwordx4 {a(WIN+4*f,4)}, {VL16}, {KV}, s45 offen offset:{(f%4)*1024}{SC}")
    A("s_waitcnt lgkmcnt(0)")
    A("s_barrier")
    A(f"v_mov_b32 v32, {f32bits(-BIG):#x}"); A("v_mov_b32 v33, 0"); A("v_mov_b32 v34, v32"); A("v_mov_b32 v35, 0")
    for q in range(2):
        A(f"ds_write_b128 {VSTR}, v[32:35] offset:{q*2048+32}")
        A(f"ds_write_b128 {VSTR}, v[32:35] offset:{q*2048+48}")
    A("s_cmp_eq_u32 s34, 0")
    A("s_cselect_b32 s45, 0x8000, 0")
    A(f"v_add_u32 {T0}, s45, {VL16}")
    for i in range(32):
        A(f"ds_read_b128 {a(QA+4*i,4)}, {T0} offset:{i*1024}")
    def zeroO():
        out = []
        for (gq, d, q) in allO:
            f, b = Oreg(gq, d, q)
            for r in range(16):
                out.append(f"v_mov_b32 v{b+r}, 0" if f == "v" else f"v_accvgpr_write_b32 a{b+r}, 0")
        return out
    def stream(items, fillers, budget=None, first_gap=0):
        cst = [3 if callable(x) else cost(x) for x in fillers]
        tot = sum(cst); ng = len(items) - first_gap
        fi = 0; done = 0
        for gi, (pre, m, post) in enumerate(items):
            for x in pre: A(x)
            A(m)
            for x in post: A(x)
            if gi >= first_gap:
                target = tot * (gi - first_gap + 1) / ng
                while fi < len(fillers) and done + cst[fi] / 2 <= target:
                    x = fillers[fi]
                    if callable(x): x()
                    else: A(x)
                    done += cst[fi]; fi += 1
        while fi < len(fillers):
            x = fillers[fi]; fi += 1
            if callable(x): x()
            else: A(x)
    def ld(sl, soff, f): return f"buffer_load_dwordx4 {a(sl,4)}, {VL16}, {KV}, {soff} offen offset:{(f%4)*1024}{SC}"
    def X_items(p, loads2):
        items = []
        for f in range(16):
            sl = WIN + 4 * (f % 8)
            for q in range(2):
                acc = v(SB[p] + q*16, 16)
                c = "0" if f == 0 else acc
                pre = ["s_waitcnt vmcnt(7)"] if q == 0 else []
                post = []
                if q == 1:
                    if f < 8:
                        if f % 4 == 0: post.append(f"s_add_u32 s45, s36, {(2+f//4)*4096}")
                        post.append(ld(sl, "s45", f))
                    else: post.append(ld(sl, loads2[(f-8)//4], f))
                items.append((pre, f"v_mfma_f32_32x32x16_bf16 {acc}, {a(sl,4)}, {a(QA+(q*16+f)*4,4)}, {c}", post))
        return items
    def Y_items(p, loads2, first=False):
        items = []
        for f in range(16):
            sl = WIN + 4 * (f % 8)
            gq, d, s_ = f // 4, (f // 2) % 2, f % 2
            for q in range(2):
                acc = OR(gq, d, q)
                pre = ["s_waitcnt vmcnt(7)"] if q == 0 else []
                post = []
                if q == 1:
                    if f < 8:
                        if f % 4 == 0: post.append(f"s_add_u32 s45, s37, s{64+2+f//4}")
                        post.append(ld(sl, "s45", f))
                    else: post.append(ld(sl, loads2[(f-8)//4], f))
                items.append((pre, f"v_mfma_f32_32x32x16_bf16 {acc}, {a(sl,4)}, {v(SB[p]+q*16+4*s_,4)}, {'0' if (first and s_ == 0) else acc}", post))
        return items
    def expq(p, q):
        b = SB[p] + q*16
        out = []
        def post(k):
            return [f"v_add_f32 {LS[q]}, {LS[q]}, v{b+2*k}", f"v_add_f32 {LS[q]}, {LS[q]}, v{b+2*k+1}",
                    f"v_cvt_pk_bf16_f32 v{b+k}, v{b+2*k}, v{b+2*k+1}"]
        for k in range(8):
            out.append(f"v_fma_f32 v{b+2*k}, v{b+2*k}, s68, -{MC[q]}")
            out.append(f"v_fma_f32 v{b+2*k+1}, v{b+2*k+1}, s68, -{MC[q]}")
            out.append(f"v_exp_f32 v{b+2*k}, v{b+2*k}")
            out.append(f"v_exp_f32 v{b+2*k+1}, v{b+2*k+1}")
            if k > 0: out += post(k-1)
        out.append("s_nop 0")
        out += post(7)
        return out
    def maxq(p, q):
        b = SB[p] + q*16
        out = [f"v_max3_f32 {TM[q]}, v{b}, v{b+1}, v{b+2}"]
        for r in range(3, 15, 2):
            out.append(f"v_max3_f32 {TM[q]}, {TM[q]}, v{b+r}, v{b+r+1}")
        out.append(f"v_max_f32 {TM[q]}, {TM[q]}, v{b+15}")
        return out
    def mask_code(p):
        A("s_lshl_b32 s63, s6, 1")
        A("s_sub_u32 s63, s63, s40")
        A("s_lshl_b32 s63, s63, 5")
        A(f"v_cvt_f32_i32 {T0}, s63")
        A(f"v_add_f32 {T0}, {T0}, {VQROW}")
        for q in range(2):
            A(f"v_mov_b32 {T1}, {T0}" if q == 0 else f"v_add_f32 {T1}, 0x42000000, {T0}")
            A(f"v_mul_f32 {T1}, {f32bits(BIG):#x}, {T1}")
            b = SB[p] + q*16
            for r in range(16):
                cr = 8*(r >> 2) + (r & 3)
                A(f"v_add_f32 {T2}, {f32bits(-cr*BIG):#x}, {T1}" if cr else f"v_mov_b32 {T2}, {T1}")
                A(f"v_min_f32 v{b+r}, v{b+r}, {T2}")
    def rescaleO(blocks=None):
        A("s_nop 7"); A("s_nop 7")
        for (gq, d, q) in (blocks or allO):
            f, b = Oreg(gq, d, q)
            for r in range(16):
                if f == "v":
                    A(f"v_mul_f32 v{b+r}, v{b+r}, {FAC[q]}")
                else:
                    A(f"v_accvgpr_read_b32 {T0}, a{b+r}")
                    A(f"v_mul_f32 {T0}, {T0}, {FAC[q]}")
                    A(f"v_accvgpr_write_b32 a{b+r}, {T0}")
        A("s_nop 1")
    rare_blocks = []
    def P1(p, tag):
        def maskbr():
            A("s_cmp_ge_u32 s40, s41")
            A(f"s_cbranch_scc1 PC_MASK_{tag}")
            A.label(f"PC_MASKRET_{tag}")
        def chk():
            A(f"v_cmp_gt_f32 vcc, {TM[0]}, {THR[0]}")
            A(f"v_cmp_gt_f32 s[50:51], {TM[1]}, {THR[1]}")
            A("s_or_b64 s[50:51], vcc, s[50:51]")
            A(f"s_cbranch_scc1 PC_RARE_{tag}")
            A.label(f"PC_RARERET_{tag}")
        rare_blocks.append((p, tag))
        return [maskbr] + maxq(p, 0) + maxq(p, 1) + [chk, "s_add_u32 s40, s40, 1"] + expq(p, 0)[:CUT]
    STEP = 32768
    def pack_l(gq, addr, off, tmp):
        out = []
        for d in range(2):
            for q in range(2):
                f, b = Oreg(gq, d, q)
                if f == "a":
                    t = tmp + ((d*2+q) % 2) * 16
                    out += [f"v_accvgpr_read_b32 v{t+r}, a{b+r}" for r in range(16)]
                    b = t
                out += [f"v_cvt_pk_bf16_f32 v{b+r}, v{b+2*r}, v{b+2*r+1}" for r in range(8)]
                out += [f"ds_write_b128 {addr}, {v(b+4*s_,4)} offset:{off + ((d*2+q)*2+s_)*1024}" for s_ in range(2)]
        return out
    def xaddr(dst, wreg):
        A(f"s_lshr_b32 s43, {wreg}, 1")
        A("s_mul_i32 s43, s43, 98304")
        A(f"s_and_b32 {dst}, {wreg}, 1")
        A(f"s_lshl_b32 {dst}, {dst}, 14")
        A(f"s_add_u32 {dst}, {dst}, s43")
        A(f"s_add_u32 {dst}, {dst}, 32768")
    def seg_head():
        A("s_sub_u32 s6, 31, s5")
        A("s_cmp_eq_u32 s34, 0")
        A("s_cselect_b32 s6, s6, s5")
        A("s_lshl_b32 s41, s6, 1")
        A("s_mov_b32 s42, 0")
        A(f"v_mov_b32 {LS[0]}, 0"); A(f"v_mov_b32 {LS[1]}, 0")
        xaddr("s45", "s3")
        A("s_lshl_b32 s43, s3, 15")
        A("s_lshl_b32 s44, s64, 1")
        A("s_add_u32 s43, s43, s44")
        A("s_lshr_b32 s44, s3, 1")
        A("s_xor_b32 s49, s34, 1")
        A("s_and_b32 s49, s49, s44")
        A("s_cselect_b32 s45, s43, s45")
        A(f"v_add_u32 v28, s45, {VL16}")
        A("s_mov_b32 s36, s35")
        A(f"s_add_u32 s43, s35, {STEP}")
        A(f"s_add_u32 s44, s35, {STEP+4096}")
        A("s_add_u32 s45, s35, 16384")
        A("s_add_u32 s38, s45, s64")
        A("s_add_u32 s39, s45, s65")
        A("s_cmp_gt_u32 s7, 1")
        A("s_cselect_b32 s43, s43, s38")
        A("s_cselect_b32 s44, s44, s39")
        A("s_waitcnt lgkmcnt(0)")
    seg_head()
    stream(X_items(0, ["s43", "s44"]), [])
    A.label("PC_X0DONE")
    A("s_nop 7"); A("s_nop 3")
    A("s_cmp_ge_u32 s40, s41")
    A("s_cbranch_scc0 PC_NOMASK0")
    mask_code(0)
    A.label("PC_NOMASK0")
    for x in maxq(0, 0) + maxq(0, 1): A(x)
    xhalf(A, "v_max_f32", TM[0], T0)
    xhalf(A, "v_max_f32", TM[1], T1)
    A("s_lshl_b32 s45, s34, 10")
    A(f"v_add_u32 {T1}, s45, {VSTAT}")
    A("s_cmp_lg_u32 s52, 0")
    A("s_cbranch_scc1 PC_NOPUB")
    A("s_lshl_b32 s43, s3, 2")
    A(f"v_add_u32 {T0}, s43, {T1}")
    A(f"v_xor_b32 {T2}, 1024, {T0}")
    A(f"v_mov_b32 v{SB[1]}, {f32bits(-BIG):#x}")
    for q in range(2):
        A(f"ds_write_b32 {T0}, {TM[q]} offset:{q*512}")
        A(f"ds_write_b32 {T2}, v{SB[1]} offset:{q*512}")
    A("s_waitcnt lgkmcnt(0)")
    A("s_barrier")
    A.label("PC_NOPUB")
    for q in range(2):
        A(f"ds_read_b128 {v(SB[1]+q*4,4)}, {T1} offset:{q*512}")
    A("s_waitcnt lgkmcnt(0)")
    for q in range(2):
        b = SB[1] + q*4
        A(f"v_max3_f32 {MR[q]}, v{b}, v{b+1}, v{b+2}")
        A(f"v_max_f32 {MR[q]}, {MR[q]}, v{b+3}")
        A(f"v_add_f32 {THR[q]}, s69, {MR[q]}")
        A(f"v_cmp_gt_f32 vcc, {TM[q]}, {THR[q]}")
        A("s_nop 1")
        A(f"v_cndmask_b32 {MR[q]}, {MR[q]}, {TM[q]}, vcc")
        A(f"v_mul_f32 {MC[q]}, s68, {MR[q]}")
        A(f"v_add_f32 {THR[q]}, s69, {MR[q]}")
    A("s_add_u32 s40, s40, 1")
    for x in expq(0, 0)[:CUT]: A(x)
    A("s_cmp_eq_u32 s7, 1")
    A("s_cbranch_scc1 PC_TAILF")
    def body(p, tag, first=False):
        A(f"s_add_u32 s36, s35, {STEP}")
        A("s_add_u32 s37, s35, 16384")
        A("s_add_u32 s43, s37, s64")
        A("s_add_u32 s44, s37, s65")
        stream(X_items(p ^ 1, ["s43", "s44"]), expq(p, 0)[CUT:] + expq(p, 1))
        A(f"s_add_u32 s43, s35, {2*STEP}")
        A(f"s_add_u32 s44, s35, {2*STEP+4096}")
        A(f"s_add_u32 s45, s35, {STEP+16384}")
        A("s_add_u32 s38, s45, s64")
        A("s_add_u32 s39, s45, s65")
        A("s_cmp_gt_u32 s7, 2")
        A("s_cselect_b32 s43, s43, s38")
        A("s_cselect_b32 s44, s44, s39")
        stream(Y_items(p, ["s43", "s44"], first), P1(p ^ 1, tag), first_gap=2)
        A("s_cmp_lg_u32 s42, 0")
        A(f"s_cbranch_scc1 PC_PEND_{tag}")
        A.label(f"PC_PENDRET_{tag}")
        A(f"s_add_u32 s35, s35, {STEP}")
        A("s_sub_u32 s7, s7, 1")
        A("s_cmp_eq_u32 s7, 1")
    body(0, "BF", first=True)
    A("s_cbranch_scc1 PC_TAIL1")
    A("s_branch PC_LOOPB")
    A.label("PC_LOOP")
    body(0, "B0")
    A("s_cbranch_scc1 PC_TAIL1")
    A.label("PC_LOOPB")
    body(1, "B1")
    A("s_cbranch_scc0 PC_LOOP")
    for (lab, p, first) in (("0", 0, False), ("1", 1, False), ("F", 0, True)):
        A.label(f"PC_TAIL{lab}")
        for x in expq(p, 0)[CUT:] + expq(p, 1): A(x)
        A("s_add_u32 s37, s35, 16384")
        A("s_cmp_lg_u32 s53, 0")
        A(f"s_cselect_b32 s43, s48, {KV_SZ:#x}")
        A("s_add_u32 s44, s43, 4096")
        items = Y_items(p, ["s43", "s44"], first)
        qr = [f"ds_read_b128 {a(QA+4*i,4)}, {VL16} offset:{i*1024}" for i in range(32)]
        stream(items[:12], qr)
        stream(items[12:20], pack_l(0, "v28", 0, 0))
        stream(items[20:], pack_l(1, "v28", 8192, 0))
        if lab != "F": A("s_branch PC_SEGEND")
    A.label("PC_SEGEND")
    ST(9)
    xhalf(A, "v_add_f32", LS[0], T0)
    xhalf(A, "v_add_f32", LS[1], T1)
    def put_stats(slot_sgpr):
        A(f"v_add_u32 {T0}, {slot_sgpr}, {VSTR}")
        for q in range(2):
            A(f"v_mov_b32 v{SB[1]+2*q}, {MR[q]}")
            A(f"v_mov_b32 v{SB[1]+2*q+1}, {LS[q]}")
            A(f"ds_write_b64 {T0}, {v(SB[1]+2*q,2)} offset:{q*2048}")
    A("s_cmp_eq_u32 s49, 0")
    A("s_cbranch_scc1 PC_NODUMP")
    A("s_lshl_b32 s45, s3, 3")
    A("s_add_u32 s45, s45, 16")
    put_stats("s45")
    A(f"v_xor_b32 {T2}, 0x4000, v28")
    A("s_mov_b32 s34, 1")
    A("s_cmp_eq_u32 s53, 0")
    A("s_cbranch_scc1 PC_EMPTIED")
    A("s_mov_b32 s7, s53")
    A("s_mov_b32 s53, 0")
    A("s_mov_b32 s52, 1")
    A("s_mov_b32 s40, 0")
    A("s_mov_b32 s35, s48")
    seg_head()
    stream(X_items(0, ["s43", "s44"]), pack_l(2, T2, 0, SB[1]) + pack_l(3, T2, 8192, SB[1]))
    A("s_branch PC_X0DONE")
    A.label("PC_EMPTIED")
    for x in pack_l(2, T2, 0, SB[0]) + pack_l(3, T2, 8192, SB[0]): A(x)
    for x in zeroO()[128:]: A(x)
    for q in range(2):
        A(f"v_mov_b32 {MR[q]}, {f32bits(-BIG):#x}"); A(f"v_mov_b32 {LS[q]}, 0")
    A.label("PC_NODUMP")
    A("s_lshl_b32 s45, s3, 3")
    put_stats("s45")
    A.label("PC_SENT")
    A("s_waitcnt lgkmcnt(0)")
    A("s_barrier")
    A("s_lshr_b32 s45, s3, 1")
    A("s_lshl_b32 s45, s45, 4")
    A(f"v_add_u32 {T0}, s45, {VSTR}")
    for q in range(2):
        A(f"ds_read_b128 {v(SB[0]+q*8,4)}, {T0} offset:{q*2048}")
        A(f"ds_read_b128 {v(SB[0]+q*8+4,4)}, {T0} offset:{q*2048+32}")
    A("s_cmp_ge_u32 s56, 50"); A("s_cselect_b32 s57, 1, 0")
    A("s_cmp_eq_u32 s3, 3"); A("s_cselect_b32 s58, s57, 0")
    A("s_cmp_eq_u32 s3, 2"); A("s_cselect_b32 s57, s57, 0")
    A("s_cmp_gt_u32 s56, 34"); A("s_cselect_b32 s59, 1, 0")
    A("s_cmp_gt_u32 s56, 50"); A("s_cselect_b32 s60, 1, 0")
    A("s_cmp_lt_u32 s3, 2"); A("s_cselect_b32 s59, s59, 0"); A("s_cselect_b32 s60, s60, 0")
    A("s_and_b32 s45, s3, 1")
    A("s_cmp_eq_u32 s45, 1")
    A("s_cselect_b64 s[62:63], -1, 0")
    A("s_waitcnt lgkmcnt(0)")
    for q in range(2):
        b = SB[0] + q*8
        A(f"v_max3_f32 {T0}, v{b}, v{b+2}, v{b+4}")
        A(f"v_max_f32 {T0}, {T0}, v{b+6}")
        for e in range(4):
            A(f"v_sub_f32 v{b+2*e}, v{b+2*e}, {T0}")
            A(f"v_mul_f32 v{b+2*e}, s68, v{b+2*e}")
            A(f"v_exp_f32 v{b+2*e}, v{b+2*e}")
        A("s_nop 0")
        A(f"v_mul_f32 {LS[q]}, v{b}, v{b+1}")
        for e in range(1, 4):
            A(f"v_fmac_f32 {LS[q]}, v{b+2*e}, v{b+2*e+1}")
        A(f"v_rcp_f32 {LS[q]}, {LS[q]}")
        A(f"v_cndmask_b32 {FAC[q]}, v{b}, v{b+2}, s[62:63]")
        A(f"v_cndmask_b32 {TM[q]}, v{b+2}, v{b}, s[62:63]")
    own = allO[8:]
    A("s_cmp_lg_u32 s57, 0")
    A("s_cbranch_scc1 PC_NORESC")
    A(f"v_cmp_neq_f32 vcc, 1.0, {FAC[0]}")
    A(f"v_cmp_neq_f32 s[50:51], 1.0, {FAC[1]}")
    A("s_or_b64 s[50:51], vcc, s[50:51]")
    A("s_cbranch_scc0 PC_NORESC")
    rescaleO(own)
    A.label("PC_NORESC")
    RB = 128
    def receive(tag, fq):
        for i in range(16):
            A(f"ds_read_b128 {v(RB+4*i,4)}, {T1} offset:{i*1024}")
        A(f"v_cmp_neq_f32 vcc, 1.0, {fq[0]}")
        A(f"v_cmp_neq_f32 s[50:51], 1.0, {fq[1]}")
        A("s_or_b64 s[50:51], vcc, s[50:51]")
        A(f"s_cbranch_scc0 PC_RX_{tag}")
        A("s_waitcnt lgkmcnt(0)")
        for i in range(16):
            q = (i >> 1) & 1
            for r in range(4):
                x = f"v{RB+4*i+r}"
                A(f"v_lshlrev_b32 {T0}, 16, {x}")
                A(f"v_and_b32 {x}, 0xffff0000, {x}")
                A(f"v_mul_f32 {T0}, {T0}, {fq[q]}")
                A(f"v_mul_f32 {x}, {x}, {fq[q]}")
                A(f"v_cvt_pk_bf16_f32 {x}, {T0}, {x}")
        A("s_nop 1")
        A.label(f"PC_RX_{tag}")
        for i in range(16):
            gq, d, q, s_ = 2 + (i >> 3), (i >> 2) & 1, (i >> 1) & 1, i & 1
            A(f"s_waitcnt lgkmcnt({15-i})")
            acc = OR(gq, d, q)
            A(f"v_mfma_f32_32x32x16_bf16 {acc}, {v(SEL[s_],4)}, {v(RB+4*i,4)}, {acc}")
    A("s_cmp_lg_u32 s58, 0")
    A("s_cbranch_scc1 PC_NOP")
    A("s_xor_b32 s44, s3, 1")
    xaddr("s45", "s44")
    A(f"v_add_u32 {T1}, s45, {VL16}")
    receive("P", TM)
    A.label("PC_NOP")
    for k, fl in ((0, "s59"), (1, "s60")):
        A(f"s_cmp_eq_u32 {fl}, 0")
        A(f"s_cbranch_scc1 PC_NOD{k}")
        A("s_lshl_b32 s45, s3, 14")
        A(f"s_add_u32 s45, s45, {65536 + k*32768}")
        A(f"v_add_u32 {T1}, s45, {VL16}")
        receive(f"D{k}", [f"v{SB[0]+q*8+4+2*k}" for q in range(2)])
        A.label(f"PC_NOD{k}")
    A("s_sub_u32 s6, 31, s5")
    A("s_cmp_lt_u32 s3, 2")
    A("s_cselect_b32 s6, s6, s5")
    A("s_lshl_b32 s45, s6, 19")
    A("s_lshl_b32 s43, s4, 14")
    A("s_add_u32 s45, s45, s43")
    A("s_and_b32 s43, s3, 1")
    A("s_lshl_b32 s43, s43, 13")
    A("s_add_u32 s45, s45, s43")
    A("s_add_u32 s44, s45, 262144")
    A("s_add_u32 s46, s45, 4096")
    A("s_add_u32 s47, s44, 4096")
    A("s_nop 7")
    for n_, (gq, d, q) in enumerate(own):
        f, b = Oreg(gq, d, q)
        t = SB[1] + (n_ % 2) * 16
        if f == "a":
            for r in range(16): A(f"v_accvgpr_read_b32 v{t+r}, a{b+r}")
            b = t
        for r in range(0, 16, 2): A(f"v_pk_mul_f32 {v(t+r,2)}, {v(b+r,2)}, v[12:13] op_sel:[0,{q}] op_sel_hi:[1,{q}]")
        for r in range(8): A(f"v_cvt_pk_bf16_f32 v{t+r}, v{t+2*r}, v{t+2*r+1}")
        for s_ in range(2):
            A(f"buffer_store_dwordx4 {v(t+4*s_,4)}, {VL16}, s[20:23], s{[45,44,46,47][(gq-2)*2+q]} offen offset:{(2*d+s_)*1024}{SC}")
    A("s_branch PC_DONE")
    for (p, tag) in rare_blocks:
        A.label(f"PC_MASK_{tag}")
        mask_code(p)
        A(f"s_branch PC_MASKRET_{tag}")
        A.label(f"PC_RARE_{tag}")
        for q in range(2):
            xhalf(A, "v_max_f32", TM[q], T0)
            A(f"v_max_f32 {TM[q]}, {TM[q]}, {MR[q]}")
            A(f"v_sub_f32 {T1}, {MR[q]}, {TM[q]}")
            A(f"v_mul_f32 {T1}, s68, {T1}")
            A(f"v_exp_f32 {FAC[q]}, {T1}")
            A(f"v_mov_b32 {MR[q]}, {TM[q]}")
            A(f"v_mul_f32 {MC[q]}, s68, {MR[q]}")
            A(f"v_add_f32 {THR[q]}, s69, {MR[q]}")
            A(f"v_mul_f32 {LS[q]}, {LS[q]}, {FAC[q]}")
        A("s_mov_b32 s42, 1")
        A(f"s_branch PC_RARERET_{tag}")
        A.label(f"PC_PEND_{tag}")
        rescaleO()
        A("s_mov_b32 s42, 0")
        A(f"s_branch PC_PENDRET_{tag}")
    A.label("PC_DONE")
    ST(10)

def reduce4(ACC):
    o = ["v_add_u32 v4, s86, v5", "s_nop 7", "s_nop 2"]
    for b in range(4):
        for r in range(4):
            o.append(f"ds_write_b128 v4, {v(ACC+b*16+4*r,4)} offset:{b*4096 + r*1024}")
    o += ["s_waitcnt lgkmcnt(0)", "s_barrier", "s_lshl_b32 s45, s3, 12", "v_add_u32 v4, s45, v5", "v_add_u32 v28, 81920, v4"]
    for src in range(4):
        for r in range(4):
            o.append(f"ds_read_b128 {v(ACC+src*16+4*r,4)}, {'v4' if src < 2 else 'v28'} offset:{(src%2)*40960 + r*1024}")
    o.append("s_waitcnt lgkmcnt(0)")
    for r in range(0, 16, 2):
        o.append(f"v_pk_add_f32 {v(ACC+r,2)}, {v(ACC+r,2)}, {v(ACC+16+r,2)}")
        o.append(f"v_pk_add_f32 {v(ACC+32+r,2)}, {v(ACC+32+r,2)}, {v(ACC+48+r,2)}")
    for r in range(0, 16, 2):
        o.append(f"v_pk_add_f32 {v(ACC+r,2)}, {v(ACC+r,2)}, {v(ACC+32+r,2)}")
    return o

def add_resid(ACC, RES, OUT):
    o = []
    for r in range(8):
        o.append(f"v_cvt_pk_bf16_f32 v{ACC+16+r}, v{ACC+2*r}, v{ACC+2*r+1}")
    for r in range(8):
        o += [f"v_lshlrev_b32 v{ACC+2*r}, 16, v{ACC+16+r}", f"v_and_b32 v{ACC+2*r+1}, 0xffff0000, v{ACC+16+r}",
              f"v_lshlrev_b32 v{ACC+32+2*r}, 16, v{RES+r}", f"v_and_b32 v{ACC+32+2*r+1}, 0xffff0000, v{RES+r}"]
    for r in range(0, 16, 2):
        o.append(f"v_pk_add_f32 {v(ACC+r,2)}, {v(ACC+r,2)}, {v(ACC+32+r,2)}")
    for r in range(8):
        o.append(f"v_cvt_pk_bf16_f32 v{OUT+r}, v{ACC+2*r}, v{ACC+2*r+1}")
    return o

def xhalf_l(op, x, t):
    return [f"v_mov_b32 {t}, {x}", "s_nop 1", f"v_permlane32_swap_b32 {x}, {t}", f"{op} {x}, {x}, {t}"]

def mix(g, main, side, every):
    k = 0
    for i, x in enumerate(main):
        emit(g, [x])
        if (i + 1) % every == 0 and k < len(side) and not (isinstance(x, str) and x.startswith("s_nop")):
            emit(g, side[k]); k += 1
    return side[k:]

def phaseDEF(g):
    A, ST, vm = g.A, g.ST, g.vm
    vm.ops = []
    ACC = 32
    A("s_load_dwordx2 s[36:37], s[0:1], 0")
    A("s_load_dwordx2 s[38:39], s[0:1], 72")
    A("s_load_dwordx2 s[56:57], s[0:1], 40")
    A("s_load_dwordx4 s[60:63], s[0:1], 56")
    A("s_lshr_b32 s40, s2, 3")
    A("s_mul_i32 s6, s40, 9363")
    A("s_lshr_b32 s6, s6, 16")
    A("s_mul_i32 s7, s6, 7")
    A("s_sub_u32 s7, s40, s7")
    A("s_and_b32 s41, s2, 7")
    A("s_lshl_b32 s41, s41, 2")
    A("s_add_u32 s6, s6, s41")
    A("s_mul_i32 s86, s3, 40960")
    A(f"s_mul_i32 s42, s3, {1024*896}")
    A("s_lshl_b32 s44, s7, 7")
    A("s_add_u32 s42, s42, s44")
    A(f"s_mul_i32 s43, s6, {2*256*1024}")
    A("s_lshl_b32 s44, s3, 16")
    A("s_add_u32 s43, s43, s44")
    A(f"v_add_u32 v6, {256*1024}, v5")
    W = 16
    wo = Stager(g, "s[32:35]", 896, "s42", "s86", [2048*i for i in range(W)], "v0", "v1", "v3", "v28", "a")
    wo.setup(("v32", "v33")); wo.setup_tr(("v32", "v33"))
    A("s_waitcnt vmcnt(0) lgkmcnt(0)")
    A("s_barrier")
    srd(A, 32, 56, 4096*448*2); srd(A, 76, 60, 448*1792*2); srd(A, 80, 62, 448*1792*2)
    A("s_lshl_b32 s45, s5, 6"); A("s_lshl_b32 s44, s4, 2"); A("s_add_u32 s45, s45, s44")
    A(f"s_add_u32 s45, s45, {F_CTX*4}")
    set_flag(g, "s45")
    A("s_sub_u32 s45, 31, s5"); A("s_lshl_b32 s45, s45, 6"); A("s_add_u32 s45, s45, s44")
    A(f"s_add_u32 s45, s45, {F_CTX*4}")
    set_flag(g, "s45")
    A("s_cmp_lt_u32 s40, 28")
    A("s_cbranch_scc0 MEGA_FIN")
    for ks in range(W): emit(g, wo.dma(ks))
    ws_srd(A, 16, 54, H_OFF, H_SZ)
    srd(A, 24, 36, 2048*448*2)
    srd(A, 28, 38, 2048*448*2)
    ws_srd(A, 8, 54, HS_OFF, HS_SZ)
    A("s_lshr_b32 s46, s3, 1"); A("s_lshl_b32 s45, s7, 1"); A("s_add_u32 s46, s46, s45")
    A("s_and_b32 s47, s3, 1"); A("s_lshl_b32 s45, s6, 1"); A("s_add_u32 s47, s47, s45")
    A("v_and_b32 v7, 31, v2")
    A("v_lshrrev_b32 v8, 5, v2")
    A("s_lshl_b32 s45, s47, 5")
    A("v_add_u32 v7, s45, v7")
    A("v_mul_u32_u24 v9, 896, v7")
    A("v_lshl_add_u32 v9, v8, 3, v9")
    A("s_lshl_b32 s48, s46, 6")
    A("s_mul_i32 s49, s47, 28672")
    A("s_lshl_b32 s45, s46, 11")
    A("s_add_u32 s49, s49, s45")
    for gq in range(4):
        A(f"buffer_load_dwordx2 {v(12+2*gq,2)}, v9, s[24:27], s48 offen offset:{16*gq}")
    A("v_and_b32 v10, 15, v2")
    A("v_lshlrev_b32 v10, 2, v10")
    A("s_lshl_b32 s45, s6, 6")
    A(f"s_add_u32 s45, s45, {F_CTX*4}")
    poll(g, 11, "v10", "s45")
    ST(11)
    def ldB(ks):
        o = (ks % 4) * 1024; sl = ks % W
        out = [(f"buffer_load_dwordx4 {a(sl*8,4)}, v5, s[20:23], s43 offen offset:{o}{SC}", ("b", ks)),
               (f"buffer_load_dwordx4 {a(sl*8+4,4)}, v6, s[20:23], s43 offen offset:{o}{SC}", ("b", ks))]
        if ks % 4 == 3: out.append("s_add_u32 s43, s43, 4096")
        return out
    for ks in range(W): emit(g, ldB(ks))
    WF = [96, 104, 112, 120]
    emit(g, wo.tr(0, WF[0], WF[0] + 4) + wo.tr(1, WF[1], WF[1] + 4))
    def body(k0, first, more, fixed=None, last=False):
        for sl in range(W):
            ks = k0 + sl
            nxt = ks + 2
            if not (last and sl >= W - 2):
                n = vm.newer(lambda t: t == ("a", nxt)) if fixed is None else fixed[0]
                A(f"s_waitcnt vmcnt({n})")
                emit(g, wo.tr(nxt, WF[nxt % 4], WF[nxt % 4] + 4))
                lg = 8
            else:
                n = vm.newer(lambda t: t == ("b", ks)); lg = 4 * (W - 1 - sl)
                A(f"s_waitcnt vmcnt({n})")
            if first:
                A(f"s_waitcnt vmcnt({vm.newer(lambda t: t == ('b', ks))})")
            A(f"s_waitcnt lgkmcnt({lg})")
            for i in range(2):
                for q in range(2):
                    acc = v(ACC + (i*2+q)*16, 16)
                    c = "0" if (first and sl == 0) else acc
                    A(f"v_mfma_f32_32x32x16_bf16 {acc}, {v(WF[ks%4]+4*i,4)}, {a(sl*8+4*q,4)}, {c}")
            if more:
                emit(g, wo.dma(ks + W) + ldB(ks + W))
    body(0, True, True)
    A("s_mov_b32 s50, 0")
    A.label("PD_LOOP")
    body(16, False, True, fixed=[54])
    A("s_add_u32 s50, s50, 1")
    A("s_cmp_lt_u32 s50, 2")
    A("s_cbranch_scc1 PD_LOOP")
    vm.ops = [(t, ks) for ks in range(48, 64) for t in "aabb"]
    body(48, False, False, last=True)
    ST(12)
    HP = 20
    A("s_lshl_b32 s42, s7, 9"); A("s_lshl_b32 s45, s3, 7"); A("s_add_u32 s42, s42, s45")
    A("s_lshl_b32 s51, s7, 3"); A("s_lshl_b32 s45, s3, 1"); A("s_add_u32 s51, s51, s45")
    RS12 = [16384 + 2048*i for i in range(12)]
    w1 = Stager(g, "s[76:79]", 3584, "s42", "s86", RS12, "v0", "v1", "v3", "v8", "w1")
    w1.setup(("v96", "v97"))
    A("v_xor_b32 v8, 64, v3")
    vm.ops = []
    ep = reduce4(ACC) + add_resid(ACC, 12, HP)
    for s_ in range(2):
        ep.append((f"buffer_store_dwordx4 {v(HP+4*s_,4)}, v5, s[16:19], s49 offen offset:{1024*s_}{SC}", ("hs", 0)))
    for r in range(8):
        ep += [f"v_lshlrev_b32 v{ACC+2*r}, 16, v{HP+r}", f"v_and_b32 v{ACC+2*r+1}, 0xffff0000, v{HP+r}"]
    ep += [f"v_add_f32 v10, v{ACC}, v{ACC+1}"] + [f"v_add_f32 v10, v10, v{ACC+r}" for r in range(2, 16)]
    ep += xhalf_l("v_add_f32", "v10", "v12") + ["v_mul_f32 v13, 0x3d000000, v10", "v_mov_b32 v11, 0"]
    for r in range(16):
        ep += [f"v_sub_f32 v12, v{ACC+r}, v13", "v_fmac_f32 v11, v12, v12"]
    ep += xhalf_l("v_add_f32", "v11", "v12") + ["v_mul_u32_u24 v12, 112, v7", "s_lshl_b32 s45, s46, 3"]
    ep.append((f"buffer_store_dwordx2 v[10:11], v12, s[8:11], s45 offen{SC}", ("hs", 0)))
    mix(g, ep, [w1.dma(ks) for ks in range(12)], 8)
    A(f"s_waitcnt vmcnt({vm.newer(lambda t: t[0] == 'hs')})")
    A("s_barrier")
    A("s_lshl_b32 s45, s6, 5"); A("s_lshl_b32 s44, s7, 2"); A("s_add_u32 s45, s45, s44")
    A(f"s_add_u32 s52, s45, {F_H1*4}")
    A(f"s_add_u32 s45, s45, {F_H*4}")
    set_flag(g, "s45")
    ST(13)
    for r in range(4): A(f"v_mov_b32 v{12+r}, 0x3f803f80")
    CS = 96
    def drain(stg, fn=None):
        for ks in range(28 + 2):
            if ks < 28:
                A(f"s_waitcnt vmcnt({vm.newer(lambda t: t == (stg.tag, ks))})")
                emit(g, stg.tr(ks, 4*ks, 4*(28+ks), rf=a))
            k2 = ks - 2
            if k2 >= 0:
                A(f"s_waitcnt lgkmcnt({4*min(2, 27-k2)})")
                if fn: fn(k2)
                if k2 + 12 < 28: emit(g, stg.dma(k2 + 12))
    def cs_mfma(ks):
        for i in range(2):
            acc = v(CS + i*16, 16)
            A(f"v_mfma_f32_32x32x16_bf16 {acc}, {a(4*(i*28+ks),4)}, v[12:15], {'0' if ks == 0 else acc}")
    drain(w1, cs_mfma)
    A("v_and_b32 v10, 7, v2")
    A("v_min_u32 v10, 6, v10")
    A("v_lshlrev_b32 v10, 2, v10")
    A("s_lshl_b32 s45, s6, 5")
    A(f"s_add_u32 s45, s45, {F_H*4}")
    poll(g, 11, "v10", "s45")
    ST(14)
    A("s_mul_i32 s42, s6, 57344")
    A("s_mul_i32 s43, s3, 14336")
    A("s_add_u32 s42, s42, s43")
    for i in range(14):
        if i % 4 == 0:
            A(f"s_add_u32 m0, s86, {i*1024}")
            A(f"s_add_u32 s44, s42, {i*1024}")
        A(f"buffer_load_dwordx4 v5, s[16:19], s44 offen offset:{(i%4)*1024}{SC} lds")
    A("v_and_b32 v10, 31, v2")
    A("s_lshl_b32 s45, s6, 6")
    A("v_add_u32 v10, s45, v10")
    A("v_mul_u32_u24 v10, 112, v10")
    STB = [128, 156]
    for q in range(2):
        for i in range(7):
            A(f"buffer_load_dwordx4 {v(STB[q]+4*i,4)}, v10, s[8:11], 0 offen offset:{q*3584 + 16*i}{SC}")
    A(f"s_mul_i32 s42, s3, {448*896}")
    A("s_lshl_b32 s44, s7, 7")
    A("s_add_u32 s42, s42, s44")
    w2 = Stager(g, "s[80:83]", 896, "s42", "s86", RS12, "v0", "v1", "v3", "v8", "w2")
    w2.setup(("v192", "v193"))
    A("v_add_u32 v6, 81920, v5")
    vm.ops = [("st", 0)] * 14
    A("s_waitcnt vmcnt(14)")
    A("s_barrier")
    MB_ = ["v16", "v17"]; RS = ["v18", "v19"]
    stats = [lambda: A(f"s_waitcnt vmcnt({vm.newer(lambda t: t[0] == 'st')})")]
    for q in range(2):
        b = STB[q]
        stats += [f"v_add_f32 v10, v{b}, v{b+2}"] + [f"v_add_f32 v10, v10, v{b+2*i}" for i in range(2, 14)]
        stats += ["v_mul_f32 v10, 0x3b124925, v10", f"v_add_f32 v11, v{b+1}, v{b+3}"] + [f"v_add_f32 v11, v11, v{b+2*i+1}" for i in range(2, 14)]
        stats += ["v_mov_b32 v4, 0"]
        for i in range(14):
            stats += [f"v_mul_f32 v{b+2*i}, 0x3d000000, v{b+2*i}", f"v_sub_f32 v{b+2*i}, v{b+2*i}, v10", f"v_fmac_f32 v4, v{b+2*i}, v{b+2*i}"]
        stats += ["v_mul_f32 v4, 0x42000000, v4", "v_add_f32 v11, v11, v4", "v_mul_f32 v11, 0x3b124925, v11"]
        stats += bf16_round_l(MB_[q], "v10") + bf16_round_l("v11", "v11") + ["v_add_f32 v11, 0x3727c5ac, v11"] + bf16_round_l("v11", "v11")
        stats += ["v_sqrt_f32 v11, v11", "s_nop 0"] + bf16_round_l("v11", "v11") + [f"v_rcp_f32 {RS[q]}, v11", "s_nop 0", f"v_mul_f32 {MB_[q]}, {MB_[q]}, {RS[q]}"]
    XF = [192, 200, 208, 216]
    def xr(ks):
        out = []
        for q in range(2):
            f = q*28 + ks; src = f // 14
            out.append(f"ds_read_b128 {v(XF[ks%4]+4*q,4)}, {'v5' if src < 2 else 'v6'} offset:{(src%2)*40960 + (f%14)*1024}")
        return out
    for ks in range(3): emit(g, xr(ks))
    for ks in range(28):
        sched = {}
        if ks + 3 < 28: spread(sched, xr(ks + 3), 0, 1)
        if ks < 12: sched.setdefault(2, []).extend(w2.dma(ks))
        A(f"s_waitcnt lgkmcnt({2*min(2, 27-ks)})")
        ms = []
        for i in range(2):
            for q in range(2):
                acc = v(ACC + (i*2+q)*16, 16)
                ms.append(f"v_mfma_f32_32x32x16_bf16 {acc}, {a(4*(i*28+ks),4)}, {v(XF[ks%4]+4*q,4)}, {'0' if ks == 0 else acc}")
        run_sched(A, ms, sched, stats if ks >= 4 else [], 4, vm)
    assert not stats
    ST(15)
    ws_srd(A, 20, 54, H1_OFF, H1_SZ)
    A(f"s_mul_i32 s44, s6, {2*112*1024}")
    A("s_lshl_b32 s45, s51, 11")
    A("s_add_u32 s44, s44, s45")
    A(f"s_add_u32 s45, s44, {112*1024}")
    A(f"s_mov_b32 s50, {f32bits(-1.4426950408889634):#x}")
    A("s_mov_b32 s51, s50")
    A("v_mov_b32 v10, 1.0"); A("v_mov_b32 v11, 1.0")
    T = 128
    ep = []
    for i in range(2):
        for q in range(2):
            b = ACC + (i*2+q)*16; cs = CS + i*16
            mbp = "v[16:17]"; rsp = "v[18:19]"; sel = f"op_sel:[0,{q}] op_sel_hi:[1,{q}]"
            for r in range(0, 16, 2): ep.append(f"v_pk_mul_f32 {v(T+r,2)}, {v(cs+r,2)}, {mbp} {sel}")
            for r in range(0, 16, 2): ep.append(f"v_pk_fma_f32 {v(b+r,2)}, {v(b+r,2)}, {rsp}, {v(T+r,2)} op_sel:[0,{q},0] op_sel_hi:[1,{q},1] neg_lo:[0,0,1] neg_hi:[0,0,1]")
            for r in range(0, 16, 2): ep.append(f"v_pk_mul_f32 {v(T+r,2)}, {v(b+r,2)}, s[50:51]")
            for r in range(16): ep.append(f"v_exp_f32 v{T+r}, v{T+r}")
            for r in range(0, 16, 2): ep.append(f"v_pk_add_f32 {v(T+r,2)}, {v(T+r,2)}, v[10:11]")
            for r in range(16): ep.append(f"v_rcp_f32 v{T+r}, v{T+r}")
            for r in range(0, 16, 2): ep.append(f"v_pk_mul_f32 {v(b+r,2)}, {v(b+r,2)}, {v(T+r,2)}")
            for r in range(8): ep.append(f"v_cvt_pk_bf16_f32 v{b+r}, v{b+2*r}, v{b+2*r+1}")
            for s_ in range(2):
                ep.append((f"buffer_store_dwordx4 {v(b+4*s_,4)}, v5, s[20:23], {'s45' if q else 's44'} offen offset:{(2*i+s_)*1024}{SC}", ("h1s", 0)))
    grp = []
    for ks in range(28 + 2):
        it = []
        if ks < 28:
            it.append(lambda ks=ks: A(f"s_waitcnt vmcnt({vm.newer(lambda t: t == ('w2', ks))})"))
            it += w2.tr(ks, 4*ks, 4*(28+ks), rf=a)
        k2 = ks - 2
        if k2 >= 0 and k2 + 12 < 28:
            it.append(f"s_waitcnt lgkmcnt({4*min(2, 27-k2)})")
            it += w2.dma(k2 + 12)
        grp.append(it)
    grp = mix(g, ep, grp, W2EV)
    A(f"s_waitcnt vmcnt({vm.newer(lambda t: t[0] == 'h1s')})")
    A("s_barrier")
    set_flag(g, "s52")
    ST(16)
    for it in grp: emit(g, it)
    A("v_and_b32 v10, 7, v2")
    A("v_min_u32 v10, 6, v10")
    A("v_lshlrev_b32 v10, 2, v10")
    A("s_lshl_b32 s45, s6, 5")
    A(f"s_add_u32 s45, s45, {F_H1*4}")
    poll(g, 11, "v10", "s45")
    ST(17)
    A(f"s_mul_i32 s42, s6, {2*112*1024}")
    A("s_mul_i32 s43, s3, 28672")
    A("s_add_u32 s42, s42, s43")
    A(f"v_add_u32 v6, {112*1024}, v5")
    def ldH(ks):
        sl = ks % 14
        out = [(f"buffer_load_dwordx4 {v(96+sl*8,4)}, v5, s[20:23], s42 offen offset:{(ks%4)*1024}{SC}", ("h", ks)),
               (f"buffer_load_dwordx4 {v(96+sl*8+4,4)}, v6, s[20:23], s42 offen offset:{(ks%4)*1024}{SC}", ("h", ks))]
        if ks % 4 == 3: out.append("s_add_u32 s42, s42, 4096")
        return out
    for ks in range(14): emit(g, ldH(ks))
    A("s_waitcnt lgkmcnt(0)")
    for ks in range(28):
        A(f"s_waitcnt vmcnt({vm.newer(lambda t: t == ('h', ks))})")
        for i in range(2):
            for q in range(2):
                acc = v(ACC + (i*2+q)*16, 16)
                A(f"v_mfma_f32_32x32x16_bf16 {acc}, {a(4*(i*28+ks),4)}, {v(96+(ks%14)*8+4*q,4)}, {'0' if ks == 0 else acc}")
        if ks + 14 < 28: emit(g, ldH(ks + 14))
    ST(18)
    emit(g, reduce4(ACC) + add_resid(ACC, HP, 12))
    for gq in range(4):
        A(f"buffer_store_dwordx2 {v(12+2*gq,2)}, v9, s[28:31], s48 offen offset:{16*gq}")

def gen_mega(stamps=False):
    g = G()
    g.A = A = Asm()
    name = "mega_kernel"
    kernel_begin(A, name)
    A("s_cmp_ge_u32 s2, 256")
    A("s_cbranch_scc0 MEGA_GO")
    A("s_endpgm")
    A.label("MEGA_GO")
    g.ST = Stamps(A, stamps)
    g.ST.tmp = "s[100:101]"
    g.vm = VM()
    g.ST2 = Stamps(A, True, "v63") if (stamps and os.environ.get("STG")) else None
    if stamps:
        A("v_mov_b32 v31, 0")
        g.ST(0); g.ST(20, real=True)
    phaseA(g)
    phaseC(g)
    phaseDEF(g)
    A.label("MEGA_FIN")
    if stamps:
        A("s_waitcnt vmcnt(0)")
        g.ST(19); g.ST(21, real=True)
        g.ST.flush(54, "s3", "v2")
    A.label("MEGA_END")
    A("s_endpgm")
    return name, A.text(), kernel_desc(name, 512, 102, 256), (256, 256, 163840)
```

```python
import sys
from k1b import gen_k1
from k2 import gen_k2
from k3 import gen_proj, gen_k4
import re
def compact(t):
    lines = []
    for ln in t.split("\n"):
        if ln.startswith("    "): ln = ln[4:]
        ln = ln.replace(" offset:0 ", " ")
        if ln.endswith(" offset:0"): ln = ln[:-9]
        lines.append(ln)
    return "\n".join(lines)
def build(kernels, path):
    hdr = open("sequential_preLN__compressed_kv_cla__dense_activation_silu__prompt.s.ref").read().split("; Override launch")[0]
    hdr += "".join(f"; @launch kernel={n} grid=({g},1,1) block=({b},1,1) lds={l}\n" for n, _, _, (g, b, l) in kernels)
    out = hdr + '.amdgcn_target "amdgcn-amd-amdhsa--gfx950"\n' + "".join(t for _, t, _, _ in kernels) + "".join(d for _, _, d, _ in kernels)
    out = compact(out)
    open(path, "w").write(out)
if __name__ == "__main__" and len(sys.argv) > 1 and sys.argv[1].startswith('m'):
    from mega import gen_mega
    st = sys.argv[1] == 'ms'
    build([gen_mega(stamps=st)], "dev.s" if st else "sequential_preLN__compressed_kv_cla__dense_activation_silu__prompt.s")
elif __name__ == "__main__":
    st = int(sys.argv[1]) if len(sys.argv) > 1 else 0
    build([gen_k1(stamps=st==1), gen_k2(stamps=st==2), gen_proj(3, stamps=st==3), gen_k4(stamps=st==4), gen_proj(5, stamps=st==5)], "dev.s" if st else "sequential_preLN__compressed_kv_cla__dense_activation_silu__prompt.s")
```

```python
from common import *
from k1b import rl_setup, rl_reads
import os
CSC = math.log2(math.e) / 16.0
TTHR = 8.0
BIG = 2.0 ** 100
SC = " sc1"
SPIN = 1 << 16
ROT = int(os.environ.get('ROT', '1'))
WOT = int(os.environ.get('WOT', '0'))
TQ = int(os.environ.get('TQ', '2'))
TD = int(os.environ.get('TD', '1'))
NOSIDE = int(os.environ.get('NOSIDE', '0'))
TR1 = int(os.environ.get('TR1', '1'))
TR2 = int(os.environ.get('TR2', '8'))
FSA = int(os.environ.get('FSA', '16'))
LNS = int(os.environ.get('LNS', '5'))
CUT = int(os.environ.get('CUT', '46'))
W1EV = int(os.environ.get('W1EV', '6'))
W2EV = int(os.environ.get('W2EV', '40'))
TW = eval(os.environ.get('TW', '(0, 3, 6, 9, 13, 17)'))
TA = int(os.environ.get('TA', '7'))
TOUCH = int(os.environ.get('TOUCH', '1'))

class G:
    pass

def emit(g, items):
    for x in items:
        if isinstance(x, tuple): g.A(x[0]); g.vm.issue(x[1])
        elif callable(x): x()
        else: g.A(x)

def poll(g, vdst, voff, soff, n4=False, name=None):
    A = g.A
    L = A.newlabel("POLL")
    A(f"s_mov_b32 s87, 0")
    A.label(L)
    if n4:
        A(f"buffer_load_dwordx4 {v(vdst,4)}, {voff}, s[88:91], {soff} offen sc1")
        A("s_waitcnt vmcnt(0)")
        A(f"v_and_b32 v{vdst}, v{vdst}, v{vdst+1}")
        A(f"v_and_b32 v{vdst+2}, v{vdst+2}, v{vdst+3}")
        A(f"v_and_b32 v{vdst}, v{vdst}, v{vdst+2}")
    else:
        A(f"buffer_load_dword v{vdst}, {voff}, s[88:91], {soff} offen sc1")
        A("s_waitcnt vmcnt(0)")
    A(f"v_cmp_ne_u32 vcc, 1, v{vdst}")
    A(f"s_cbranch_vccz {L}_OK")
    A("s_sleep 1")
    A("s_add_u32 s87, s87, 1")
    A(f"s_cmp_lt_u32 s87, {SPIN}")
    A(f"s_cbranch_scc1 {L}")
    A.label(L + "_OK")
    g.vm.ops = []

def set_flag(g, soff_bytes):
    A = g.A
    L = A.newlabel("SETF")
    A("s_cmp_lg_u32 s3, 0")
    A(f"s_cbranch_scc1 {L}")
    A("s_mov_b64 exec, 1")
    A(f"buffer_store_dword v30, v29, s[88:91], {soff_bytes} offen sc1")
    A("s_mov_b64 exec, -1")
    A.label(L)


class Stager:
    def __init__(self, g, srd, stride, s_off, s_ring, slots, vA, vB, vT0, vT1, tag):
        self.__dict__.update(locals())
    def setup(self, tmp=("v60", "v61")):
        A = self.g.A; t0, t1 = tmp
        A(f"v_lshrrev_b32 {t0}, 3, v2")
        A(f"v_mul_u32_u24 {self.vA}, {self.stride}, {t0}")
        A(f"v_bfe_u32 {t0}, v2, 4, 1")
        A(f"v_lshlrev_b32 {t0}, 2, {t0}")
        A(f"v_and_b32 {t1}, 7, v2")
        A(f"v_xor_b32 {t0}, {t0}, {t1}")
        A(f"v_lshl_add_u32 {self.vA}, {t0}, 4, {self.vA}")
        A(f"v_add_u32 {self.vB}, {8*self.stride - 1024}, {self.vA}")
    def setup_tr(self, tmp=("v60", "v61")):
        A = self.g.A; t0, t1 = tmp
        A(f"v_lshrrev_b32 {t0}, 5, v2")
        A(f"v_bfe_u32 {t1}, v2, 2, 2")
        A(f"v_lshl_add_u32 {t0}, {t0}, 2, {t1}")
        A(f"v_lshlrev_b32 {t0}, 7, {t0}")
        A(f"v_bfe_u32 {t1}, v2, 3, 1")
        A(f"v_lshl_add_u32 {t0}, {t1}, 6, {t0}")
        A(f"v_bfe_u32 {t1}, v2, 4, 1")
        A(f"v_lshl_add_u32 {t0}, {t1}, 5, {t0}")
        A(f"v_and_b32 {t1}, 3, v2")
        A(f"v_lshl_add_u32 {t0}, {t1}, 3, {t0}")
        A(f"v_add_u32 {self.vT0}, {self.s_ring}, {t0}")
        A(f"v_xor_b32 {self.vT1}, 64, {self.vT0}")
    def dma(self, ks):
        o = self.slots[ks % len(self.slots)]
        return [f"s_add_u32 m0, {self.s_ring}, {o}", "s_nop 0",
                (f"buffer_load_dwordx4 {self.vA}, {self.srd}, {self.s_off} offen lds", (self.tag, ks)),
                (f"buffer_load_dwordx4 {self.vB}, {self.srd}, {self.s_off} offen offset:1024 lds", (self.tag, ks)),
                f"s_add_u32 {self.s_off}, {self.s_off}, {16*self.stride}"]
    def tr(self, ks, d0, d1, rf=v):
        o = self.slots[ks % len(self.slots)]
        return [f"ds_read_b64_tr_b16 {rf(d0,2)}, {self.vT0} offset:{o}", f"ds_read_b64_tr_b16 {rf(d0+2,2)}, {self.vT0} offset:{o+1024}",
                f"ds_read_b64_tr_b16 {rf(d1,2)}, {self.vT1} offset:{o}", f"ds_read_b64_tr_b16 {rf(d1+2,2)}, {self.vT1} offset:{o+1024}"]

def phaseA(g):
    A, ST, vm = g.A, g.ST, g.vm
    A("s_load_dwordx16 s[36:51], s[0:1], 0")
    A("s_load_dwordx2 s[52:53], s[0:1], 64")
    A("s_load_dwordx4 s[92:95], s[0:1], 80")
    A("v_lshrrev_b32 v1, 6, v0")
    A("v_and_b32 v2, 63, v0")
    A("v_readfirstlane_b32 s3, v1")
    A("s_and_b32 s4, s2, 7")
    A("s_lshr_b32 s5, s2, 3")
    A("s_and_b32 s6, s5, 7")
    A("s_lshr_b32 s5, s5, 3")
    A("s_lshr_b32 s7, s5, 1")
    A("s_and_b32 s5, s5, 1")
    A("s_lshl_b32 s4, s4, 1")
    A("s_add_u32 s4, s4, s5")
    A("v_lshrrev_b32 v3, 2, v2")
    A("v_lshlrev_b32 v3, 11, v3")
    A("v_and_b32 v4, 3, v2")
    A("v_lshl_add_u32 v3, v4, 4, v3")
    A("s_lshl_b32 s56, s6, 19")
    A("s_lshl_b32 s57, s3, 17")
    A("s_add_u32 s56, s56, s57")
    A("v_add_u32 v8, s56, v3")
    A("v_xor_b32 v9, 32, v8")
    A(f"v_add_u32 v9, {32768-1024}, v9")
    A(f"v_add_u32 v10, {2*(32768-1024)}, v8")
    A(f"v_add_u32 v11, {2*(32768-1024)}, v9")
    A("v_lshrrev_b32 v3, 5, v2")
    A("v_and_b32 v4, 31, v2")
    A("s_and_b32 s57, s3, 1")
    A("v_xor_b32 v4, s57, v4")
    A("v_lshlrev_b32 v5, 2, v3")
    A("v_xor_b32 v4, v4, v5")
    A("v_lshlrev_b32 v4, 4, v4")
    A("v_lshl_add_u32 v4, v3, 13, v4")
    A("s_lshl_b32 s56, s4, 9")
    A("s_lshl_b32 s57, s3, 16")
    A("s_add_u32 s56, s56, s57")
    A("v_add_u32 v12, s56, v4")
    A("v_xor_b32 v13, 128, v12")
    A(f"v_add_u32 v13, {16384-1024}, v13")
    A(f"v_add_u32 v14, {2*(16384-1024)}, v12")
    A(f"v_add_u32 v15, {2*(16384-1024)}, v13")
    A("s_lshl_b32 s64, s3, 12")
    A("s_mov_b32 s65, 0")
    A("s_mov_b32 s66, 0")
    A("s_waitcnt lgkmcnt(0)")
    A("s_mov_b32 s54, s94"); A("s_mov_b32 s55, s95")
    srd(A, 8, 38, 2048*1024*2)
    A("s_cmp_eq_u32 s7, 0")
    A("s_cselect_b32 s12, s42, s44")
    A("s_cselect_b32 s13, s43, s45")
    A("s_and_b32 s13, s13, 0xffff")
    A(f"s_mov_b32 s14, {1024*4096*2:#x}")
    A("s_mov_b32 s15, 0x00020000")
    def dma(stage):
        slot = stage % 4
        out = [f"s_add_u32 m0, s64, {slot*16384}", "s_nop 0"]
        for i in range(4):
            out.append((f"buffer_load_dwordx4 v{8+i}, s[8:11], s65 offen offset:{1024*i} lds", ("d", stage)))
        out += [f"s_add_u32 m0, s64, {65536+slot*16384}", "s_add_u32 s65, s65, 64"]
        for i in range(4):
            out.append((f"buffer_load_dwordx4 v{12+i}, s[12:15], s66 offen offset:{1024*i} lds", ("d", stage)))
        out.append("s_add_u32 s66, s66, 262144")
        return out
    emit(g, dma(0)); emit(g, dma(1))
    ST(1)
    A("v_bfe_u32 v240, v2, 3, 1")
    A("v_lshlrev_b32 v240, 11, v240")
    A("v_and_b32 v241, 7, v2")
    A("v_lshl_add_u32 v240, v241, 7, v240")
    A("s_lshl_b32 s56, s2, 14")
    A("s_lshl_b32 s57, s3, 12")
    A("s_add_u32 s56, s56, s57")
    A("v_add_u32 v241, s56, v240")
    A("s_cmp_lt_u32 s2, 128")
    A("s_cselect_b32 s98, s42, s44")
    A("s_cselect_b32 s99, s43, s45")
    A("s_and_b32 s56, s2, 127")
    A("s_lshl_b32 s56, s56, 13")
    A("s_lshl_b32 s57, s3, 11")
    A("s_add_u32 s56, s56, s57")
    A("v_and_b32 v242, 15, v2")
    A("v_lshlrev_b32 v242, 7, v242")
    A("v_add_u32 v242, s56, v242")
    def touchA(i): return [(f"buffer_load_dword v244, v241, s[8:11], 0 offen offset:{1024*i}", "t")]
    def touchW(): return ["v_add_u32 v242, 0x100000, v242", ("global_load_dword v245, v242, s[98:99]", "t")]
    if TOUCH:
        emit(g, touchA(0) + touchW())
        A("s_getpc_b64 s[56:57]")
        A.label("PCREF")
        A("s_lshr_b32 s58, s2, 3")
        A("s_lshl_b32 s58, s58, 2")
        A("s_add_u32 s58, s58, s3")
        A("s_mul_i32 s58, s58, 1280")
        A("v_min_u32 v249, 9, v2")
        A("v_lshlrev_b32 v249, 7, v249")
        A("v_add_u32 v249, s58, v249")
        A("v_min_u32 v249, (MEGA_END - PCREF), v249")
        emit(g, [("global_load_dword v250, v249, s[56:57]", "t")])
    ws_srd(A, 88, 54, FLAG_OFF, FLAG_SZ)
    A("v_mov_b32 v29, 0")
    A("v_mov_b32 v30, 1")
    A("s_cmp_lg_u32 s2, 0")
    A("s_cbranch_scc1 NOZERO")
    A("v_lshlrev_b32 v3, 5, v0")
    for r in range(4): A(f"v_mov_b32 v{32+r}, 0")
    A("buffer_store_dwordx4 v[32:35], v3, s[88:91], 0 offen sc1")
    A("buffer_store_dwordx4 v[32:35], v3, s[88:91], 0 offen offset:16 sc1")
    A.label("NOZERO")
    ws_srd(A, 16, 54, KV_OFF, KV_SZ)
    srd(A, 20, 36, 2048*448*2)
    ws_srd(A, 24, 54, XN_OFF, XN_SZ)
    A("v_and_b32 v3, 31, v2")
    A("v_lshrrev_b32 v4, 5, v2")
    A("s_lshl_b32 s56, s2, 3")
    A("s_lshl_b32 s57, s3, 1")
    A("s_add_u32 s56, s56, s57")
    A("v_add_u32 v4, s56, v4")
    A("v_mul_u32_u24 v25, 896, v4")
    A("v_lshl_add_u32 v25, v3, 5, v25")
    A("v_and_b32 v5, 7, v4")
    A("v_lshlrev_b32 v26, 8, v3")
    A("v_lshl_add_u32 v26, v5, 4, v26")
    A("v_add_u32 v26, 0x24000, v26")
    A("s_mul_i32 s56, s3, 112")
    A("v_add_u32 v251, s56, v2")
    A("v_lshlrev_b32 v252, 4, v251")
    A("v_add_u32 v252, 0x24000, v252")
    A("v_lshrrev_b32 v253, 3, v251")
    A("v_lshlrev_b32 v253, 9, v253")
    A("v_and_b32 v251, 7, v251")
    A("v_lshl_add_u32 v253, v251, 4, v253")
    A("s_lshr_b32 s56, s2, 2")
    A("s_mul_i32 s56, s56, 28672")
    A("s_and_b32 s57, s2, 3")
    A("s_lshl_b32 s57, s57, 7")
    A("s_add_u32 s56, s56, s57")
    A("v_add_u32 v253, s56, v253")
    A("v_mov_b32 v5, 0x7ffffff0")
    A("v_cmp_gt_u32 vcc, 56, v2")
    A("s_nop 1")
    A("v_cndmask_b32 v253, v5, v253, vcc")
    A("v_cmp_gt_u32 vcc, 28, v3")
    A("v_mov_b32 v5, 0x7ffffff0")
    A("s_nop 0")
    A("v_cndmask_b32 v25, v5, v25, vcc")
    A("v_cndmask_b32 v7, 0, 1.0, vcc")
    A("s_and_b32 s67, s3, 1")
    A("s_lshr_b32 s68, s3, 1")
    A("v_and_b32 v3, 15, v2")
    A("v_lshrrev_b32 v4, 4, v2")
    A("v_lshrrev_b32 v5, 3, v3")
    A("v_and_b32 v6, 7, v3")
    A("v_lshl_add_u32 v6, v5, 4, v6")
    A("v_lshlrev_b32 v5, 1, v5")
    A("v_xor_b32 v5, v4, v5")
    A("v_lshlrev_b32 v16, 6, v6")
    A("v_lshl_add_u32 v16, v5, 4, v16")
    A("s_lshl_b32 s56, s67, 13")
    A("v_add_u32 v16, s56, v16")
    A("v_lshlrev_b32 v6, 4, v6")
    A("v_lshrrev_b32 v5, 1, v4")
    A("v_lshl_add_u32 v6, v5, 10, v6")
    A("v_and_b32 v5, 1, v4")
    A("v_lshl_add_u32 v6, v5, 9, v6")
    A("v_lshrrev_b32 v60, 2, v3")
    A("v_lshl_add_u32 v61, v4, 3, v60")
    A("v_lshlrev_b32 v61, 9, v61")
    A("v_and_b32 v62, 1, v3")
    A("v_lshl_add_u32 v61, v62, 3, v61")
    A("s_lshl_b32 s56, s68, 8")
    A("s_add_u32 s56, s56, 65536")
    A("v_add_u32 v61, s56, v61")
    A("v_lshl_or_b32 v60, v60, 2, v5")
    A("v_and_b32 v62, 2, v3")
    A("v_xor_b32 v60, v60, v62")
    for j in range(8):
        A(f"v_xor_b32 v62, {4*(j>>1)+(j&1)}, v60")
        A(f"v_lshl_add_u32 v{17+j}, v62, 4, v61")
    A("v_lshlrev_b32 v5, 4, v2")
    A("s_and_b32 s56, s2, 7"); A("s_lshr_b32 s57, s2, 7"); A("s_lshl_b32 s56, s56, 1"); A("s_add_u32 s85, s56, s57")
    A("s_lshl_b32 s60, s85, 9"); A("s_lshl_b32 s56, s3, 7"); A("s_add_u32 s60, s60, s56")
    A("s_lshl_b32 s86, s3, 12")
    A("s_add_u32 s86, s86, 114688")
    srd(A, 28, 40, 448*4096*2)
    g.wq = Stager(g, "s[28:31]", 8192, "s60", "s86", [16384, 18432, 32768, 34816, 0, 2048], "v27", "v28", "v3", "v4", "w")
    g.wq.setup(); g.wq.setup_tr()
    A("s_lshl_b32 s69, s2, 2")
    A("s_add_u32 s69, s69, s3")
    A("s_lshl_b32 s70, s69, 12")
    A("v_and_b32 v246, 15, v2")
    A("v_lshlrev_b32 v246, 7, v246")
    A("v_add_u32 v247, s70, v246")
    A("s_lshl_b32 s70, s69, 11")
    A("v_add_u32 v246, s70, v246")
    srd(A, 32, 46, 4096*448*2); srd(A, 76, 50, 448*1792*2); srd(A, 80, 52, 448*1792*2)
    TWT = {TQ: ("v247", 28, 0), TQ + 2: ("v247", 28, 2048), 19: ("v247", 32, 0), 21: ("v247", 32, 2048), 23: ("v246", 76, 0), 25: ("v246", 80, 0)}
    ln = [lambda: A(f"s_waitcnt vmcnt({vm.newer(lambda t: t == 'ln')})")]
    for i in range(8):
        ln += [f"v_lshlrev_b32 v{40+2*i}, 16, v{32+i}", f"v_and_b32 v{41+2*i}, 0xffff0000, v{32+i}"]
    ln += ["v_add_f32 v56, v40, v41"] + [f"v_add_f32 v56, v56, v{40+i}" for i in range(2, 16)]
    ln += half_sum_l("v56", "v57") + ["v_mul_f32 v56, 0x3b124925, v56", "v_mov_b32 v58, 0"]
    for i in range(16):
        ln += [f"v_sub_f32 v57, v{40+i}, v56", "v_fmac_f32 v58, v57, v57"]
    ln += ["v_mul_f32 v58, v58, v7"] + half_sum_l("v58", "v57") + ["v_mul_f32 v58, 0x3b124925, v58"]
    ln += bf16_round_l("v56", "v56") + bf16_round_l("v58", "v58") + ["v_add_f32 v58, 0x3727c5ac, v58"] + bf16_round_l("v58", "v58")
    ln += ["v_sqrt_f32 v58, v58", "s_nop 0"] + bf16_round_l("v58", "v58") + ["v_rcp_f32 v58, v58"]
    ln += [f"v_sub_f32 v{40+i}, v{40+i}, v56" for i in range(16)]
    ln += [f"v_cvt_pk_bf16_f32 v{32+i}, v{40+2*i}, v{41+2*i}" for i in range(8)]
    for i in range(8):
        ln += [f"v_lshlrev_b32 v{40+2*i}, 16, v{32+i}", f"v_and_b32 v{41+2*i}, 0xffff0000, v{32+i}"]
    ln += [f"v_mul_f32 v{40+i}, v{40+i}, v58" for i in range(16)]
    ln += [f"v_cvt_pk_bf16_f32 v{32+[0,1,4,5,2,3,6,7][i]}, v{40+2*i}, v{41+2*i}" for i in range(8)]
    ln += ["ds_write_b128 v26, v[32:35]", "ds_write_b128 v26, v[36:39] offset:128"]
    ln2 = ["ds_read_b128 v[32:35], v252", "ds_read_b128 v[36:39], v252 offset:896"]
    ln3 = [(f"buffer_store_dwordx4 v[32:35], v253, s[24:27], 0 offen{SC}", "sA"), (f"buffer_store_dwordx4 v[36:39], v253, s[24:27], 0 offen offset:3584{SC}", "sA")]
    SETS = [64, 128]
    def reads(stage, st_):
        slot = stage % 4
        b = SETS[st_]
        ra = [f"ds_read_b128 {v(b+4*i,4)}, v16 offset:{slot*16384 + (32*(i>>1)+8*(i&1))*64}" for i in range(8)]
        rw = [[f"ds_read_b64_tr_b16 {v(b+32+4*j+2*t,2)}, v{17+j} offset:{slot*16384 + 2048*t}" for t in range(2)] for j in range(8)]
        out = []
        for i in range(8): out += [ra[i]] + rw[i]
        return out
    def mf(typ, i, j, st_, first=False):
        b = SETS[st_]
        acc = a((i*8+j)*4, 4)
        c = "0" if first else acc
        ca, w_ = v(b+4*i, 4), v(b+32+4*j, 4)
        return f"v_mfma_f32_16x16x32_bf16 {acc}, {w_}, {ca}, {c}" if typ == 0 else f"v_mfma_f32_16x16x32_bf16 {acc}, {ca}, {w_}, {c}"
    A("s_lshr_b32 s56, s2, 3")
    A("s_and_b32 s5, s56, 15")
    A("s_lshl_b32 s57, s5, 1")
    A("s_add_u32 s58, s57, s3")
    A("s_sub_u32 s59, 60, s57")
    A("s_add_u32 s59, s59, s3")
    A("s_cmp_lt_u32 s3, 2")
    A("s_cselect_b32 s58, s58, s59")
    A("s_mul_i32 s69, s58, 28672")
    XCH = [0, 65536, 16384, 81920, 32768, 98304, 49152]
    g.XCH = XCH
    def xdma(c):
        out = [f"s_add_u32 m0, s64, {XCH[c]}", f"s_add_u32 s56, s69, {c*4096}"]
        out += [(f"buffer_load_dwordx4 v5, s[24:27], s56 offen offset:{1024*i}{SC} lds", ("x", c)) for i in range(4)]
        return out
    vm0 = list(vm.ops)
    A("s_cmp_eq_u32 s7, 1")
    A("s_cbranch_scc1 PA_V")
    for typ in (0, 1):
        if typ: A.label("PA_V")
        vm.ops = list(vm0)
        A(f"s_waitcnt vmcnt({vm.newer(lambda t: t == ('d', 0))})")
        A("s_barrier")
        ST(2)
        emit(g, reads(0, 0))
        A("s_waitcnt lgkmcnt(0)")
        carry = []
        for s_ in range(32):
            sched = {}
            g0 = 0
            if s_ == 0:
                spread(sched, dma(2) + dma(3), 0, 23); g0 = 24
            def w(s_=s_):
                n = vm.newer(lambda t: t == ("d", s_ + 1))
                if s_ == FSA: n = min(n, vm.newer(lambda t: t == "sA"))
                A(f"s_waitcnt vmcnt({n})")
            if s_ < 31:
                sched.setdefault(g0, []).extend([w, "s_barrier"])
                spread(sched, reads(s_ + 1, (s_ + 1) % 2), g0 + 1, 54)
            if s_ == 31: sched.setdefault(0, []).append("s_barrier")
            if s_ + 4 < 32: spread(sched, dma(s_ + 4), g0 + 2, 48)
            if s_ == FSA: sched[g0].append(lambda: (A("s_lshl_b32 s56, s2, 2"), set_flag(g, "s56")))
            if TOUCH and s_ in TWT:
                tv, ts, to = TWT[s_]
                sched.setdefault(52, []).append((f"buffer_load_dword v248, {tv}, s[{ts}:{ts+3}], 0 offen offset:{to}", "t"))
            if s_ == LNS - 3 and not NOSIDE: sched.setdefault(51, []).extend([("buffer_load_dwordx4 v[32:35], v25, s[20:23], 0 offen", "ln"), ("buffer_load_dwordx4 v[36:39], v25, s[20:23], 0 offen offset:16", "ln")])
            if s_ == LNS and not NOSIDE: carry += ln
            if s_ == LNS + 4:
                assert not carry
                sched.setdefault(20, []).extend(ln2)
            if s_ == LNS + 5: sched.setdefault(20, []).extend(ln3)
            if s_ == 5:
                def raise_dbg():
                    L = A.newlabel("RDBG")
                    A("s_or_b32 s56, s2, s3")
                    A(f"s_cbranch_scc1 {L}")
                    A("s_mov_b64 exec, 1")
                    A("global_store_dword v29, v30, s[92:93] sc1")
                    A("s_mov_b64 exec, -1")
                    A.label(L)
                sched[g0].append(raise_dbg)
            if TOUCH and s_ in TW: sched.setdefault(50, []).extend(touchW())
            if TOUCH and s_ == TA: sched.setdefault(50, []).extend(touchA(1))
            if s_ == FSA - 4:
                sched.setdefault(50, []).append(("global_load_dword v59, v29, s[92:93] sc1", "dbg"))
            if s_ == FSA - 1:
                def chk_dbg():
                    L = A.newlabel("DBG")
                    A(f"s_waitcnt vmcnt({vm.newer(lambda t: t == 'dbg')})")
                    A("s_mov_b32 s87, 0")
                    A.label(L)
                    A("v_cmp_ne_u32 vcc, 1, v59")
                    A(f"s_cbranch_vccz {L}_OK")
                    A("s_sleep 1")
                    A("global_load_dword v59, v29, s[92:93] sc1")
                    A("s_waitcnt vmcnt(0)")
                    A("s_add_u32 s87, s87, 1")
                    A(f"s_cmp_lt_u32 s87, {SPIN}")
                    A(f"s_cbranch_scc1 {L}")
                    A.label(L + "_OK")
                sched.setdefault(50, []).append(chk_dbg)
            if s_ == 24:
                sched.setdefault(50, []).append((f"buffer_load_dwordx4 v[56:59], v5, s[88:91], 0 offen offset:{F_SA*4} sc1", "pf"))
            if s_ == 26:
                def chk_sa():
                    L = A.newlabel("PSA")
                    A(f"s_waitcnt vmcnt({vm.newer(lambda t: t == 'pf')})")
                    A("s_mov_b32 s87, 0")
                    A.label(L)
                    A("v_and_b32 v56, v56, v57"); A("v_and_b32 v58, v58, v59"); A("v_and_b32 v56, v56, v58")
                    A("v_cmp_ne_u32 vcc, 1, v56")
                    A(f"s_cbranch_vccz {L}_OK")
                    A("s_sleep 1")
                    A(f"buffer_load_dwordx4 v[56:59], v5, s[88:91], 0 offen offset:{F_SA*4} sc1")
                    A("s_waitcnt vmcnt(0)")
                    A("s_add_u32 s87, s87, 1")
                    A(f"s_cmp_lt_u32 s87, {SPIN}")
                    A(f"s_cbranch_scc1 {L}")
                    A.label(L + "_OK")
                sched.setdefault(50, []).append(chk_sa)
            xc = {28: [0, 1], 29: [2, 3], 30: [4, 5], 31: [6]}.get(s_, [])
            if xc:
                items = []
                for c in xc: items += xdma(c)
                spread(sched, items, 2, 30)
            wk = {28: [0, 1], 29: [2, 3], 31: [4, 5]}.get(s_, [])
            if wk:
                items = []
                for ks in wk: items += g.wq.dma(ks)
                spread(sched, items, 34, 60)
            ms = [mf(typ, i, j, s_ % 2, first=(s_ == 0)) for i in range(8) for j in range(8)]
            run_sched(A, ms, sched, carry, 2, vm)
            if s_ < 31: A("s_waitcnt lgkmcnt(0)")
            if s_ in (7, 15, 23): ST(3 + s_ // 8)
            if g.ST2: g.ST2(s_)
        assert not carry
        ST(6)
        if g.ST2:
            ws_srd(A, 24, 54, STAMP_OFF + (1 << 20), 1 << 20)
            A("s_lshl_b32 s56, s2, 2"); A("s_add_u32 s56, s56, s3"); A("s_lshl_b32 s56, s56, 8")
            A("v_lshlrev_b32 v62, 2, v2")
            A("buffer_store_dword v63, v62, s[24:27], s56 offen")
        phaseB(g, typ)
        if typ == 0: A("s_branch PB_JOIN")
    A.label("PB_JOIN")

def phaseB(g, typ):
    A, ST, vm = g.A, g.ST, g.vm
    A("s_lshl_b32 s70, s4, 21")
    A("s_lshl_b32 s71, s6, 18")
    A("s_add_u32 s70, s70, s71")
    A("s_lshl_b32 s71, s67, 17")
    A("s_add_u32 s70, s70, s71")
    A("s_lshl_b32 s71, s68, 13")
    A("s_add_u32 s70, s70, s71")
    if typ: A("s_add_u32 s70, s70, 16384")
    for kb in range(4):
        A(f"s_add_u32 s{72+2*kb}, s70, {kb*32768}")
        A(f"s_add_u32 s{73+2*kb}, s70, {kb*32768+4096}")
    epi = []
    cnt = 0
    for u in range(8):
        for pp in range(4):
            if typ == 0: i, j0 = u, 2*pp; t0, t1 = (i*8+j0)*4, (i*8+j0+1)*4; kb, odd, db = i >> 1, i & 1, pp
            else: j, i0 = u, 2*pp; t0, t1 = (i0*8+j)*4, ((i0+1)*8+j)*4; kb, odd, db = pp, j & 1, j >> 1
            t = 32 + (cnt % 2) * 16; cnt += 1
            epi += [f"v_accvgpr_read_b32 v{t+r}, a{t0+r}" for r in range(4)]
            epi += [f"v_accvgpr_read_b32 v{t+4+r}, a{t1+r}" for r in range(4)]
            epi += [f"v_cvt_pk_bf16_f32 v{t+8+r}, v{t+2*r}, v{t+2*r+1}" for r in range(4)]
            epi.append((f"buffer_store_dwordx4 {v(t+8,4)}, v6, s[16:19], s{72+2*kb+(db>>1)} offen offset:{(db&1)*2048 + odd*128}{SC}", "kv"))
    QACC = 96
    XF = [64, 80]
    A("v_add_u32 v7, 0x10000, v5"); A("v_add_u32 v8, 0x20000, v5")
    def xreads(ks):
        b = XF[ks % 2]
        out = []
        for q in range(4):
            o = g.XCH[ks // 4] + q * 4096 + (ks % 4) * 1024
            out.append(f"ds_read_b128 {v(b+4*q,4)}, {['v5','v7','v8'][o >> 16]} offset:{o & 0xffff}")
        return out
    WF = [224, 232]
    A(f"s_waitcnt vmcnt({min(vm.newer(lambda t: t == ('x', 3)), vm.newer(lambda t: t == ('w', 0)))})")
    A("s_barrier")
    emit(g, xreads(0) + g.wq.tr(0, WF[0], WF[0] + 4))
    EPB = int(os.environ.get("EPB", "5"))
    FLAGKS = int(os.environ.get("FLAGKS", "18"))
    def kvflag():
        assert not epi
        A(f"s_waitcnt vmcnt({vm.newer(lambda t: t == 'kv')})")
        A("s_barrier")
        A("s_lshl_b32 s56, s4, 6"); A("s_lshl_b32 s57, s7, 5"); A("s_add_u32 s56, s56, s57"); A("s_lshl_b32 s57, s6, 2"); A("s_add_u32 s56, s56, s57")
        A(f"s_add_u32 s56, s56, {F_KV*4}")
        set_flag(g, "s56")
    for ks in range(28):
        sched = {}
        A("s_waitcnt lgkmcnt(0)")
        if ks == FLAGKS: kvflag()
        if ks + 1 < 28:
            def w(ks=ks):
                n = vm.newer(lambda t: t == ('w', ks + 1))
                if ks == 15: n = min(n, vm.newer(lambda t: t == ('x', 6)))
                A(f"s_waitcnt vmcnt({n})")
                if ks == 15: A("s_barrier")
            items = [w] + g.wq.tr(ks + 1, WF[(ks+1) % 2], WF[(ks+1) % 2] + 4) + xreads(ks + 1)
            if ks + 6 < 28: items += g.wq.dma(ks + 6)
            spread(sched, items, 0, 6)
        ms = []
        for q in range(4):
            for d in range(2):
                acc = v(QACC + (d*4+q)*16, 16)
                c = "0" if ks == 0 else acc
                ms.append(f"v_mfma_f32_32x32x16_bf16 {acc}, {v(WF[ks%2]+4*d,4)}, {v(XF[ks%2]+4*q,4)}, {c}")
        run_sched(A, ms, sched, epi, EPB + 1, vm)
    assert not epi, len(epi)
    ST(7)
    if FLAGKS >= 28: kvflag()
    else: A("s_barrier")

def phaseC(g):
    A, ST, vm = g.A, g.ST, g.vm
    VL16 = "v5"
    MC = ["v8", "v9"]; THR = ["v10", "v11"]; LS = ["v12", "v13"]; FAC = ["v14", "v15"]; TM = ["v16", "v17"]; MR = ["v18", "v19"]
    T0, T1, T2 = "v4", "v6", "v7"
    SEL = [20, 24]
    VQROW, VSTAT, VSTR = "v0", "v1", "v3"
    SB = [32, 64]
    WIN = 128
    QA = 0
    KV = "s[16:19]"
    def Oreg(gq, dbl, qb):
        b = (gq * 2 + dbl) * 2 + qb
        if b < 8: return ("v", 128 + b * 16)
        if b < 10: return ("v", 96 + (b - 8) * 16)
        return ("a", 160 + (b - 10) * 16)
    def OR(gq, dbl, qb):
        f, b = Oreg(gq, dbl, qb)
        return (a if f == "a" else v)(b, 16)
    allO = [(gq, d, q) for gq in range(4) for d in range(2) for q in range(2)]
    QACC = 96
    A("s_mov_b32 s4, s85")
    A("s_lshl_b32 s45, s3, 12")
    A(f"v_add_u32 {T0}, s45, {VL16}")
    for q in range(4):
        for d in range(2):
            b = QACC + (d*4+q)*16
            for r in range(8):
                A(f"v_cvt_pk_bf16_f32 v{b+r}, v{b+2*r}, v{b+2*r+1}")
            for s_ in range(2):
                A(f"ds_write_b128 {T0}, {v(b+4*s_,4)} offset:{q*16384 + (2*d+s_)*1024}")
    ws_srd(A, 20, 54, CTX_OFF, CTX_SZ)
    A("s_and_b32 s45, s3, 1")
    A("s_lshl_b32 s45, s45, 1")
    for gq in range(4):
        A(f"s_add_u32 s{64+gq}, s45, {gq+2}")
        A(f"s_and_b32 s{64+gq}, s{64+gq}, 3")
        A(f"s_lshl_b32 s{64+gq}, s{64+gq}, 12")
    A("s_lshl_b32 s45, s5, 1")
    A("s_sub_u32 s56, 64, s45")
    A("s_mul_i32 s57, s3, 17")
    A("s_min_u32 s57, s57, 50")
    A("s_add_u32 s58, s57, 17")
    A("s_cmp_ge_u32 s3, 2")
    A("s_cselect_b32 s45, 1, 0")
    A("s_sub_u32 s58, s58, s45")
    A("s_min_u32 s59, s58, s56")
    A("s_sub_i32 s59, s59, s57")
    A("s_max_i32 s59, s59, 0")
    A("s_max_u32 s60, s57, s56")
    A("s_sub_i32 s53, s58, s60")
    A("s_max_i32 s53, s53, 0")
    A("s_sub_u32 s60, s60, s56")
    A("s_cmp_gt_u32 s59, 0")
    A("s_cselect_b32 s34, 0, 1")
    A("s_cselect_b32 s40, s57, s60")
    A("s_cselect_b32 s7, s59, s53")
    A("s_cselect_b32 s53, s53, 0")
    A("s_mov_b32 s52, 0")
    A("s_cmp_gt_u32 s56, 50")
    A("s_cselect_b32 s61, 0x8000, 0")
    A("s_add_u32 s61, s61, 98304")
    A("v_and_b32 v32, 31, v2")
    A("v_lshrrev_b32 v33, 5, v2")
    A(f"v_lshlrev_b32 {VSTR}, 6, v32")
    A(f"v_add_u32 {VSTR}, s61, {VSTR}")
    A(f"v_lshlrev_b32 {VSTAT}, 4, v32")
    A(f"v_add_u32 {VSTAT}, s61, {VSTAT}")
    A(f"v_add_u32 {VSTAT}, 4096, {VSTAT}")
    A("v_lshlrev_b32 v34, 2, v33")
    A("v_sub_u32 v34, v32, v34")
    A(f"v_cvt_f32_i32 {VQROW}, v34")
    A(f"v_add_f32 {VQROW}, 0.5, {VQROW}")
    A("v_mov_b32 v35, 0x3f80")
    A("v_mov_b32 v36, 0x3f800000")
    for s_ in range(2):
        for p in range(4):
            e0 = 2*p
            c0 = 16*s_ + 8*(e0 >> 2) + (e0 & 3)
            A(f"v_cmp_eq_u32 vcc, {c0}, v34")
            A(f"v_cmp_eq_u32 s[50:51], {c0+1}, v34")
            A("s_nop 1")
            A(f"v_cndmask_b32 v{SEL[s_]+p}, 0, v35, vcc")
            A(f"v_cndmask_b32 v{SEL[s_]+p}, v{SEL[s_]+p}, v36, s[50:51]")
    if WOT:
        A("s_load_dwordx2 s[72:73], s[0:1], 40")
        A("s_lshr_b32 s45, s2, 3"); A("s_lshl_b32 s45, s45, 2"); A("s_add_u32 s45, s45, s3")
        A("s_mul_i32 s70, s45, 28672")
        A("v_and_b32 v37, 31, v2")
        A("v_lshlrev_b32 v37, 7, v37")
        A("v_accvgpr_write_b32 a255, v37") if False else None
        A("s_waitcnt lgkmcnt(0)")
        srd(A, 24, 72, 4096*448*2)
    A(f"s_mov_b32 s68, {f32bits(CSC):#x}")
    A(f"s_mov_b32 s69, {f32bits(TTHR/CSC):#x}")
    A("v_and_b32 v32, 15, v2")
    A("v_lshlrev_b32 v32, 2, v32")
    A("s_lshl_b32 s45, s4, 6")
    A(f"s_add_u32 s45, s45, {F_KV*4}")
    poll(g, 36, "v32", "s45")
    ST(8)
    A("s_lshl_b32 s48, s4, 21")
    A("s_lshl_b32 s35, s40, 15")
    A("s_add_u32 s35, s35, s48")
    for f in range(8):
        if f % 4 == 0: A(f"s_add_u32 s45, s35, {(f//4)*4096}")
        A(f"buffer_load_dwordx4 {a(WIN+4*f,4)}, {VL16}, {KV}, s45 offen offset:{(f%4)*1024}{SC}")
    A("s_waitcnt lgkmcnt(0)")
    A("s_barrier")
    A(f"v_mov_b32 v32, {f32bits(-BIG):#x}"); A("v_mov_b32 v33, 0"); A("v_mov_b32 v34, v32"); A("v_mov_b32 v35, 0")
    for q in range(2):
        A(f"ds_write_b128 {VSTR}, v[32:35] offset:{q*2048+32}")
        A(f"ds_write_b128 {VSTR}, v[32:35] offset:{q*2048+48}")
    A("s_cmp_eq_u32 s34, 0")
    A("s_cselect_b32 s45, 0x8000, 0")
    A(f"v_add_u32 {T0}, s45, {VL16}")
    for i in range(32):
        A(f"ds_read_b128 {a(QA+4*i,4)}, {T0} offset:{i*1024}")
    def zeroO():
        out = []
        for (gq, d, q) in allO:
            f, b = Oreg(gq, d, q)
            for r in range(16):
                out.append(f"v_mov_b32 v{b+r}, 0" if f == "v" else f"v_accvgpr_write_b32 a{b+r}, 0")
        return out
    def stream(items, fillers, budget=None, first_gap=0):
        cst = [3 if callable(x) else cost(x) for x in fillers]
        tot = sum(cst); ng = len(items) - first_gap
        fi = 0; done = 0
        for gi, (pre, m, post) in enumerate(items):
            for x in pre: A(x)
            A(m)
            for x in post: A(x)
            if gi >= first_gap:
                target = tot * (gi - first_gap + 1) / ng
                while fi < len(fillers) and done + cst[fi] / 2 <= target:
                    x = fillers[fi]
                    if callable(x): x()
                    else: A(x)
                    done += cst[fi]; fi += 1
        while fi < len(fillers):
            x = fillers[fi]; fi += 1
            if callable(x): x()
            else: A(x)
    def ld(sl, soff, f): return f"buffer_load_dwordx4 {a(sl,4)}, {VL16}, {KV}, {soff} offen offset:{(f%4)*1024}{SC}"
    def X_items(p, loads2):
        items = []
        for f in range(16):
            sl = WIN + 4 * (f % 8)
            for q in range(2):
                acc = v(SB[p] + q*16, 16)
                c = "0" if f == 0 else acc
                pre = ["s_waitcnt vmcnt(7)"] if q == 0 else []
                post = []
                if q == 1:
                    if f < 8:
                        if f % 4 == 0: post.append(f"s_add_u32 s45, s36, {(2+f//4)*4096}")
                        post.append(ld(sl, "s45", f))
                    else: post.append(ld(sl, loads2[(f-8)//4], f))
                items.append((pre, f"v_mfma_f32_32x32x16_bf16 {acc}, {a(sl,4)}, {a(QA+(q*16+f)*4,4)}, {c}", post))
        return items
    def Y_items(p, loads2, first=False):
        items = []
        for f in range(16):
            sl = WIN + 4 * (f % 8)
            gq, d, s_ = f // 4, (f // 2) % 2, f % 2
            for q in range(2):
                acc = OR(gq, d, q)
                pre = ["s_waitcnt vmcnt(7)"] if q == 0 else []
                post = []
                if q == 1:
                    if f < 8:
                        if f % 4 == 0: post.append(f"s_add_u32 s45, s37, s{64+2+f//4}")
                        post.append(ld(sl, "s45", f))
                    else: post.append(ld(sl, loads2[(f-8)//4], f))
                items.append((pre, f"v_mfma_f32_32x32x16_bf16 {acc}, {a(sl,4)}, {v(SB[p]+q*16+4*s_,4)}, {'0' if (first and s_ == 0) else acc}", post))
        return items
    def expq(p, q):
        b = SB[p] + q*16
        out = []
        def post(k):
            return [f"v_add_f32 {LS[q]}, {LS[q]}, v{b+2*k}", f"v_add_f32 {LS[q]}, {LS[q]}, v{b+2*k+1}",
                    f"v_cvt_pk_bf16_f32 v{b+k}, v{b+2*k}, v{b+2*k+1}"]
        for k in range(8):
            out.append(f"v_fma_f32 v{b+2*k}, v{b+2*k}, s68, -{MC[q]}")
            out.append(f"v_fma_f32 v{b+2*k+1}, v{b+2*k+1}, s68, -{MC[q]}")
            out.append(f"v_exp_f32 v{b+2*k}, v{b+2*k}")
            out.append(f"v_exp_f32 v{b+2*k+1}, v{b+2*k+1}")
            if k > 0: out += post(k-1)
        out.append("s_nop 0")
        out += post(7)
        return out
    def maxq(p, q):
        b = SB[p] + q*16
        out = [f"v_max3_f32 {TM[q]}, v{b}, v{b+1}, v{b+2}"]
        for r in range(3, 15, 2):
            out.append(f"v_max3_f32 {TM[q]}, {TM[q]}, v{b+r}, v{b+r+1}")
        out.append(f"v_max_f32 {TM[q]}, {TM[q]}, v{b+15}")
        return out
    def mask_code(p):
        A("s_lshl_b32 s63, s6, 1")
        A("s_sub_u32 s63, s63, s40")
        A("s_lshl_b32 s63, s63, 5")
        A(f"v_cvt_f32_i32 {T0}, s63")
        A(f"v_add_f32 {T0}, {T0}, {VQROW}")
        for q in range(2):
            A(f"v_mov_b32 {T1}, {T0}" if q == 0 else f"v_add_f32 {T1}, 0x42000000, {T0}")
            A(f"v_mul_f32 {T1}, {f32bits(BIG):#x}, {T1}")
            b = SB[p] + q*16
            for r in range(16):
                cr = 8*(r >> 2) + (r & 3)
                A(f"v_add_f32 {T2}, {f32bits(-cr*BIG):#x}, {T1}" if cr else f"v_mov_b32 {T2}, {T1}")
                A(f"v_min_f32 v{b+r}, v{b+r}, {T2}")
    def rescaleO(blocks=None):
        A("s_nop 7"); A("s_nop 7")
        for (gq, d, q) in (blocks or allO):
            f, b = Oreg(gq, d, q)
            for r in range(16):
                if f == "v":
                    A(f"v_mul_f32 v{b+r}, v{b+r}, {FAC[q]}")
                else:
                    A(f"v_accvgpr_read_b32 {T0}, a{b+r}")
                    A(f"v_mul_f32 {T0}, {T0}, {FAC[q]}")
                    A(f"v_accvgpr_write_b32 a{b+r}, {T0}")
        A("s_nop 1")
    rare_blocks = []
    def P1(p, tag):
        def maskbr():
            A("s_cmp_ge_u32 s40, s41")
            A(f"s_cbranch_scc1 PC_MASK_{tag}")
            A.label(f"PC_MASKRET_{tag}")
        def chk():
            A(f"v_cmp_gt_f32 vcc, {TM[0]}, {THR[0]}")
            A(f"v_cmp_gt_f32 s[50:51], {TM[1]}, {THR[1]}")
            A("s_or_b64 s[50:51], vcc, s[50:51]")
            A(f"s_cbranch_scc1 PC_RARE_{tag}")
            A.label(f"PC_RARERET_{tag}")
        rare_blocks.append((p, tag))
        return [maskbr] + maxq(p, 0) + maxq(p, 1) + [chk, "s_add_u32 s40, s40, 1"] + expq(p, 0)[:CUT]
    STEP = 32768
    def pack_l(gq, addr, off, tmp):
        out = []
        for d in range(2):
            for q in range(2):
                f, b = Oreg(gq, d, q)
                if f == "a":
                    t = tmp + ((d*2+q) % 2) * 16
                    out += [f"v_accvgpr_read_b32 v{t+r}, a{b+r}" for r in range(16)]
                    b = t
                out += [f"v_cvt_pk_bf16_f32 v{b+r}, v{b+2*r}, v{b+2*r+1}" for r in range(8)]
                out += [f"ds_write_b128 {addr}, {v(b+4*s_,4)} offset:{off + ((d*2+q)*2+s_)*1024}" for s_ in range(2)]
        return out
    def xaddr(dst, wreg):
        A(f"s_lshr_b32 s43, {wreg}, 1")
        A("s_mul_i32 s43, s43, 98304")
        A(f"s_and_b32 {dst}, {wreg}, 1")
        A(f"s_lshl_b32 {dst}, {dst}, 14")
        A(f"s_add_u32 {dst}, {dst}, s43")
        A(f"s_add_u32 {dst}, {dst}, 32768")
    def seg_head():
        A("s_sub_u32 s6, 31, s5")
        A("s_cmp_eq_u32 s34, 0")
        A("s_cselect_b32 s6, s6, s5")
        A("s_lshl_b32 s41, s6, 1")
        A("s_mov_b32 s42, 0")
        A(f"v_mov_b32 {LS[0]}, 0"); A(f"v_mov_b32 {LS[1]}, 0")
        xaddr("s45", "s3")
        A("s_lshl_b32 s43, s3, 15")
        A("s_lshl_b32 s44, s64, 1")
        A("s_add_u32 s43, s43, s44")
        A("s_lshr_b32 s44, s3, 1")
        A("s_xor_b32 s49, s34, 1")
        A("s_and_b32 s49, s49, s44")
        A("s_cselect_b32 s45, s43, s45")
        A(f"v_add_u32 v28, s45, {VL16}")
        A("s_mov_b32 s36, s35")
        A(f"s_add_u32 s43, s35, {STEP}")
        A(f"s_add_u32 s44, s35, {STEP+4096}")
        A("s_add_u32 s45, s35, 16384")
        A("s_add_u32 s38, s45, s64")
        A("s_add_u32 s39, s45, s65")
        A("s_cmp_gt_u32 s7, 1")
        A("s_cselect_b32 s43, s43, s38")
        A("s_cselect_b32 s44, s44, s39")
        A("s_waitcnt lgkmcnt(0)")
    seg_head()
    stream(X_items(0, ["s43", "s44"]), [])
    A.label("PC_X0DONE")
    A("s_nop 7"); A("s_nop 3")
    A("s_cmp_ge_u32 s40, s41")
    A("s_cbranch_scc0 PC_NOMASK0")
    mask_code(0)
    A.label("PC_NOMASK0")
    for x in maxq(0, 0) + maxq(0, 1): A(x)
    xhalf(A, "v_max_f32", TM[0], T0)
    xhalf(A, "v_max_f32", TM[1], T1)
    A("s_lshl_b32 s45, s34, 10")
    A(f"v_add_u32 {T1}, s45, {VSTAT}")
    A("s_cmp_lg_u32 s52, 0")
    A("s_cbranch_scc1 PC_NOPUB")
    A("s_lshl_b32 s43, s3, 2")
    A(f"v_add_u32 {T0}, s43, {T1}")
    A(f"v_xor_b32 {T2}, 1024, {T0}")
    A(f"v_mov_b32 v{SB[1]}, {f32bits(-BIG):#x}")
    for q in range(2):
        A(f"ds_write_b32 {T0}, {TM[q]} offset:{q*512}")
        A(f"ds_write_b32 {T2}, v{SB[1]} offset:{q*512}")
    A("s_waitcnt lgkmcnt(0)")
    A("s_barrier")
    A.label("PC_NOPUB")
    for q in range(2):
        A(f"ds_read_b128 {v(SB[1]+q*4,4)}, {T1} offset:{q*512}")
    A("s_waitcnt lgkmcnt(0)")
    for q in range(2):
        b = SB[1] + q*4
        A(f"v_max3_f32 {MR[q]}, v{b}, v{b+1}, v{b+2}")
        A(f"v_max_f32 {MR[q]}, {MR[q]}, v{b+3}")
        A(f"v_add_f32 {THR[q]}, s69, {MR[q]}")
        A(f"v_cmp_gt_f32 vcc, {TM[q]}, {THR[q]}")
        A("s_nop 1")
        A(f"v_cndmask_b32 {MR[q]}, {MR[q]}, {TM[q]}, vcc")
        A(f"v_mul_f32 {MC[q]}, s68, {MR[q]}")
        A(f"v_add_f32 {THR[q]}, s69, {MR[q]}")
    A("s_add_u32 s40, s40, 1")
    for x in expq(0, 0)[:CUT]: A(x)
    A("s_cmp_eq_u32 s7, 1")
    A("s_cbranch_scc1 PC_TAILF")
    def body(p, tag, first=False):
        A(f"s_add_u32 s36, s35, {STEP}")
        A("s_add_u32 s37, s35, 16384")
        A("s_add_u32 s43, s37, s64")
        A("s_add_u32 s44, s37, s65")
        stream(X_items(p ^ 1, ["s43", "s44"]), expq(p, 0)[CUT:] + expq(p, 1))
        A(f"s_add_u32 s43, s35, {2*STEP}")
        A(f"s_add_u32 s44, s35, {2*STEP+4096}")
        A(f"s_add_u32 s45, s35, {STEP+16384}")
        A("s_add_u32 s38, s45, s64")
        A("s_add_u32 s39, s45, s65")
        A("s_cmp_gt_u32 s7, 2")
        A("s_cselect_b32 s43, s43, s38")
        A("s_cselect_b32 s44, s44, s39")
        if WOT:
            A(f"s_cmp_le_u32 s7, {WOT}")
            A("s_cselect_b32 s71, s70, 0x7ff00000")
            A("s_cselect_b32 s45, 4096, 0")
            A("s_add_u32 s70, s70, s45")
            A(f"v_lshlrev_b32 {T0}, 2, {VL16}")
            A(f"buffer_load_dword v{SB[p]+15}, {T0}, s[24:27], s71 offen")
        stream(Y_items(p, ["s43", "s44"], first), P1(p ^ 1, tag), first_gap=2)
        A("s_cmp_lg_u32 s42, 0")
        A(f"s_cbranch_scc1 PC_PEND_{tag}")
        A.label(f"PC_PENDRET_{tag}")
        A(f"s_add_u32 s35, s35, {STEP}")
        A("s_sub_u32 s7, s7, 1")
        A("s_cmp_eq_u32 s7, 1")
    body(0, "BF", first=True)
    A("s_cbranch_scc1 PC_TAIL1")
    A("s_branch PC_LOOPB")
    A.label("PC_LOOP")
    body(0, "B0")
    A("s_cbranch_scc1 PC_TAIL1")
    A.label("PC_LOOPB")
    body(1, "B1")
    A("s_cbranch_scc0 PC_LOOP")
    for (lab, p, first) in (("0", 0, False), ("1", 1, False), ("F", 0, True)):
        A.label(f"PC_TAIL{lab}")
        for x in expq(p, 0)[CUT:] + expq(p, 1): A(x)
        A("s_add_u32 s37, s35, 16384")
        A("s_cmp_lg_u32 s53, 0")
        A(f"s_cselect_b32 s43, s48, {KV_SZ:#x}")
        A("s_add_u32 s44, s43, 4096")
        items = Y_items(p, ["s43", "s44"], first)
        qr = [f"ds_read_b128 {a(QA+4*i,4)}, {VL16} offset:{i*1024}" for i in range(32)]
        stream(items[:12], qr)
        stream(items[12:20], pack_l(0, "v28", 0, 0))
        stream(items[20:], pack_l(1, "v28", 8192, 0))
        if lab != "F": A("s_branch PC_SEGEND")
    A.label("PC_SEGEND")
    ST(9)
    xhalf(A, "v_add_f32", LS[0], T0)
    xhalf(A, "v_add_f32", LS[1], T1)
    def put_stats(slot_sgpr):
        A(f"v_add_u32 {T0}, {slot_sgpr}, {VSTR}")
        for q in range(2):
            A(f"v_mov_b32 v{SB[1]+2*q}, {MR[q]}")
            A(f"v_mov_b32 v{SB[1]+2*q+1}, {LS[q]}")
            A(f"ds_write_b64 {T0}, {v(SB[1]+2*q,2)} offset:{q*2048}")
    A("s_cmp_eq_u32 s49, 0")
    A("s_cbranch_scc1 PC_NODUMP")
    A("s_lshl_b32 s45, s3, 3")
    A("s_add_u32 s45, s45, 16")
    put_stats("s45")
    A(f"v_xor_b32 {T2}, 0x4000, v28")
    A("s_mov_b32 s34, 1")
    A("s_cmp_eq_u32 s53, 0")
    A("s_cbranch_scc1 PC_EMPTIED")
    A("s_mov_b32 s7, s53")
    A("s_mov_b32 s53, 0")
    A("s_mov_b32 s52, 1")
    A("s_mov_b32 s40, 0")
    A("s_mov_b32 s35, s48")
    seg_head()
    stream(X_items(0, ["s43", "s44"]), pack_l(2, T2, 0, SB[1]) + pack_l(3, T2, 8192, SB[1]))
    A("s_branch PC_X0DONE")
    A.label("PC_EMPTIED")
    for x in pack_l(2, T2, 0, SB[0]) + pack_l(3, T2, 8192, SB[0]): A(x)
    for x in zeroO()[128:]: A(x)
    for q in range(2):
        A(f"v_mov_b32 {MR[q]}, {f32bits(-BIG):#x}"); A(f"v_mov_b32 {LS[q]}, 0")
    A.label("PC_NODUMP")
    A("s_lshl_b32 s45, s3, 3")
    put_stats("s45")
    A.label("PC_SENT")
    A("s_waitcnt lgkmcnt(0)")
    A("s_barrier")
    A("s_lshr_b32 s45, s3, 1")
    A("s_lshl_b32 s45, s45, 4")
    A(f"v_add_u32 {T0}, s45, {VSTR}")
    for q in range(2):
        A(f"ds_read_b128 {v(SB[0]+q*8,4)}, {T0} offset:{q*2048}")
        A(f"ds_read_b128 {v(SB[0]+q*8+4,4)}, {T0} offset:{q*2048+32}")
    A("s_cmp_ge_u32 s56, 50"); A("s_cselect_b32 s57, 1, 0")
    A("s_cmp_eq_u32 s3, 3"); A("s_cselect_b32 s58, s57, 0")
    A("s_cmp_eq_u32 s3, 2"); A("s_cselect_b32 s57, s57, 0")
    A("s_cmp_gt_u32 s56, 34"); A("s_cselect_b32 s59, 1, 0")
    A("s_cmp_gt_u32 s56, 50"); A("s_cselect_b32 s60, 1, 0")
    A("s_cmp_lt_u32 s3, 2"); A("s_cselect_b32 s59, s59, 0"); A("s_cselect_b32 s60, s60, 0")
    A("s_and_b32 s45, s3, 1")
    A("s_cmp_eq_u32 s45, 1")
    A("s_cselect_b64 s[62:63], -1, 0")
    A("s_waitcnt lgkmcnt(0)")
    for q in range(2):
        b = SB[0] + q*8
        A(f"v_max3_f32 {T0}, v{b}, v{b+2}, v{b+4}")
        A(f"v_max_f32 {T0}, {T0}, v{b+6}")
        for e in range(4):
            A(f"v_sub_f32 v{b+2*e}, v{b+2*e}, {T0}")
            A(f"v_mul_f32 v{b+2*e}, s68, v{b+2*e}")
            A(f"v_exp_f32 v{b+2*e}, v{b+2*e}")
        A("s_nop 0")
        A(f"v_mul_f32 {LS[q]}, v{b}, v{b+1}")
        for e in range(1, 4):
            A(f"v_fmac_f32 {LS[q]}, v{b+2*e}, v{b+2*e+1}")
        A(f"v_rcp_f32 {LS[q]}, {LS[q]}")
        A(f"v_cndmask_b32 {FAC[q]}, v{b}, v{b+2}, s[62:63]")
        A(f"v_cndmask_b32 {TM[q]}, v{b+2}, v{b}, s[62:63]")
    own = allO[8:]
    def store_addrs():
        A("s_sub_u32 s6, 31, s5")
        A("s_cmp_lt_u32 s3, 2")
        A("s_cselect_b32 s6, s6, s5")
        A("s_lshl_b32 s45, s6, 19")
        A("s_lshl_b32 s43, s4, 14")
        A("s_add_u32 s45, s45, s43")
        A("s_and_b32 s43, s3, 1")
        A("s_lshl_b32 s43, s43, 13")
        A("s_add_u32 s45, s45, s43")
        A("s_add_u32 s44, s45, 262144")
        A("s_add_u32 s46, s45, 4096")
        A("s_add_u32 s47, s44, 4096")
    def final_l(n_, tmp):
        gq, d, q = own[n_]
        f, b = Oreg(gq, d, q)
        t = tmp + (n_ % 2) * 16
        out = []
        if f == "a":
            out += [f"v_accvgpr_read_b32 v{t+r}, a{b+r}" for r in range(16)]
            b = t
        out += [f"v_pk_mul_f32 {v(t+r,2)}, {v(b+r,2)}, v[12:13] op_sel:[0,{q}] op_sel_hi:[1,{q}]" for r in range(0, 16, 2)]
        out += [f"v_cvt_pk_bf16_f32 v{t+r}, v{t+2*r}, v{t+2*r+1}" for r in range(8)]
        out += [f"buffer_store_dwordx4 {v(t+4*s_,4)}, {VL16}, s[20:23], s{[45,44,46,47][(gq-2)*2+q]} offen offset:{(2*d+s_)*1024}{SC}" for s_ in range(2)]
        return out
    def neq(dst, f2, absent_if, absent_val):
        A(f"v_cmp_neq_f32 vcc, 1.0, {f2[0]}")
        A(f"v_cmp_neq_f32 s[50:51], 1.0, {f2[1]}")
        A("s_or_b64 s[50:51], vcc, s[50:51]")
        A("s_cselect_b32 s43, 1, 0")
        A(f"s_cmp_eq_u32 {absent_if}, {absent_val}")
        A("s_cselect_b32 s43, 0, s43")
        A(f"s_or_b32 {dst}, {dst}, s43")
    FD = [[f"v{SB[0]+q*8+4+2*k}" for q in range(2)] for k in range(2)]
    A("s_mov_b32 s42, 0")
    neq("s42", FAC, "s57", 1); neq("s42", TM, "s58", 1); neq("s42", FD[0], "s59", 0); neq("s42", FD[1], "s60", 0)
    A("s_cmp_lg_u32 s42, 0")
    A("s_cbranch_scc1 PC_SLOW")
    A("s_xor_b32 s44, s3, 1")
    xaddr("s45", "s44")
    A("s_cmp_eq_u32 s58, 0"); A("s_cselect_b32 s45, s45, 0"); A("s_cselect_b32 s36, -1, 0")
    A(f"v_add_u32 {T0}, s45, {VL16}")
    A("s_lshl_b32 s45, s3, 14"); A("s_add_u32 s45, s45, 65536"); A("s_add_u32 s44, s45, 32768")
    A("s_cmp_lg_u32 s59, 0"); A("s_cselect_b32 s45, s45, 0"); A("s_cselect_b32 s37, -1, 0")
    A(f"v_add_u32 {T1}, s45, {VL16}")
    A("s_cmp_lg_u32 s60, 0"); A("s_cselect_b32 s44, s44, 0"); A("s_cselect_b32 s38, -1, 0")
    A(f"v_add_u32 {T2}, s44, {VL16}")
    SRC = [T0, T1, T2]
    FRB = 128
    def frd(n_): return [f"ds_read_b128 {v(FRB+(n_%4)*24+(k*2+s_)*4,4)}, {SRC[k]} offset:{(n_*2+s_)*1024}" for k in range(3) for s_ in range(2)]
    for n_ in range(3): emit(g, frd(n_))
    SELX = 32
    for k in range(3):
        for r in range(8): A(f"v_and_b32 v{SELX+k*8+r}, s{36+k}, v{SEL[0]+r}")
    store_addrs()
    pend = []
    for n_ in range(8):
        A(f"s_waitcnt lgkmcnt({6*min(2, 7-n_)})")
        acc = OR(*own[n_])
        items = [([], f"v_mfma_f32_32x32x16_bf16 {acc}, {v(SELX+k*8+4*s_,4)}, {v(FRB+(n_%4)*24+(k*2+s_)*4,4)}, {acc}", []) for k in range(3) for s_ in range(2)]
        stream(items, (frd(n_ + 3) if n_ + 3 < 8 else []) + pend)
        pend = final_l(n_ - 1, SB[1]) if n_ >= 1 else []
    for x in pend: A(x)
    for x in final_l(7, SB[1]): A(x)
    A("s_branch PC_DONE")
    A.label("PC_SLOW")
    A("s_cmp_lg_u32 s57, 0")
    A("s_cbranch_scc1 PC_NORESC")
    A(f"v_cmp_neq_f32 vcc, 1.0, {FAC[0]}")
    A(f"v_cmp_neq_f32 s[50:51], 1.0, {FAC[1]}")
    A("s_or_b64 s[50:51], vcc, s[50:51]")
    A("s_cbranch_scc0 PC_NORESC")
    rescaleO(own)
    A.label("PC_NORESC")
    RB = 128
    def receive(tag, fq):
        for i in range(16):
            A(f"ds_read_b128 {v(RB+4*i,4)}, {T1} offset:{i*1024}")
        A(f"v_cmp_neq_f32 vcc, 1.0, {fq[0]}")
        A(f"v_cmp_neq_f32 s[50:51], 1.0, {fq[1]}")
        A("s_or_b64 s[50:51], vcc, s[50:51]")
        A(f"s_cbranch_scc0 PC_RX_{tag}")
        A("s_waitcnt lgkmcnt(0)")
        for i in range(16):
            q = (i >> 1) & 1
            for r in range(4):
                x = f"v{RB+4*i+r}"
                A(f"v_lshlrev_b32 {T0}, 16, {x}")
                A(f"v_and_b32 {x}, 0xffff0000, {x}")
                A(f"v_mul_f32 {T0}, {T0}, {fq[q]}")
                A(f"v_mul_f32 {x}, {x}, {fq[q]}")
                A(f"v_cvt_pk_bf16_f32 {x}, {T0}, {x}")
        A("s_nop 1")
        A.label(f"PC_RX_{tag}")
        for i in range(16):
            gq, d, q, s_ = 2 + (i >> 3), (i >> 2) & 1, (i >> 1) & 1, i & 1
            A(f"s_waitcnt lgkmcnt({15-i})")
            acc = OR(gq, d, q)
            A(f"v_mfma_f32_32x32x16_bf16 {acc}, {v(SEL[s_],4)}, {v(RB+4*i,4)}, {acc}")
    A("s_cmp_lg_u32 s58, 0")
    A("s_cbranch_scc1 PC_NOP")
    A("s_xor_b32 s44, s3, 1")
    xaddr("s45", "s44")
    A(f"v_add_u32 {T1}, s45, {VL16}")
    receive("P", TM)
    A.label("PC_NOP")
    for k, fl in ((0, "s59"), (1, "s60")):
        A(f"s_cmp_eq_u32 {fl}, 0")
        A(f"s_cbranch_scc1 PC_NOD{k}")
        A("s_lshl_b32 s45, s3, 14")
        A(f"s_add_u32 s45, s45, {65536 + k*32768}")
        A(f"v_add_u32 {T1}, s45, {VL16}")
        receive(f"D{k}", [f"v{SB[0]+q*8+4+2*k}" for q in range(2)])
        A.label(f"PC_NOD{k}")
    store_addrs()
    A("s_nop 7")
    for n_ in range(8):
        for x in final_l(n_, SB[1]): A(x)
    A("s_branch PC_DONE")
    for (p, tag) in rare_blocks:
        A.label(f"PC_MASK_{tag}")
        mask_code(p)
        A(f"s_branch PC_MASKRET_{tag}")
        A.label(f"PC_RARE_{tag}")
        for q in range(2):
            xhalf(A, "v_max_f32", TM[q], T0)
            A(f"v_max_f32 {TM[q]}, {TM[q]}, {MR[q]}")
            A(f"v_sub_f32 {T1}, {MR[q]}, {TM[q]}")
            A(f"v_mul_f32 {T1}, s68, {T1}")
            A(f"v_exp_f32 {FAC[q]}, {T1}")
            A(f"v_mov_b32 {MR[q]}, {TM[q]}")
            A(f"v_mul_f32 {MC[q]}, s68, {MR[q]}")
            A(f"v_add_f32 {THR[q]}, s69, {MR[q]}")
            A(f"v_mul_f32 {LS[q]}, {LS[q]}, {FAC[q]}")
        A("s_mov_b32 s42, 1")
        A(f"s_branch PC_RARERET_{tag}")
        A.label(f"PC_PEND_{tag}")
        rescaleO()
        A("s_mov_b32 s42, 0")
        A(f"s_branch PC_PENDRET_{tag}")
    A.label("PC_DONE")
    ST(10)

def reduce4(ACC):
    o = ["v_add_u32 v4, s86, v5", "s_nop 7", "s_nop 2"]
    for b in range(4):
        for r in range(4):
            o.append(f"ds_write_b128 v4, {v(ACC+b*16+4*r,4)} offset:{b*4096 + r*1024}")
    o += ["s_waitcnt lgkmcnt(0)", "s_barrier", "s_lshl_b32 s45, s3, 12", "v_add_u32 v4, s45, v5", "v_add_u32 v28, 81920, v4"]
    for src in range(4):
        for r in range(4):
            o.append(f"ds_read_b128 {v(ACC+src*16+4*r,4)}, {'v4' if src < 2 else 'v28'} offset:{(src%2)*40960 + r*1024}")
    o.append("s_waitcnt lgkmcnt(0)")
    for r in range(0, 16, 2):
        o.append(f"v_pk_add_f32 {v(ACC+r,2)}, {v(ACC+r,2)}, {v(ACC+16+r,2)}")
        o.append(f"v_pk_add_f32 {v(ACC+32+r,2)}, {v(ACC+32+r,2)}, {v(ACC+48+r,2)}")
    for r in range(0, 16, 2):
        o.append(f"v_pk_add_f32 {v(ACC+r,2)}, {v(ACC+r,2)}, {v(ACC+32+r,2)}")
    return o

def add_resid(ACC, RES, OUT):
    o = []
    for r in range(8):
        o.append(f"v_cvt_pk_bf16_f32 v{ACC+16+r}, v{ACC+2*r}, v{ACC+2*r+1}")
    for r in range(8):
        o += [f"v_lshlrev_b32 v{ACC+2*r}, 16, v{ACC+16+r}", f"v_and_b32 v{ACC+2*r+1}, 0xffff0000, v{ACC+16+r}",
              f"v_lshlrev_b32 v{ACC+32+2*r}, 16, v{RES+r}", f"v_and_b32 v{ACC+32+2*r+1}, 0xffff0000, v{RES+r}"]
    for r in range(0, 16, 2):
        o.append(f"v_pk_add_f32 {v(ACC+r,2)}, {v(ACC+r,2)}, {v(ACC+32+r,2)}")
    for r in range(8):
        o.append(f"v_cvt_pk_bf16_f32 v{OUT+r}, v{ACC+2*r}, v{ACC+2*r+1}")
    return o

def xhalf_l(op, x, t):
    return [f"v_mov_b32 {t}, {x}", "s_nop 1", f"v_permlane32_swap_b32 {x}, {t}", f"{op} {x}, {x}, {t}"]

def mix(g, main, side, every):
    k = 0
    for i, x in enumerate(main):
        emit(g, [x])
        if (i + 1) % every == 0 and k < len(side) and not (isinstance(x, str) and x.startswith("s_nop")):
            emit(g, side[k]); k += 1
    return side[k:]

def phaseDEF(g):
    A, ST, vm = g.A, g.ST, g.vm
    vm.ops = []
    ACC = 32
    A("s_load_dwordx2 s[36:37], s[0:1], 0")
    A("s_load_dwordx2 s[38:39], s[0:1], 72")
    A("s_load_dwordx2 s[56:57], s[0:1], 40")
    A("s_load_dwordx4 s[60:63], s[0:1], 56")
    A("s_lshr_b32 s40, s2, 3")
    A("s_mul_i32 s6, s40, 9363")
    A("s_lshr_b32 s6, s6, 16")
    A("s_mul_i32 s7, s6, 7")
    A("s_sub_u32 s7, s40, s7")
    A("s_and_b32 s41, s2, 7")
    A("s_lshl_b32 s41, s41, 2")
    A("s_add_u32 s6, s6, s41")
    A("s_mul_i32 s86, s3, 40960")
    A(f"s_mul_i32 s42, s3, {1024*896}")
    A("s_lshl_b32 s44, s7, 7")
    A("s_add_u32 s42, s42, s44")
    A(f"s_mul_i32 s43, s6, {2*256*1024}")
    A("s_lshl_b32 s44, s3, 16")
    A("s_add_u32 s43, s43, s44")
    A(f"v_add_u32 v6, {256*1024}, v5")
    W = 20
    CW = int(os.environ.get("CW", "8"))
    NR = 16 + (256 - 8*CW) // 8
    wo = Stager(g, "s[32:35]", 896, "s42", "s86", [2048*i for i in range(W)], "v0", "v1", "v3", "v28", "a")
    wo.setup(("v32", "v33")); wo.setup_tr(("v32", "v33"))
    A("s_mov_b32 s58, s42"); A("s_mov_b32 s59, s43"); A("s_and_b32 s53, s2, 7")
    wo_dma0 = wo.dma
    def wo_dma(ks):
        pre = []
        if ROT and ks % 8 == 0:
            pre = [f"s_add_u32 s42, s53, {ks//8}", "s_and_b32 s42, s42, 7", f"s_mul_i32 s42, s42, {8*16*896}", "s_add_u32 s42, s42, s58"]
        return pre + wo_dma0(ks)
    wo.dma = wo_dma
    A("s_waitcnt vmcnt(0) lgkmcnt(0)")
    A("s_barrier")
    ST(23)
    srd(A, 32, 56, 4096*448*2); srd(A, 76, 60, 448*1792*2); srd(A, 80, 62, 448*1792*2)
    A("s_lshl_b32 s45, s5, 6"); A("s_lshl_b32 s44, s4, 2"); A("s_add_u32 s45, s45, s44")
    A(f"s_add_u32 s45, s45, {F_CTX*4}")
    set_flag(g, "s45")
    A("s_sub_u32 s45, 31, s5"); A("s_lshl_b32 s45, s45, 6"); A("s_add_u32 s45, s45, s44")
    A(f"s_add_u32 s45, s45, {F_CTX*4}")
    set_flag(g, "s45")
    A("s_cmp_lt_u32 s40, 28")
    A("s_cbranch_scc0 MEGA_FIN")
    for ks in range(W): emit(g, wo.dma(ks))
    ws_srd(A, 16, 54, H_OFF, H_SZ)
    srd(A, 24, 36, 2048*448*2)
    srd(A, 28, 38, 2048*448*2)
    ws_srd(A, 8, 54, HS_OFF, HS_SZ)
    A("s_lshr_b32 s46, s3, 1"); A("s_lshl_b32 s45, s7, 1"); A("s_add_u32 s46, s46, s45")
    A("s_and_b32 s47, s3, 1"); A("s_lshl_b32 s45, s6, 1"); A("s_add_u32 s47, s47, s45")
    A("v_and_b32 v7, 31, v2")
    A("v_lshrrev_b32 v8, 5, v2")
    A("s_lshl_b32 s45, s47, 5")
    A("v_add_u32 v7, s45, v7")
    A("v_mul_u32_u24 v9, 896, v7")
    A("v_lshl_add_u32 v9, v8, 3, v9")
    A("s_lshl_b32 s48, s46, 6")
    A("s_mul_i32 s49, s47, 28672")
    A("s_lshl_b32 s45, s46, 11")
    A("s_add_u32 s49, s49, s45")
    for gq in range(4):
        A(f"buffer_load_dwordx2 {v(12+2*gq,2)}, v9, s[24:27], s48 offen offset:{16*gq}")
    vm.issue(("x", 0), 4)
    def wreg(ks): return (v, 128 + 8*ks) if ks < 16 else (a, 8*CW + 8*(ks-16))
    for ks in range(NR + 2):
        if ks < NR:
            A(f"s_waitcnt vmcnt({vm.newer(lambda t: t == ('a', ks))})")
            rf, b = wreg(ks)
            emit(g, wo.tr(ks, b, b + 4, rf=rf))
        k2 = ks - 2
        if k2 >= 0:
            A(f"s_waitcnt lgkmcnt({4*min(2, NR-1-k2)})")
            if k2 + W < 64: emit(g, wo.dma(k2 + W))
    A("v_and_b32 v10, 15, v2")
    A("v_lshlrev_b32 v10, 2, v10")
    A("s_lshl_b32 s45, s6, 6")
    A(f"s_add_u32 s45, s45, {F_CTX*4}")
    ST(22)
    poll(g, 11, "v10", "s45")
    ST(11)
    def ldB(ks):
        o = (ks % 4) * 1024; sl = ks % CW
        pre = []
        if ROT and ks % 8 == 0:
            pre = [f"s_add_u32 s43, s53, {ks//8}", "s_and_b32 s43, s43, 7", "s_lshl_b32 s43, s43, 13", "s_add_u32 s43, s43, s59"]
        out = pre + [(f"buffer_load_dwordx4 {a(sl*8,4)}, v5, s[20:23], s43 offen offset:{o}{SC}", ("b", ks)),
               (f"buffer_load_dwordx4 {a(sl*8+4,4)}, v6, s[20:23], s43 offen offset:{o}{SC}", ("b", ks))]
        if ks % 4 == 3: out.append("s_add_u32 s43, s43, 4096")
        return out
    for ks in range(CW): emit(g, ldB(ks))
    WF = [96, 104, 112, 120]
    for ks in range(64):
        nxt = ks + 2
        n = vm.newer(lambda t: t == ("b", ks))
        if NR <= nxt < 64:
            n = min(n, vm.newer(lambda t: t == ("a", nxt)))
            A(f"s_waitcnt vmcnt({n})")
            emit(g, wo.tr(nxt, WF[nxt % 4], WF[nxt % 4] + 4))
        else:
            A(f"s_waitcnt vmcnt({n})")
        if ks >= NR:
            A(f"s_waitcnt lgkmcnt({4*min(2, 63-ks)})")
            rf, b = v, WF[ks % 4]
        else: rf, b = wreg(ks)
        for i in range(2):
            for q in range(2):
                acc = v(ACC + (i*2+q)*16, 16)
                A(f"v_mfma_f32_32x32x16_bf16 {acc}, {rf(b+4*i,4)}, {a((ks%CW)*8+4*q,4)}, {'0' if ks == 0 else acc}")
        if NR <= ks and ks + W < 64: emit(g, wo.dma(ks + W))
        if ks + CW < 64: emit(g, ldB(ks + CW))
    ST(12)
    HP = 20
    A("s_lshl_b32 s42, s7, 9"); A("s_lshl_b32 s45, s3, 7"); A("s_add_u32 s42, s42, s45")
    A("s_lshl_b32 s51, s7, 3"); A("s_lshl_b32 s45, s3, 1"); A("s_add_u32 s51, s51, s45")
    RS12 = [16384 + 2048*i for i in range(12)]
    w1 = Stager(g, "s[76:79]", 3584, "s42", "s86", RS12, "v0", "v1", "v3", "v8", "w1")
    w1.setup(("v96", "v97"))
    A("v_xor_b32 v8, 64, v3")
    vm.ops = []
    ep = reduce4(ACC) + add_resid(ACC, 12, HP)
    for s_ in range(2):
        ep.append((f"buffer_store_dwordx4 {v(HP+4*s_,4)}, v5, s[16:19], s49 offen offset:{1024*s_}{SC}", ("hs", 0)))
    for r in range(8):
        ep += [f"v_lshlrev_b32 v{ACC+2*r}, 16, v{HP+r}", f"v_and_b32 v{ACC+2*r+1}, 0xffff0000, v{HP+r}"]
    ep += [f"v_add_f32 v10, v{ACC}, v{ACC+1}"] + [f"v_add_f32 v10, v10, v{ACC+r}" for r in range(2, 16)]
    ep += xhalf_l("v_add_f32", "v10", "v12") + ["v_mul_f32 v13, 0x3d000000, v10", "v_mov_b32 v11, 0"]
    for r in range(16):
        ep += [f"v_sub_f32 v12, v{ACC+r}, v13", "v_fmac_f32 v11, v12, v12"]
    ep += xhalf_l("v_add_f32", "v11", "v12") + ["v_and_b32 v12, 31, v2", "v_lshlrev_b32 v12, 3, v12", "s_mul_i32 s45, s47, 3584", "s_lshl_b32 s44, s46, 8", "s_add_u32 s45, s45, s44"]
    ep.append((f"buffer_store_dwordx2 v[10:11], v12, s[8:11], s45 offen{SC}", ("hs", 0)))
    mix(g, ep, [w1.dma(ks) for ks in range(12)], 8)
    A(f"s_waitcnt vmcnt({vm.newer(lambda t: t[0] == 'hs')})")
    A("s_barrier")
    A("s_lshl_b32 s45, s6, 5"); A("s_lshl_b32 s44, s7, 2"); A("s_add_u32 s45, s45, s44")
    A(f"s_add_u32 s52, s45, {F_H1*4}")
    A(f"s_add_u32 s45, s45, {F_H*4}")
    set_flag(g, "s45")
    ST(13)
    for r in range(4): A(f"v_mov_b32 v{12+r}, 0x3f803f80")
    CS = 96
    def drain(stg, fn=None):
        for ks in range(28 + 2):
            if ks < 28:
                A(f"s_waitcnt vmcnt({vm.newer(lambda t: t == (stg.tag, ks))})")
                emit(g, stg.tr(ks, 4*ks, 4*(28+ks), rf=a))
            k2 = ks - 2
            if k2 >= 0:
                A(f"s_waitcnt lgkmcnt({4*min(2, 27-k2)})")
                if fn: fn(k2)
                if k2 + 12 < 28: emit(g, stg.dma(k2 + 12))
    def cs_mfma(ks):
        for i in range(2):
            acc = v(CS + i*16, 16)
            A(f"v_mfma_f32_32x32x16_bf16 {acc}, {a(4*(i*28+ks),4)}, v[12:15], {'0' if ks == 0 else acc}")
    drain(w1, cs_mfma)
    A("v_and_b32 v10, 7, v2")
    A("v_min_u32 v10, 6, v10")
    A("v_lshlrev_b32 v10, 2, v10")
    A("s_lshl_b32 s45, s6, 5")
    A(f"s_add_u32 s45, s45, {F_H*4}")
    poll(g, 11, "v10", "s45")
    ST(14)
    A("s_mul_i32 s42, s6, 57344")
    A("s_mul_i32 s43, s3, 14336")
    A("s_add_u32 s42, s42, s43")
    for i in range(14):
        if i % 4 == 0:
            A(f"s_add_u32 m0, s86, {i*1024}")
            A(f"s_add_u32 s44, s42, {i*1024}")
        A(f"buffer_load_dwordx4 v5, s[16:19], s44 offen offset:{(i%4)*1024}{SC} lds")
    A("v_and_b32 v10, 31, v2")
    A("v_lshlrev_b32 v10, 3, v10")
    A("s_mul_i32 s45, s6, 7168")
    A("s_add_u32 s44, s45, 3584")
    STB = [128, 156]
    for q in range(2):
        for i in range(14):
            A(f"buffer_load_dwordx2 {v(STB[q]+2*i,2)}, v10, s[8:11], {'s44' if q else 's45'} offen offset:{256*i}{SC}")
    A(f"s_mul_i32 s42, s3, {448*896}")
    A("s_lshl_b32 s44, s7, 7")
    A("s_add_u32 s42, s42, s44")
    w2 = Stager(g, "s[80:83]", 896, "s42", "s86", RS12, "v0", "v1", "v3", "v8", "w2")
    w2.setup(("v192", "v193"))
    A("v_add_u32 v6, 81920, v5")
    vm.ops = [("st", 0)] * 28
    A("s_waitcnt vmcnt(28)")
    A("s_barrier")
    MB_ = ["v16", "v17"]; RS = ["v18", "v19"]
    stats = [lambda: A(f"s_waitcnt vmcnt({vm.newer(lambda t: t[0] == 'st')})")]
    for q in range(2):
        b = STB[q]
        stats += [f"v_add_f32 v10, v{b}, v{b+2}"] + [f"v_add_f32 v10, v10, v{b+2*i}" for i in range(2, 14)]
        stats += ["v_mul_f32 v10, 0x3b124925, v10", f"v_add_f32 v11, v{b+1}, v{b+3}"] + [f"v_add_f32 v11, v11, v{b+2*i+1}" for i in range(2, 14)]
        stats += ["v_mov_b32 v4, 0"]
        for i in range(14):
            stats += [f"v_mul_f32 v{b+2*i}, 0x3d000000, v{b+2*i}", f"v_sub_f32 v{b+2*i}, v{b+2*i}, v10", f"v_fmac_f32 v4, v{b+2*i}, v{b+2*i}"]
        stats += ["v_mul_f32 v4, 0x42000000, v4", "v_add_f32 v11, v11, v4", "v_mul_f32 v11, 0x3b124925, v11"]
        stats += bf16_round_l(MB_[q], "v10") + bf16_round_l("v11", "v11") + ["v_add_f32 v11, 0x3727c5ac, v11"] + bf16_round_l("v11", "v11")
        stats += ["v_sqrt_f32 v11, v11", "s_nop 0"] + bf16_round_l("v11", "v11") + [f"v_rcp_f32 {RS[q]}, v11", "s_nop 0", f"v_mul_f32 {MB_[q]}, {MB_[q]}, {RS[q]}"]
    XF = [192, 200, 208, 216]
    def xr(ks):
        out = []
        for q in range(2):
            f = q*28 + ks; src = f // 14
            out.append(f"ds_read_b128 {v(XF[ks%4]+4*q,4)}, {'v5' if src < 2 else 'v6'} offset:{(src%2)*40960 + (f%14)*1024}")
        return out
    for ks in range(3): emit(g, xr(ks))
    for ks in range(28):
        sched = {}
        if ks + 3 < 28: spread(sched, xr(ks + 3), 0, 1)
        if ks < 12: sched.setdefault(2, []).extend(w2.dma(ks))
        A(f"s_waitcnt lgkmcnt({2*min(2, 27-ks)})")
        ms = []
        for i in range(2):
            for q in range(2):
                acc = v(ACC + (i*2+q)*16, 16)
                ms.append(f"v_mfma_f32_32x32x16_bf16 {acc}, {a(4*(i*28+ks),4)}, {v(XF[ks%4]+4*q,4)}, {'0' if ks == 0 else acc}")
        run_sched(A, ms, sched, stats if ks >= 4 else [], 4, vm)
    assert not stats
    ST(15)
    ws_srd(A, 20, 54, H1_OFF, H1_SZ)
    A(f"s_mul_i32 s44, s6, {2*112*1024}")
    A("s_lshl_b32 s45, s51, 11")
    A("s_add_u32 s44, s44, s45")
    A(f"s_add_u32 s45, s44, {112*1024}")
    A(f"s_mov_b32 s50, {f32bits(-1.4426950408889634):#x}")
    A("s_mov_b32 s51, s50")
    A("v_mov_b32 v10, 1.0"); A("v_mov_b32 v11, 1.0")
    T = 128
    ep = []
    for i in range(2):
        for q in range(2):
            b = ACC + (i*2+q)*16; cs = CS + i*16
            mbp = "v[16:17]"; rsp = "v[18:19]"; sel = f"op_sel:[0,{q}] op_sel_hi:[1,{q}]"
            for r in range(0, 16, 2): ep.append(f"v_pk_mul_f32 {v(T+r,2)}, {v(cs+r,2)}, {mbp} {sel}")
            for r in range(0, 16, 2): ep.append(f"v_pk_fma_f32 {v(b+r,2)}, {v(b+r,2)}, {rsp}, {v(T+r,2)} op_sel:[0,{q},0] op_sel_hi:[1,{q},1] neg_lo:[0,0,1] neg_hi:[0,0,1]")
            for r in range(0, 16, 2): ep.append(f"v_pk_mul_f32 {v(T+r,2)}, {v(b+r,2)}, s[50:51]")
            for r in range(16): ep.append(f"v_exp_f32 v{T+r}, v{T+r}")
            for r in range(0, 16, 2): ep.append(f"v_pk_add_f32 {v(T+r,2)}, {v(T+r,2)}, v[10:11]")
            for r in range(16): ep.append(f"v_rcp_f32 v{T+r}, v{T+r}")
            for r in range(0, 16, 2): ep.append(f"v_pk_mul_f32 {v(b+r,2)}, {v(b+r,2)}, {v(T+r,2)}")
            for r in range(8): ep.append(f"v_cvt_pk_bf16_f32 v{b+r}, v{b+2*r}, v{b+2*r+1}")
            for s_ in range(2):
                ep.append((f"buffer_store_dwordx4 {v(b+4*s_,4)}, v5, s[20:23], {'s45' if q else 's44'} offen offset:{(2*i+s_)*1024}{SC}", ("h1s", 0)))
    grp = []
    for ks in range(28 + 2):
        it = []
        if ks < 28:
            it.append(lambda ks=ks: A(f"s_waitcnt vmcnt({vm.newer(lambda t: t == ('w2', ks))})"))
            it += w2.tr(ks, 4*ks, 4*(28+ks), rf=a)
        k2 = ks - 2
        if k2 >= 0 and k2 + 12 < 28:
            it.append(f"s_waitcnt lgkmcnt({4*min(2, 27-k2)})")
            it += w2.dma(k2 + 12)
        grp.append(it)
    grp = mix(g, ep, grp, W2EV)
    A(f"s_waitcnt vmcnt({vm.newer(lambda t: t[0] == 'h1s')})")
    A("s_barrier")
    set_flag(g, "s52")
    ST(16)
    for it in grp: emit(g, it)
    A("v_and_b32 v10, 7, v2")
    A("v_min_u32 v10, 6, v10")
    A("v_lshlrev_b32 v10, 2, v10")
    A("s_lshl_b32 s45, s6, 5")
    A(f"s_add_u32 s45, s45, {F_H1*4}")
    poll(g, 11, "v10", "s45")
    ST(17)
    A(f"s_mul_i32 s42, s6, {2*112*1024}")
    A("s_mul_i32 s43, s3, 28672")
    A("s_add_u32 s42, s42, s43")
    A(f"v_add_u32 v6, {112*1024}, v5")
    def ldH(ks):
        sl = ks % 14
        out = [(f"buffer_load_dwordx4 {v(96+sl*8,4)}, v5, s[20:23], s42 offen offset:{(ks%4)*1024}{SC}", ("h", ks)),
               (f"buffer_load_dwordx4 {v(96+sl*8+4,4)}, v6, s[20:23], s42 offen offset:{(ks%4)*1024}{SC}", ("h", ks))]
        if ks % 4 == 3: out.append("s_add_u32 s42, s42, 4096")
        return out
    for ks in range(14): emit(g, ldH(ks))
    A("s_waitcnt lgkmcnt(0)")
    for ks in range(28):
        A(f"s_waitcnt vmcnt({vm.newer(lambda t: t == ('h', ks))})")
        for i in range(2):
            for q in range(2):
                acc = v(ACC + (i*2+q)*16, 16)
                A(f"v_mfma_f32_32x32x16_bf16 {acc}, {a(4*(i*28+ks),4)}, {v(96+(ks%14)*8+4*q,4)}, {'0' if ks == 0 else acc}")
        if ks + 14 < 28: emit(g, ldH(ks + 14))
    ST(18)
    emit(g, reduce4(ACC) + add_resid(ACC, HP, 12))
    for gq in range(4):
        A(f"buffer_store_dwordx2 {v(12+2*gq,2)}, v9, s[28:31], s48 offen offset:{16*gq}")

def gen_mega(stamps=False):
    g = G()
    g.A = A = Asm()
    name = "mega_kernel"
    kernel_begin(A, name)
    A("s_cmp_ge_u32 s2, 256")
    A("s_cbranch_scc0 MEGA_GO")
    A("s_endpgm")
    A.label("MEGA_GO")
    g.ST = Stamps(A, stamps)
    g.ST.tmp = "s[100:101]"
    g.vm = VM()
    g.ST2 = Stamps(A, True, "v63") if (stamps and os.environ.get("STG")) else None
    if stamps:
        A("v_mov_b32 v31, 0")
        g.ST(0); g.ST(20, real=True)
    phaseA(g)
    phaseC(g)
    phaseDEF(g)
    A.label("MEGA_FIN")
    if stamps:
        A("s_waitcnt vmcnt(0)")
        g.ST(19); g.ST(21, real=True)
        g.ST.flush(54, "s3", "v2")
    A.label("MEGA_END")
    A("s_endpgm")
    return name, A.text(), kernel_desc(name, 512, 102, 256), (256, 256, 163840)
```

```python
from common import *
from k1b import rl_setup, rl_reads
import os
CSC = math.log2(math.e) / 16.0
TTHR = 8.0
BIG = 2.0 ** 100
SC = " sc1"
SPIN = 1 << 16
ROT = int(os.environ.get('ROT', '1'))
WOT = int(os.environ.get('WOT', '0'))
TQ = int(os.environ.get('TQ', '2'))
TD = int(os.environ.get('TD', '1'))
NOSIDE = int(os.environ.get('NOSIDE', '0'))
TR1 = int(os.environ.get('TR1', '1'))
TR2 = int(os.environ.get('TR2', '8'))
FSA = int(os.environ.get('FSA', '16'))
LNS = int(os.environ.get('LNS', '5'))
CUT = int(os.environ.get('CUT', '46'))
W1EV = int(os.environ.get('W1EV', '6'))
W2EV = int(os.environ.get('W2EV', '40'))
TW = eval(os.environ.get('TW', '(0, 3, 6, 9, 13, 17)'))
TA = int(os.environ.get('TA', '7'))
TOUCH = int(os.environ.get('TOUCH', '1'))

class G:
    pass

def emit(g, items):
    for x in items:
        if isinstance(x, tuple): g.A(x[0]); g.vm.issue(x[1])
        elif callable(x): x()
        else: g.A(x)

def poll(g, vdst, voff, soff, n4=False, name=None):
    A = g.A
    L = A.newlabel("POLL")
    A(f"s_mov_b32 s87, 0")
    A.label(L)
    if n4:
        A(f"buffer_load_dwordx4 {v(vdst,4)}, {voff}, s[88:91], {soff} offen sc1")
        A("s_waitcnt vmcnt(0)")
        A(f"v_and_b32 v{vdst}, v{vdst}, v{vdst+1}")
        A(f"v_and_b32 v{vdst+2}, v{vdst+2}, v{vdst+3}")
        A(f"v_and_b32 v{vdst}, v{vdst}, v{vdst+2}")
    else:
        A(f"buffer_load_dword v{vdst}, {voff}, s[88:91], {soff} offen sc1")
        A("s_waitcnt vmcnt(0)")
    A(f"v_cmp_ne_u32 vcc, 1, v{vdst}")
    A(f"s_cbranch_vccz {L}_OK")
    A("s_sleep 1")
    A("s_add_u32 s87, s87, 1")
    A(f"s_cmp_lt_u32 s87, {SPIN}")
    A(f"s_cbranch_scc1 {L}")
    A.label(L + "_OK")
    g.vm.ops = []

def set_flag(g, soff_bytes):
    A = g.A
    L = A.newlabel("SETF")
    A("s_cmp_lg_u32 s3, 0")
    A(f"s_cbranch_scc1 {L}")
    A("s_mov_b64 exec, 1")
    A(f"buffer_store_dword v30, v29, s[88:91], {soff_bytes} offen sc1")
    A("s_mov_b64 exec, -1")
    A.label(L)


class Stager:
    def __init__(self, g, srd, stride, s_off, s_ring, slots, vA, vB, vT0, vT1, tag):
        self.__dict__.update(locals())
    def setup(self, tmp=("v60", "v61")):
        A = self.g.A; t0, t1 = tmp
        A(f"v_lshrrev_b32 {t0}, 3, v2")
        A(f"v_mul_u32_u24 {self.vA}, {self.stride}, {t0}")
        A(f"v_bfe_u32 {t0}, v2, 4, 1")
        A(f"v_lshlrev_b32 {t0}, 2, {t0}")
        A(f"v_and_b32 {t1}, 7, v2")
        A(f"v_xor_b32 {t0}, {t0}, {t1}")
        A(f"v_lshl_add_u32 {self.vA}, {t0}, 4, {self.vA}")
        A(f"v_add_u32 {self.vB}, {8*self.stride - 1024}, {self.vA}")
    def setup_tr(self, tmp=("v60", "v61")):
        A = self.g.A; t0, t1 = tmp
        A(f"v_lshrrev_b32 {t0}, 5, v2")
        A(f"v_bfe_u32 {t1}, v2, 2, 2")
        A(f"v_lshl_add_u32 {t0}, {t0}, 2, {t1}")
        A(f"v_lshlrev_b32 {t0}, 7, {t0}")
        A(f"v_bfe_u32 {t1}, v2, 3, 1")
        A(f"v_lshl_add_u32 {t0}, {t1}, 6, {t0}")
        A(f"v_bfe_u32 {t1}, v2, 4, 1")
        A(f"v_lshl_add_u32 {t0}, {t1}, 5, {t0}")
        A(f"v_and_b32 {t1}, 3, v2")
        A(f"v_lshl_add_u32 {t0}, {t1}, 3, {t0}")
        A(f"v_add_u32 {self.vT0}, {self.s_ring}, {t0}")
        A(f"v_xor_b32 {self.vT1}, 64, {self.vT0}")
    def dma(self, ks):
        o = self.slots[ks % len(self.slots)]
        return [f"s_add_u32 m0, {self.s_ring}, {o}", "s_nop 0",
                (f"buffer_load_dwordx4 {self.vA}, {self.srd}, {self.s_off} offen lds", (self.tag, ks)),
                (f"buffer_load_dwordx4 {self.vB}, {self.srd}, {self.s_off} offen offset:1024 lds", (self.tag, ks)),
                f"s_add_u32 {self.s_off}, {self.s_off}, {16*self.stride}"]
    def tr(self, ks, d0, d1, rf=v):
        o = self.slots[ks % len(self.slots)]
        return [f"ds_read_b64_tr_b16 {rf(d0,2)}, {self.vT0} offset:{o}", f"ds_read_b64_tr_b16 {rf(d0+2,2)}, {self.vT0} offset:{o+1024}",
                f"ds_read_b64_tr_b16 {rf(d1,2)}, {self.vT1} offset:{o}", f"ds_read_b64_tr_b16 {rf(d1+2,2)}, {self.vT1} offset:{o+1024}"]

def phaseA(g):
    A, ST, vm = g.A, g.ST, g.vm
    A("s_load_dwordx16 s[36:51], s[0:1], 0")
    A("s_load_dwordx2 s[52:53], s[0:1], 64")
    A("s_load_dwordx4 s[92:95], s[0:1], 80")
    A("v_lshrrev_b32 v1, 6, v0")
    A("v_and_b32 v2, 63, v0")
    A("v_readfirstlane_b32 s3, v1")
    A("s_and_b32 s4, s2, 7")
    A("s_lshr_b32 s5, s2, 3")
    A("s_and_b32 s6, s5, 7")
    A("s_lshr_b32 s5, s5, 3")
    A("s_lshr_b32 s7, s5, 1")
    A("s_and_b32 s5, s5, 1")
    A("s_lshl_b32 s4, s4, 1")
    A("s_add_u32 s4, s4, s5")
    A("v_lshrrev_b32 v3, 2, v2")
    A("v_lshlrev_b32 v3, 11, v3")
    A("v_and_b32 v4, 3, v2")
    A("v_lshl_add_u32 v3, v4, 4, v3")
    A("s_lshl_b32 s56, s6, 19")
    A("s_lshl_b32 s57, s3, 17")
    A("s_add_u32 s56, s56, s57")
    A("v_add_u32 v8, s56, v3")
    A("v_xor_b32 v9, 32, v8")
    A(f"v_add_u32 v9, {32768-1024}, v9")
    A(f"v_add_u32 v10, {2*(32768-1024)}, v8")
    A(f"v_add_u32 v11, {2*(32768-1024)}, v9")
    A("v_lshrrev_b32 v3, 5, v2")
    A("v_and_b32 v4, 31, v2")
    A("s_and_b32 s57, s3, 1")
    A("v_xor_b32 v4, s57, v4")
    A("v_lshlrev_b32 v5, 2, v3")
    A("v_xor_b32 v4, v4, v5")
    A("v_lshlrev_b32 v4, 4, v4")
    A("v_lshl_add_u32 v4, v3, 13, v4")
    A("s_lshl_b32 s56, s4, 9")
    A("s_lshl_b32 s57, s3, 16")
    A("s_add_u32 s56, s56, s57")
    A("v_add_u32 v12, s56, v4")
    A("v_xor_b32 v13, 128, v12")
    A(f"v_add_u32 v13, {16384-1024}, v13")
    A(f"v_add_u32 v14, {2*(16384-1024)}, v12")
    A(f"v_add_u32 v15, {2*(16384-1024)}, v13")
    A("s_lshl_b32 s64, s3, 12")
    A("s_mov_b32 s65, 0")
    A("s_mov_b32 s66, 0")
    A("s_waitcnt lgkmcnt(0)")
    A("s_mov_b32 s54, s94"); A("s_mov_b32 s55, s95")
    srd(A, 8, 38, 2048*1024*2)
    A("s_cmp_eq_u32 s7, 0")
    A("s_cselect_b32 s12, s42, s44")
    A("s_cselect_b32 s13, s43, s45")
    A("s_and_b32 s13, s13, 0xffff")
    A(f"s_mov_b32 s14, {1024*4096*2:#x}")
    A("s_mov_b32 s15, 0x00020000")
    def dma(stage):
        slot = stage % 4
        out = [f"s_add_u32 m0, s64, {slot*16384}", "s_nop 0"]
        for i in range(4):
            out.append((f"buffer_load_dwordx4 v{8+i}, s[8:11], s65 offen offset:{1024*i} lds", ("d", stage)))
        out += [f"s_add_u32 m0, s64, {65536+slot*16384}", "s_add_u32 s65, s65, 64"]
        for i in range(4):
            out.append((f"buffer_load_dwordx4 v{12+i}, s[12:15], s66 offen offset:{1024*i} lds", ("d", stage)))
        out.append("s_add_u32 s66, s66, 262144")
        return out
    emit(g, dma(0)); emit(g, dma(1))
    ST(1)
    A("v_bfe_u32 v240, v2, 3, 1")
    A("v_lshlrev_b32 v240, 11, v240")
    A("v_and_b32 v241, 7, v2")
    A("v_lshl_add_u32 v240, v241, 7, v240")
    A("s_lshl_b32 s56, s2, 14")
    A("s_lshl_b32 s57, s3, 12")
    A("s_add_u32 s56, s56, s57")
    A("v_add_u32 v241, s56, v240")
    A("s_cmp_lt_u32 s2, 128")
    A("s_cselect_b32 s98, s42, s44")
    A("s_cselect_b32 s99, s43, s45")
    A("s_and_b32 s56, s2, 127")
    A("s_lshl_b32 s56, s56, 13")
    A("s_lshl_b32 s57, s3, 11")
    A("s_add_u32 s56, s56, s57")
    A("v_and_b32 v242, 15, v2")
    A("v_lshlrev_b32 v242, 7, v242")
    A("v_add_u32 v242, s56, v242")
    def touchA(i): return [(f"buffer_load_dword v244, v241, s[8:11], 0 offen offset:{1024*i}", "t")]
    def touchW(): return ["v_add_u32 v242, 0x100000, v242", ("global_load_dword v245, v242, s[98:99]", "t")]
    if TOUCH:
        emit(g, touchA(0) + touchW())
        A("s_getpc_b64 s[56:57]")
        A.label("PCREF")
        A("s_lshr_b32 s58, s2, 3")
        A("s_lshl_b32 s58, s58, 2")
        A("s_add_u32 s58, s58, s3")
        A("s_mul_i32 s58, s58, 1280")
        A("v_min_u32 v249, 9, v2")
        A("v_lshlrev_b32 v249, 7, v249")
        A("v_add_u32 v249, s58, v249")
        A("v_min_u32 v249, (MEGA_END - PCREF), v249")
        emit(g, [("global_load_dword v250, v249, s[56:57]", "t")])
    ws_srd(A, 88, 54, FLAG_OFF, FLAG_SZ)
    A("v_mov_b32 v29, 0")
    A("v_mov_b32 v30, 1")
    A("s_cmp_lg_u32 s2, 0")
    A("s_cbranch_scc1 NOZERO")
    A("v_lshlrev_b32 v3, 5, v0")
    for r in range(4): A(f"v_mov_b32 v{32+r}, 0")
    A("buffer_store_dwordx4 v[32:35], v3, s[88:91], 0 offen sc1")
    A("buffer_store_dwordx4 v[32:35], v3, s[88:91], 0 offen offset:16 sc1")
    A.label("NOZERO")
    ws_srd(A, 16, 54, KV_OFF, KV_SZ)
    srd(A, 20, 36, 2048*448*2)
    ws_srd(A, 24, 54, XN_OFF, XN_SZ)
    A("v_and_b32 v3, 31, v2")
    A("v_lshrrev_b32 v4, 5, v2")
    A("s_lshl_b32 s56, s2, 3")
    A("s_lshl_b32 s57, s3, 1")
    A("s_add_u32 s56, s56, s57")
    A("v_add_u32 v4, s56, v4")
    A("v_mul_u32_u24 v25, 896, v4")
    A("v_lshl_add_u32 v25, v3, 5, v25")
    A("v_and_b32 v5, 7, v4")
    A("v_lshlrev_b32 v26, 8, v3")
    A("v_lshl_add_u32 v26, v5, 4, v26")
    A("v_add_u32 v26, 0x24000, v26")
    A("s_mul_i32 s56, s3, 112")
    A("v_add_u32 v251, s56, v2")
    A("v_lshlrev_b32 v252, 4, v251")
    A("v_add_u32 v252, 0x24000, v252")
    A("v_lshrrev_b32 v253, 3, v251")
    A("v_lshlrev_b32 v253, 9, v253")
    A("v_and_b32 v251, 7, v251")
    A("v_lshl_add_u32 v253, v251, 4, v253")
    A("s_lshr_b32 s56, s2, 2")
    A("s_mul_i32 s56, s56, 28672")
    A("s_and_b32 s57, s2, 3")
    A("s_lshl_b32 s57, s57, 7")
    A("s_add_u32 s56, s56, s57")
    A("v_add_u32 v253, s56, v253")
    A("v_mov_b32 v5, 0x7ffffff0")
    A("v_cmp_gt_u32 vcc, 56, v2")
    A("s_nop 1")
    A("v_cndmask_b32 v253, v5, v253, vcc")
    A("v_cmp_gt_u32 vcc, 28, v3")
    A("v_mov_b32 v5, 0x7ffffff0")
    A("s_nop 0")
    A("v_cndmask_b32 v25, v5, v25, vcc")
    A("v_cndmask_b32 v7, 0, 1.0, vcc")
    A("s_and_b32 s67, s3, 1")
    A("s_lshr_b32 s68, s3, 1")
    A("v_and_b32 v3, 15, v2")
    A("v_lshrrev_b32 v4, 4, v2")
    A("v_lshrrev_b32 v5, 3, v3")
    A("v_and_b32 v6, 7, v3")
    A("v_lshl_add_u32 v6, v5, 4, v6")
    A("v_lshlrev_b32 v5, 1, v5")
    A("v_xor_b32 v5, v4, v5")
    A("v_lshlrev_b32 v16, 6, v6")
    A("v_lshl_add_u32 v16, v5, 4, v16")
    A("s_lshl_b32 s56, s67, 13")
    A("v_add_u32 v16, s56, v16")
    A("v_lshlrev_b32 v6, 4, v6")
    A("v_lshrrev_b32 v5, 1, v4")
    A("v_lshl_add_u32 v6, v5, 10, v6")
    A("v_and_b32 v5, 1, v4")
    A("v_lshl_add_u32 v6, v5, 9, v6")
    A("v_lshrrev_b32 v60, 2, v3")
    A("v_lshl_add_u32 v61, v4, 3, v60")
    A("v_lshlrev_b32 v61, 9, v61")
    A("v_and_b32 v62, 1, v3")
    A("v_lshl_add_u32 v61, v62, 3, v61")
    A("s_lshl_b32 s56, s68, 8")
    A("s_add_u32 s56, s56, 65536")
    A("v_add_u32 v61, s56, v61")
    A("v_lshl_or_b32 v60, v60, 2, v5")
    A("v_and_b32 v62, 2, v3")
    A("v_xor_b32 v60, v60, v62")
    for j in range(8):
        A(f"v_xor_b32 v62, {4*(j>>1)+(j&1)}, v60")
        A(f"v_lshl_add_u32 v{17+j}, v62, 4, v61")
    A("v_lshlrev_b32 v5, 4, v2")
    A("s_and_b32 s56, s2, 7"); A("s_lshr_b32 s57, s2, 7"); A("s_lshl_b32 s56, s56, 1"); A("s_add_u32 s85, s56, s57")
    A("s_lshl_b32 s60, s85, 9"); A("s_lshl_b32 s56, s3, 7"); A("s_add_u32 s60, s60, s56")
    A("s_lshl_b32 s86, s3, 12")
    A("s_add_u32 s86, s86, 114688")
    srd(A, 28, 40, 448*4096*2)
    g.wq = Stager(g, "s[28:31]", 8192, "s60", "s86", [16384, 18432, 32768, 34816, 0, 2048], "v27", "v28", "v3", "v4", "w")
    g.wq.setup(); g.wq.setup_tr()
    A("s_lshl_b32 s69, s2, 2")
    A("s_add_u32 s69, s69, s3")
    A("s_lshl_b32 s70, s69, 12")
    A("v_and_b32 v246, 15, v2")
    A("v_lshlrev_b32 v246, 7, v246")
    A("v_add_u32 v247, s70, v246")
    A("s_lshl_b32 s70, s69, 11")
    A("v_add_u32 v246, s70, v246")
    srd(A, 32, 46, 4096*448*2); srd(A, 76, 50, 448*1792*2); srd(A, 80, 52, 448*1792*2)
    TWT = {TQ: ("v247", 28, 0), TQ + 2: ("v247", 28, 2048), 19: ("v247", 32, 0), 21: ("v247", 32, 2048), 23: ("v246", 76, 0), 25: ("v246", 80, 0)}
    ln = [lambda: A(f"s_waitcnt vmcnt({vm.newer(lambda t: t == 'ln')})")]
    for i in range(8):
        ln += [f"v_lshlrev_b32 v{40+2*i}, 16, v{32+i}", f"v_and_b32 v{41+2*i}, 0xffff0000, v{32+i}"]
    ln += ["v_add_f32 v56, v40, v41"] + [f"v_add_f32 v56, v56, v{40+i}" for i in range(2, 16)]
    ln += half_sum_l("v56", "v57") + ["v_mul_f32 v56, 0x3b124925, v56", "v_mov_b32 v58, 0"]
    for i in range(16):
        ln += [f"v_sub_f32 v57, v{40+i}, v56", "v_fmac_f32 v58, v57, v57"]
    ln += ["v_mul_f32 v58, v58, v7"] + half_sum_l("v58", "v57") + ["v_mul_f32 v58, 0x3b124925, v58"]
    ln += bf16_round_l("v56", "v56") + bf16_round_l("v58", "v58") + ["v_add_f32 v58, 0x3727c5ac, v58"] + bf16_round_l("v58", "v58")
    ln += ["v_sqrt_f32 v58, v58", "s_nop 0"] + bf16_round_l("v58", "v58") + ["v_rcp_f32 v58, v58"]
    ln += [f"v_sub_f32 v{40+i}, v{40+i}, v56" for i in range(16)]
    ln += [f"v_cvt_pk_bf16_f32 v{32+i}, v{40+2*i}, v{41+2*i}" for i in range(8)]
    for i in range(8):
        ln += [f"v_lshlrev_b32 v{40+2*i}, 16, v{32+i}", f"v_and_b32 v{41+2*i}, 0xffff0000, v{32+i}"]
    ln += [f"v_mul_f32 v{40+i}, v{40+i}, v58" for i in range(16)]
    ln += [f"v_cvt_pk_bf16_f32 v{32+[0,1,4,5,2,3,6,7][i]}, v{40+2*i}, v{41+2*i}" for i in range(8)]
    ln += ["ds_write_b128 v26, v[32:35]", "ds_write_b128 v26, v[36:39] offset:128"]
    ln2 = ["ds_read_b128 v[32:35], v252", "ds_read_b128 v[36:39], v252 offset:896"]
    ln3 = [(f"buffer_store_dwordx4 v[32:35], v253, s[24:27], 0 offen{SC}", "sA"), (f"buffer_store_dwordx4 v[36:39], v253, s[24:27], 0 offen offset:3584{SC}", "sA")]
    SETS = [64, 128]
    def reads(stage, st_):
        slot = stage % 4
        b = SETS[st_]
        ra = [f"ds_read_b128 {v(b+4*i,4)}, v16 offset:{slot*16384 + (32*(i>>1)+8*(i&1))*64}" for i in range(8)]
        rw = [[f"ds_read_b64_tr_b16 {v(b+32+4*j+2*t,2)}, v{17+j} offset:{slot*16384 + 2048*t}" for t in range(2)] for j in range(8)]
        out = []
        for i in range(8): out += [ra[i]] + rw[i]
        return out
    def mf(typ, i, j, st_, first=False):
        b = SETS[st_]
        acc = a((i*8+j)*4, 4)
        c = "0" if first else acc
        ca, w_ = v(b+4*i, 4), v(b+32+4*j, 4)
        return f"v_mfma_f32_16x16x32_bf16 {acc}, {w_}, {ca}, {c}" if typ == 0 else f"v_mfma_f32_16x16x32_bf16 {acc}, {ca}, {w_}, {c}"
    A("s_lshr_b32 s56, s2, 3")
    A("s_and_b32 s5, s56, 15")
    A("s_lshl_b32 s57, s5, 1")
    A("s_add_u32 s58, s57, s3")
    A("s_sub_u32 s59, 60, s57")
    A("s_add_u32 s59, s59, s3")
    A("s_cmp_lt_u32 s3, 2")
    A("s_cselect_b32 s58, s58, s59")
    A("s_mul_i32 s69, s58, 28672")
    XCH = [0, 65536, 16384, 81920, 32768, 98304, 49152]
    g.XCH = XCH
    def xdma(c):
        out = [f"s_add_u32 m0, s64, {XCH[c]}", f"s_add_u32 s56, s69, {c*4096}"]
        out += [(f"buffer_load_dwordx4 v5, s[24:27], s56 offen offset:{1024*i}{SC} lds", ("x", c)) for i in range(4)]
        return out
    vm0 = list(vm.ops)
    A("s_cmp_eq_u32 s7, 1")
    A("s_cbranch_scc1 PA_V")
    for typ in (0, 1):
        if typ: A.label("PA_V")
        vm.ops = list(vm0)
        A(f"s_waitcnt vmcnt({vm.newer(lambda t: t == ('d', 0))})")
        A("s_barrier")
        ST(2)
        emit(g, reads(0, 0))
        A("s_waitcnt lgkmcnt(0)")
        carry = []
        for s_ in range(32):
            sched = {}
            g0 = 0
            if s_ == 0:
                spread(sched, dma(2) + dma(3), 0, 23); g0 = 24
            def w(s_=s_):
                n = vm.newer(lambda t: t == ("d", s_ + 1))
                if s_ == FSA: n = min(n, vm.newer(lambda t: t == "sA"))
                A(f"s_waitcnt vmcnt({n})")
            if s_ < 31:
                sched.setdefault(g0, []).extend([w, "s_barrier"])
                spread(sched, reads(s_ + 1, (s_ + 1) % 2), g0 + 1, 54)
            if s_ == 31: sched.setdefault(0, []).append("s_barrier")
            if s_ + 4 < 32: spread(sched, dma(s_ + 4), g0 + 2, 48)
            if s_ == FSA: sched[g0].append(lambda: (A("s_lshl_b32 s56, s2, 2"), set_flag(g, "s56")))
            if TOUCH and s_ in TWT:
                tv, ts, to = TWT[s_]
                sched.setdefault(52, []).append((f"buffer_load_dword v248, {tv}, s[{ts}:{ts+3}], 0 offen offset:{to}", "t"))
            if s_ == LNS - 3 and not NOSIDE: sched.setdefault(51, []).extend([("buffer_load_dwordx4 v[32:35], v25, s[20:23], 0 offen", "ln"), ("buffer_load_dwordx4 v[36:39], v25, s[20:23], 0 offen offset:16", "ln")])
            if s_ == LNS and not NOSIDE: carry += ln
            if s_ == LNS + 4:
                assert not carry
                sched.setdefault(20, []).extend(ln2)
            if s_ == LNS + 5: sched.setdefault(20, []).extend(ln3)
            if s_ == 5:
                def raise_dbg():
                    L = A.newlabel("RDBG")
                    A("s_or_b32 s56, s2, s3")
                    A(f"s_cbranch_scc1 {L}")
                    A("s_mov_b64 exec, 1")
                    A("global_store_dword v29, v30, s[92:93] sc1")
                    A("s_mov_b64 exec, -1")
                    A.label(L)
                sched[g0].append(raise_dbg)
            if TOUCH and s_ in TW: sched.setdefault(50, []).extend(touchW())
            if TOUCH and s_ == TA: sched.setdefault(50, []).extend(touchA(1))
            if s_ == FSA - 4:
                sched.setdefault(50, []).append(("global_load_dword v59, v29, s[92:93] sc1", "dbg"))
            if s_ == FSA - 1:
                def chk_dbg():
                    L = A.newlabel("DBG")
                    A(f"s_waitcnt vmcnt({vm.newer(lambda t: t == 'dbg')})")
                    A("s_mov_b32 s87, 0")
                    A.label(L)
                    A("v_cmp_ne_u32 vcc, 1, v59")
                    A(f"s_cbranch_vccz {L}_OK")
                    A("s_sleep 1")
                    A("global_load_dword v59, v29, s[92:93] sc1")
                    A("s_waitcnt vmcnt(0)")
                    A("s_add_u32 s87, s87, 1")
                    A(f"s_cmp_lt_u32 s87, {SPIN}")
                    A(f"s_cbranch_scc1 {L}")
                    A.label(L + "_OK")
                sched.setdefault(50, []).append(chk_dbg)
            if s_ == 24:
                sched.setdefault(50, []).append((f"buffer_load_dwordx4 v[56:59], v5, s[88:91], 0 offen offset:{F_SA*4} sc1", "pf"))
            if s_ == 26:
                def chk_sa():
                    L = A.newlabel("PSA")
                    A(f"s_waitcnt vmcnt({vm.newer(lambda t: t == 'pf')})")
                    A("s_mov_b32 s87, 0")
                    A.label(L)
                    A("v_and_b32 v56, v56, v57"); A("v_and_b32 v58, v58, v59"); A("v_and_b32 v56, v56, v58")
                    A("v_cmp_ne_u32 vcc, 1, v56")
                    A(f"s_cbranch_vccz {L}_OK")
                    A("s_sleep 1")
                    A(f"buffer_load_dwordx4 v[56:59], v5, s[88:91], 0 offen offset:{F_SA*4} sc1")
                    A("s_waitcnt vmcnt(0)")
                    A("s_add_u32 s87, s87, 1")
                    A(f"s_cmp_lt_u32 s87, {SPIN}")
                    A(f"s_cbranch_scc1 {L}")
                    A.label(L + "_OK")
                sched.setdefault(50, []).append(chk_sa)
            xc = {28: [0, 1], 29: [2, 3], 30: [4, 5], 31: [6]}.get(s_, [])
            if xc:
                items = []
                for c in xc: items += xdma(c)
                spread(sched, items, 2, 30)
            wk = {28: [0, 1], 29: [2, 3], 31: [4, 5]}.get(s_, [])
            if wk:
                items = []
                for ks in wk: items += g.wq.dma(ks)
                spread(sched, items, 34, 60)
            ms = [mf(typ, i, j, s_ % 2, first=(s_ == 0)) for i in range(8) for j in range(8)]
            run_sched(A, ms, sched, carry, 2, vm)
            if s_ < 31: A("s_waitcnt lgkmcnt(0)")
            if s_ in (7, 15, 23): ST(3 + s_ // 8)
            if g.ST2: g.ST2(s_)
        assert not carry
        ST(6)
        if g.ST2:
            ws_srd(A, 24, 54, STAMP_OFF + (1 << 20), 1 << 20)
            A("s_lshl_b32 s56, s2, 2"); A("s_add_u32 s56, s56, s3"); A("s_lshl_b32 s56, s56, 8")
            A("v_lshlrev_b32 v62, 2, v2")
            A("buffer_store_dword v63, v62, s[24:27], s56 offen")
        phaseB(g, typ)
        if typ == 0: A("s_branch PB_JOIN")
    A.label("PB_JOIN")

def phaseB(g, typ):
    A, ST, vm = g.A, g.ST, g.vm
    A("s_lshl_b32 s70, s4, 21")
    A("s_lshl_b32 s71, s6, 18")
    A("s_add_u32 s70, s70, s71")
    A("s_lshl_b32 s71, s67, 17")
    A("s_add_u32 s70, s70, s71")
    A("s_lshl_b32 s71, s68, 13")
    A("s_add_u32 s70, s70, s71")
    if typ: A("s_add_u32 s70, s70, 16384")
    for kb in range(4):
        A(f"s_add_u32 s{72+2*kb}, s70, {kb*32768}")
        A(f"s_add_u32 s{73+2*kb}, s70, {kb*32768+4096}")
    epi = []
    cnt = 0
    for u in range(8):
        for pp in range(4):
            if typ == 0: i, j0 = u, 2*pp; t0, t1 = (i*8+j0)*4, (i*8+j0+1)*4; kb, odd, db = i >> 1, i & 1, pp
            else: j, i0 = u, 2*pp; t0, t1 = (i0*8+j)*4, ((i0+1)*8+j)*4; kb, odd, db = pp, j & 1, j >> 1
            t = 32 + (cnt % 2) * 16; cnt += 1
            epi += [f"v_accvgpr_read_b32 v{t+r}, a{t0+r}" for r in range(4)]
            epi += [f"v_accvgpr_read_b32 v{t+4+r}, a{t1+r}" for r in range(4)]
            epi += [f"v_cvt_pk_bf16_f32 v{t+8+r}, v{t+2*r}, v{t+2*r+1}" for r in range(4)]
            epi.append((f"buffer_store_dwordx4 {v(t+8,4)}, v6, s[16:19], s{72+2*kb+(db>>1)} offen offset:{(db&1)*2048 + odd*128}{SC}", "kv"))
    QACC = 96
    XF = [64, 80]
    A("v_add_u32 v7, 0x10000, v5"); A("v_add_u32 v8, 0x20000, v5")
    def xreads(ks):
        b = XF[ks % 2]
        out = []
        for q in range(4):
            o = g.XCH[ks // 4] + q * 4096 + (ks % 4) * 1024
            out.append(f"ds_read_b128 {v(b+4*q,4)}, {['v5','v7','v8'][o >> 16]} offset:{o & 0xffff}")
        return out
    WF = [224, 232]
    A(f"s_waitcnt vmcnt({min(vm.newer(lambda t: t == ('x', 3)), vm.newer(lambda t: t == ('w', 0)))})")
    A("s_barrier")
    emit(g, xreads(0) + g.wq.tr(0, WF[0], WF[0] + 4))
    EPB = int(os.environ.get("EPB", "5"))
    FLAGKS = int(os.environ.get("FLAGKS", "18"))
    def kvflag():
        assert not epi
        A(f"s_waitcnt vmcnt({vm.newer(lambda t: t == 'kv')})")
        A("s_barrier")
        A("s_lshl_b32 s56, s4, 6"); A("s_lshl_b32 s57, s7, 5"); A("s_add_u32 s56, s56, s57"); A("s_lshl_b32 s57, s6, 2"); A("s_add_u32 s56, s56, s57")
        A(f"s_add_u32 s56, s56, {F_KV*4}")
        set_flag(g, "s56")
    for ks in range(28):
        sched = {}
        A("s_waitcnt lgkmcnt(0)")
        if ks == FLAGKS: kvflag()
        if ks + 1 < 28:
            def w(ks=ks):
                n = vm.newer(lambda t: t == ('w', ks + 1))
                if ks == 15: n = min(n, vm.newer(lambda t: t == ('x', 6)))
                A(f"s_waitcnt vmcnt({n})")
                if ks == 15: A("s_barrier")
            items = [w] + g.wq.tr(ks + 1, WF[(ks+1) % 2], WF[(ks+1) % 2] + 4) + xreads(ks + 1)
            if ks + 6 < 28: items += g.wq.dma(ks + 6)
            spread(sched, items, 0, 6)
        ms = []
        for q in range(4):
            for d in range(2):
                acc = v(QACC + (d*4+q)*16, 16)
                c = "0" if ks == 0 else acc
                ms.append(f"v_mfma_f32_32x32x16_bf16 {acc}, {v(WF[ks%2]+4*d,4)}, {v(XF[ks%2]+4*q,4)}, {c}")
        run_sched(A, ms, sched, epi, EPB + 1, vm)
    assert not epi, len(epi)
    ST(7)
    if FLAGKS >= 28: kvflag()
    else: A("s_barrier")

def phaseC(g):
    A, ST, vm = g.A, g.ST, g.vm
    VL16 = "v5"
    MC = ["v8", "v9"]; THR = ["v10", "v11"]; LS = ["v12", "v13"]; FAC = ["v14", "v15"]; TM = ["v16", "v17"]; MR = ["v18", "v19"]
    T0, T1, T2 = "v4", "v6", "v7"
    SEL = [20, 24]
    VQROW, VSTAT, VSTR = "v0", "v1", "v3"
    SB = [32, 64]
    WIN = 128
    QA = 0
    KV = "s[16:19]"
    def Oreg(gq, dbl, qb):
        b = (gq * 2 + dbl) * 2 + qb
        if b < 8: return ("v", 128 + b * 16)
        if b < 10: return ("v", 96 + (b - 8) * 16)
        return ("a", 160 + (b - 10) * 16)
    def OR(gq, dbl, qb):
        f, b = Oreg(gq, dbl, qb)
        return (a if f == "a" else v)(b, 16)
    allO = [(gq, d, q) for gq in range(4) for d in range(2) for q in range(2)]
    QACC = 96
    A("s_mov_b32 s4, s85")
    A("s_lshl_b32 s45, s3, 12")
    A(f"v_add_u32 {T0}, s45, {VL16}")
    for q in range(4):
        for d in range(2):
            b = QACC + (d*4+q)*16
            for r in range(8):
                A(f"v_cvt_pk_bf16_f32 v{b+r}, v{b+2*r}, v{b+2*r+1}")
            for s_ in range(2):
                A(f"ds_write_b128 {T0}, {v(b+4*s_,4)} offset:{q*16384 + (2*d+s_)*1024}")
    ws_srd(A, 20, 54, CTX_OFF, CTX_SZ)
    A("s_and_b32 s45, s3, 1")
    A("s_lshl_b32 s45, s45, 1")
    for gq in range(4):
        A(f"s_add_u32 s{64+gq}, s45, {gq+2}")
        A(f"s_and_b32 s{64+gq}, s{64+gq}, 3")
        A(f"s_lshl_b32 s{64+gq}, s{64+gq}, 12")
    A("s_lshl_b32 s45, s5, 1")
    A("s_sub_u32 s56, 64, s45")
    A("s_mul_i32 s57, s3, 17")
    A("s_min_u32 s57, s57, 50")
    A("s_add_u32 s58, s57, 17")
    A("s_cmp_ge_u32 s3, 2")
    A("s_cselect_b32 s45, 1, 0")
    A("s_sub_u32 s58, s58, s45")
    A("s_min_u32 s59, s58, s56")
    A("s_sub_i32 s59, s59, s57")
    A("s_max_i32 s59, s59, 0")
    A("s_max_u32 s60, s57, s56")
    A("s_sub_i32 s53, s58, s60")
    A("s_max_i32 s53, s53, 0")
    A("s_sub_u32 s60, s60, s56")
    A("s_cmp_gt_u32 s59, 0")
    A("s_cselect_b32 s34, 0, 1")
    A("s_cselect_b32 s40, s57, s60")
    A("s_cselect_b32 s7, s59, s53")
    A("s_cselect_b32 s53, s53, 0")
    A("s_mov_b32 s52, 0")
    A("s_cmp_gt_u32 s56, 50")
    A("s_cselect_b32 s61, 0x8000, 0")
    A("s_add_u32 s61, s61, 98304")
    A("v_and_b32 v32, 31, v2")
    A("v_lshrrev_b32 v33, 5, v2")
    A(f"v_lshlrev_b32 {VSTR}, 6, v32")
    A(f"v_add_u32 {VSTR}, s61, {VSTR}")
    A(f"v_lshlrev_b32 {VSTAT}, 4, v32")
    A(f"v_add_u32 {VSTAT}, s61, {VSTAT}")
    A(f"v_add_u32 {VSTAT}, 4096, {VSTAT}")
    A("v_lshlrev_b32 v34, 2, v33")
    A("v_sub_u32 v34, v32, v34")
    A(f"v_cvt_f32_i32 {VQROW}, v34")
    A(f"v_add_f32 {VQROW}, 0.5, {VQROW}")
    A("v_mov_b32 v35, 0x3f80")
    A("v_mov_b32 v36, 0x3f800000")
    for s_ in range(2):
        for p in range(4):
            e0 = 2*p
            c0 = 16*s_ + 8*(e0 >> 2) + (e0 & 3)
            A(f"v_cmp_eq_u32 vcc, {c0}, v34")
            A(f"v_cmp_eq_u32 s[50:51], {c0+1}, v34")
            A("s_nop 1")
            A(f"v_cndmask_b32 v{SEL[s_]+p}, 0, v35, vcc")
            A(f"v_cndmask_b32 v{SEL[s_]+p}, v{SEL[s_]+p}, v36, s[50:51]")
    if WOT:
        A("s_load_dwordx2 s[72:73], s[0:1], 40")
        A("s_lshr_b32 s45, s2, 3"); A("s_lshl_b32 s45, s45, 2"); A("s_add_u32 s45, s45, s3")
        A("s_mul_i32 s70, s45, 28672")
        A("v_and_b32 v37, 31, v2")
        A("v_lshlrev_b32 v37, 7, v37")
        A("v_accvgpr_write_b32 a255, v37") if False else None
        A("s_waitcnt lgkmcnt(0)")
        srd(A, 24, 72, 4096*448*2)
    A(f"s_mov_b32 s68, {f32bits(CSC):#x}")
    A(f"s_mov_b32 s69, {f32bits(TTHR/CSC):#x}")
    A("v_and_b32 v32, 15, v2")
    A("v_lshlrev_b32 v32, 2, v32")
    A("s_lshl_b32 s45, s4, 6")
    A(f"s_add_u32 s45, s45, {F_KV*4}")
    poll(g, 36, "v32", "s45")
    ST(8)
    A("s_lshl_b32 s48, s4, 21")
    A("s_lshl_b32 s35, s40, 15")
    A("s_add_u32 s35, s35, s48")
    for f in range(8):
        if f % 4 == 0: A(f"s_add_u32 s45, s35, {(f//4)*4096}")
        A(f"buffer_load_dwordx4 {a(WIN+4*f,4)}, {VL16}, {KV}, s45 offen offset:{(f%4)*1024}{SC}")
    A("s_waitcnt lgkmcnt(0)")
    A("s_barrier")
    A(f"v_mov_b32 v32, {f32bits(-BIG):#x}"); A("v_mov_b32 v33, 0"); A("v_mov_b32 v34, v32"); A("v_mov_b32 v35, 0")
    for q in range(2):
        A(f"ds_write_b128 {VSTR}, v[32:35] offset:{q*2048+32}")
        A(f"ds_write_b128 {VSTR}, v[32:35] offset:{q*2048+48}")
    A("s_cmp_eq_u32 s34, 0")
    A("s_cselect_b32 s45, 0x8000, 0")
    A(f"v_add_u32 {T0}, s45, {VL16}")
    for i in range(32):
        A(f"ds_read_b128 {a(QA+4*i,4)}, {T0} offset:{i*1024}")
    def zeroO():
        out = []
        for (gq, d, q) in allO:
            f, b = Oreg(gq, d, q)
            for r in range(16):
                out.append(f"v_mov_b32 v{b+r}, 0" if f == "v" else f"v_accvgpr_write_b32 a{b+r}, 0")
        return out
    def stream(items, fillers, budget=None, first_gap=0):
        cst = [3 if callable(x) else cost(x) for x in fillers]
        tot = sum(cst); ng = len(items) - first_gap
        fi = 0; done = 0
        for gi, (pre, m, post) in enumerate(items):
            for x in pre: A(x)
            A(m)
            for x in post: A(x)
            if gi >= first_gap:
                target = tot * (gi - first_gap + 1) / ng
                while fi < len(fillers) and done + cst[fi] / 2 <= target:
                    x = fillers[fi]
                    if callable(x): x()
                    else: A(x)
                    done += cst[fi]; fi += 1
        while fi < len(fillers):
            x = fillers[fi]; fi += 1
            if callable(x): x()
            else: A(x)
    def ld(sl, soff, f): return f"buffer_load_dwordx4 {a(sl,4)}, {VL16}, {KV}, {soff} offen offset:{(f%4)*1024}{SC}"
    def X_items(p, loads2):
        items = []
        for f in range(16):
            sl = WIN + 4 * (f % 8)
            for q in range(2):
                acc = v(SB[p] + q*16, 16)
                c = "0" if f == 0 else acc
                pre = ["s_waitcnt vmcnt(7)"] if q == 0 else []
                post = []
                if q == 1:
                    if f < 8:
                        if f % 4 == 0: post.append(f"s_add_u32 s45, s36, {(2+f//4)*4096}")
                        post.append(ld(sl, "s45", f))
                    else: post.append(ld(sl, loads2[(f-8)//4], f))
                items.append((pre, f"v_mfma_f32_32x32x16_bf16 {acc}, {a(sl,4)}, {a(QA+(q*16+f)*4,4)}, {c}", post))
        return items
    def Y_items(p, loads2, first=False):
        items = []
        for f in range(16):
            sl = WIN + 4 * (f % 8)
            gq, d, s_ = f // 4, (f // 2) % 2, f % 2
            for q in range(2):
                acc = OR(gq, d, q)
                pre = ["s_waitcnt vmcnt(7)"] if q == 0 else []
                post = []
                if q == 1:
                    if f < 8:
                        if f % 4 == 0: post.append(f"s_add_u32 s45, s37, s{64+2+f//4}")
                        post.append(ld(sl, "s45", f))
                    else: post.append(ld(sl, loads2[(f-8)//4], f))
                items.append((pre, f"v_mfma_f32_32x32x16_bf16 {acc}, {a(sl,4)}, {v(SB[p]+q*16+4*s_,4)}, {'0' if (first and s_ == 0) else acc}", post))
        return items
    def expq(p, q):
        b = SB[p] + q*16
        out = []
        def post(k):
            return [f"v_add_f32 {LS[q]}, {LS[q]}, v{b+2*k}", f"v_add_f32 {LS[q]}, {LS[q]}, v{b+2*k+1}",
                    f"v_cvt_pk_bf16_f32 v{b+k}, v{b+2*k}, v{b+2*k+1}"]
        for k in range(8):
            out.append(f"v_fma_f32 v{b+2*k}, v{b+2*k}, s68, -{MC[q]}")
            out.append(f"v_fma_f32 v{b+2*k+1}, v{b+2*k+1}, s68, -{MC[q]}")
            out.append(f"v_exp_f32 v{b+2*k}, v{b+2*k}")
            out.append(f"v_exp_f32 v{b+2*k+1}, v{b+2*k+1}")
            if k > 0: out += post(k-1)
        out.append("s_nop 0")
        out += post(7)
        return out
    def maxq(p, q):
        b = SB[p] + q*16
        out = [f"v_max3_f32 {TM[q]}, v{b}, v{b+1}, v{b+2}"]
        for r in range(3, 15, 2):
            out.append(f"v_max3_f32 {TM[q]}, {TM[q]}, v{b+r}, v{b+r+1}")
        out.append(f"v_max_f32 {TM[q]}, {TM[q]}, v{b+15}")
        return out
    def mask_code(p):
        A("s_lshl_b32 s63, s6, 1")
        A("s_sub_u32 s63, s63, s40")
        A("s_lshl_b32 s63, s63, 5")
        A(f"v_cvt_f32_i32 {T0}, s63")
        A(f"v_add_f32 {T0}, {T0}, {VQROW}")
        for q in range(2):
            A(f"v_mov_b32 {T1}, {T0}" if q == 0 else f"v_add_f32 {T1}, 0x42000000, {T0}")
            A(f"v_mul_f32 {T1}, {f32bits(BIG):#x}, {T1}")
            b = SB[p] + q*16
            for r in range(16):
                cr = 8*(r >> 2) + (r & 3)
                A(f"v_add_f32 {T2}, {f32bits(-cr*BIG):#x}, {T1}" if cr else f"v_mov_b32 {T2}, {T1}")
                A(f"v_min_f32 v{b+r}, v{b+r}, {T2}")
    def rescaleO(blocks=None):
        A("s_nop 7"); A("s_nop 7")
        for (gq, d, q) in (blocks or allO):
            f, b = Oreg(gq, d, q)
            for r in range(16):
                if f == "v":
                    A(f"v_mul_f32 v{b+r}, v{b+r}, {FAC[q]}")
                else:
                    A(f"v_accvgpr_read_b32 {T0}, a{b+r}")
                    A(f"v_mul_f32 {T0}, {T0}, {FAC[q]}")
                    A(f"v_accvgpr_write_b32 a{b+r}, {T0}")
        A("s_nop 1")
    rare_blocks = []
    def P1(p, tag):
        def maskbr():
            A("s_cmp_ge_u32 s40, s41")
            A(f"s_cbranch_scc1 PC_MASK_{tag}")
            A.label(f"PC_MASKRET_{tag}")
        def chk():
            A(f"v_cmp_gt_f32 vcc, {TM[0]}, {THR[0]}")
            A(f"v_cmp_gt_f32 s[50:51], {TM[1]}, {THR[1]}")
            A("s_or_b64 s[50:51], vcc, s[50:51]")
            A(f"s_cbranch_scc1 PC_RARE_{tag}")
            A.label(f"PC_RARERET_{tag}")
        rare_blocks.append((p, tag))
        return [maskbr] + maxq(p, 0) + maxq(p, 1) + [chk, "s_add_u32 s40, s40, 1"] + expq(p, 0)[:CUT]
    STEP = 32768
    def pack_l(gq, addr, off, tmp):
        out = []
        for d in range(2):
            for q in range(2):
                f, b = Oreg(gq, d, q)
                if f == "a":
                    t = tmp + ((d*2+q) % 2) * 16
                    out += [f"v_accvgpr_read_b32 v{t+r}, a{b+r}" for r in range(16)]
                    b = t
                out += [f"v_cvt_pk_bf16_f32 v{b+r}, v{b+2*r}, v{b+2*r+1}" for r in range(8)]
                out += [f"ds_write_b128 {addr}, {v(b+4*s_,4)} offset:{off + ((d*2+q)*2+s_)*1024}" for s_ in range(2)]
        return out
    def xaddr(dst, wreg):
        A(f"s_lshr_b32 s43, {wreg}, 1")
        A("s_mul_i32 s43, s43, 98304")
        A(f"s_and_b32 {dst}, {wreg}, 1")
        A(f"s_lshl_b32 {dst}, {dst}, 14")
        A(f"s_add_u32 {dst}, {dst}, s43")
        A(f"s_add_u32 {dst}, {dst}, 32768")
    def seg_head():
        A("s_sub_u32 s6, 31, s5")
        A("s_cmp_eq_u32 s34, 0")
        A("s_cselect_b32 s6, s6, s5")
        A("s_lshl_b32 s41, s6, 1")
        A("s_mov_b32 s42, 0")
        A(f"v_mov_b32 {LS[0]}, 0"); A(f"v_mov_b32 {LS[1]}, 0")
        xaddr("s45", "s3")
        A("s_lshl_b32 s43, s3, 15")
        A("s_lshl_b32 s44, s64, 1")
        A("s_add_u32 s43, s43, s44")
        A("s_lshr_b32 s44, s3, 1")
        A("s_xor_b32 s49, s34, 1")
        A("s_and_b32 s49, s49, s44")
        A("s_cselect_b32 s45, s43, s45")
        A(f"v_add_u32 v28, s45, {VL16}")
        A("s_mov_b32 s36, s35")
        A(f"s_add_u32 s43, s35, {STEP}")
        A(f"s_add_u32 s44, s35, {STEP+4096}")
        A("s_add_u32 s45, s35, 16384")
        A("s_add_u32 s38, s45, s64")
        A("s_add_u32 s39, s45, s65")
        A("s_cmp_gt_u32 s7, 1")
        A("s_cselect_b32 s43, s43, s38")
        A("s_cselect_b32 s44, s44, s39")
        A("s_waitcnt lgkmcnt(0)")
    seg_head()
    stream(X_items(0, ["s43", "s44"]), [])
    A.label("PC_X0DONE")
    A("s_nop 7"); A("s_nop 3")
    A("s_cmp_ge_u32 s40, s41")
    A("s_cbranch_scc0 PC_NOMASK0")
    mask_code(0)
    A.label("PC_NOMASK0")
    for x in maxq(0, 0) + maxq(0, 1): A(x)
    xhalf(A, "v_max_f32", TM[0], T0)
    xhalf(A, "v_max_f32", TM[1], T1)
    A("s_lshl_b32 s45, s34, 10")
    A(f"v_add_u32 {T1}, s45, {VSTAT}")
    A("s_cmp_lg_u32 s52, 0")
    A("s_cbranch_scc1 PC_NOPUB")
    A("s_lshl_b32 s43, s3, 2")
    A(f"v_add_u32 {T0}, s43, {T1}")
    A(f"v_xor_b32 {T2}, 1024, {T0}")
    A(f"v_mov_b32 v{SB[1]}, {f32bits(-BIG):#x}")
    for q in range(2):
        A(f"ds_write_b32 {T0}, {TM[q]} offset:{q*512}")
        A(f"ds_write_b32 {T2}, v{SB[1]} offset:{q*512}")
    A("s_waitcnt lgkmcnt(0)")
    A("s_barrier")
    A.label("PC_NOPUB")
    for q in range(2):
        A(f"ds_read_b128 {v(SB[1]+q*4,4)}, {T1} offset:{q*512}")
    A("s_waitcnt lgkmcnt(0)")
    for q in range(2):
        b = SB[1] + q*4
        A(f"v_max3_f32 {MR[q]}, v{b}, v{b+1}, v{b+2}")
        A(f"v_max_f32 {MR[q]}, {MR[q]}, v{b+3}")
        A(f"v_add_f32 {THR[q]}, s69, {MR[q]}")
        A(f"v_cmp_gt_f32 vcc, {TM[q]}, {THR[q]}")
        A("s_nop 1")
        A(f"v_cndmask_b32 {MR[q]}, {MR[q]}, {TM[q]}, vcc")
        A(f"v_mul_f32 {MC[q]}, s68, {MR[q]}")
        A(f"v_add_f32 {THR[q]}, s69, {MR[q]}")
    A("s_add_u32 s40, s40, 1")
    for x in expq(0, 0)[:CUT]: A(x)
    A("s_cmp_eq_u32 s7, 1")
    A("s_cbranch_scc1 PC_TAILF")
    def body(p, tag, first=False):
        A(f"s_add_u32 s36, s35, {STEP}")
        A("s_add_u32 s37, s35, 16384")
        A("s_add_u32 s43, s37, s64")
        A("s_add_u32 s44, s37, s65")
        stream(X_items(p ^ 1, ["s43", "s44"]), expq(p, 0)[CUT:] + expq(p, 1))
        A(f"s_add_u32 s43, s35, {2*STEP}")
        A(f"s_add_u32 s44, s35, {2*STEP+4096}")
        A(f"s_add_u32 s45, s35, {STEP+16384}")
        A("s_add_u32 s38, s45, s64")
        A("s_add_u32 s39, s45, s65")
        A("s_cmp_gt_u32 s7, 2")
        A("s_cselect_b32 s43, s43, s38")
        A("s_cselect_b32 s44, s44, s39")
        if WOT:
            A(f"s_cmp_le_u32 s7, {WOT}")
            A("s_cselect_b32 s71, s70, 0x7ff00000")
            A("s_cselect_b32 s45, 4096, 0")
            A("s_add_u32 s70, s70, s45")
            A(f"v_lshlrev_b32 {T0}, 2, {VL16}")
            A(f"buffer_load_dword v{SB[p]+15}, {T0}, s[24:27], s71 offen")
        stream(Y_items(p, ["s43", "s44"], first), P1(p ^ 1, tag), first_gap=2)
        A("s_cmp_lg_u32 s42, 0")
        A(f"s_cbranch_scc1 PC_PEND_{tag}")
        A.label(f"PC_PENDRET_{tag}")
        A(f"s_add_u32 s35, s35, {STEP}")
        A("s_sub_u32 s7, s7, 1")
        A("s_cmp_eq_u32 s7, 1")
    body(0, "BF", first=True)
    A("s_cbranch_scc1 PC_TAIL1")
    A("s_branch PC_LOOPB")
    A.label("PC_LOOP")
    body(0, "B0")
    A("s_cbranch_scc1 PC_TAIL1")
    A.label("PC_LOOPB")
    body(1, "B1")
    A("s_cbranch_scc0 PC_LOOP")
    for (lab, p, first) in (("0", 0, False), ("1", 1, False), ("F", 0, True)):
        A.label(f"PC_TAIL{lab}")
        for x in expq(p, 0)[CUT:] + expq(p, 1): A(x)
        A("s_add_u32 s37, s35, 16384")
        A("s_cmp_lg_u32 s53, 0")
        A(f"s_cselect_b32 s43, s48, {KV_SZ:#x}")
        A("s_add_u32 s44, s43, 4096")
        items = Y_items(p, ["s43", "s44"], first)
        qr = [f"ds_read_b128 {a(QA+4*i,4)}, {VL16} offset:{i*1024}" for i in range(32)]
        stream(items[:12], qr)
        stream(items[12:20], pack_l(0, "v28", 0, 0))
        stream(items[20:], pack_l(1, "v28", 8192, 0))
        if lab != "F": A("s_branch PC_SEGEND")
    A.label("PC_SEGEND")
    ST(9)
    xhalf(A, "v_add_f32", LS[0], T0)
    xhalf(A, "v_add_f32", LS[1], T1)
    def put_stats(slot_sgpr):
        A(f"v_add_u32 {T0}, {slot_sgpr}, {VSTR}")
        for q in range(2):
            A(f"v_mov_b32 v{SB[1]+2*q}, {MR[q]}")
            A(f"v_mov_b32 v{SB[1]+2*q+1}, {LS[q]}")
            A(f"ds_write_b64 {T0}, {v(SB[1]+2*q,2)} offset:{q*2048}")
    A("s_cmp_eq_u32 s49, 0")
    A("s_cbranch_scc1 PC_NODUMP")
    A("s_lshl_b32 s45, s3, 3")
    A("s_add_u32 s45, s45, 16")
    put_stats("s45")
    A(f"v_xor_b32 {T2}, 0x4000, v28")
    A("s_mov_b32 s34, 1")
    A("s_cmp_eq_u32 s53, 0")
    A("s_cbranch_scc1 PC_EMPTIED")
    A("s_mov_b32 s7, s53")
    A("s_mov_b32 s53, 0")
    A("s_mov_b32 s52, 1")
    A("s_mov_b32 s40, 0")
    A("s_mov_b32 s35, s48")
    seg_head()
    stream(X_items(0, ["s43", "s44"]), pack_l(2, T2, 0, SB[1]) + pack_l(3, T2, 8192, SB[1]))
    A("s_branch PC_X0DONE")
    A.label("PC_EMPTIED")
    for x in pack_l(2, T2, 0, SB[0]) + pack_l(3, T2, 8192, SB[0]): A(x)
    for x in zeroO()[128:]: A(x)
    for q in range(2):
        A(f"v_mov_b32 {MR[q]}, {f32bits(-BIG):#x}"); A(f"v_mov_b32 {LS[q]}, 0")
    A.label("PC_NODUMP")
    A("s_lshl_b32 s45, s3, 3")
    put_stats("s45")
    A.label("PC_SENT")
    A("s_waitcnt lgkmcnt(0)")
    A("s_barrier")
    A("s_lshr_b32 s45, s3, 1")
    A("s_lshl_b32 s45, s45, 4")
    A(f"v_add_u32 {T0}, s45, {VSTR}")
    for q in range(2):
        A(f"ds_read_b128 {v(SB[0]+q*8,4)}, {T0} offset:{q*2048}")
        A(f"ds_read_b128 {v(SB[0]+q*8+4,4)}, {T0} offset:{q*2048+32}")
    A("s_cmp_ge_u32 s56, 50"); A("s_cselect_b32 s57, 1, 0")
    A("s_cmp_eq_u32 s3, 3"); A("s_cselect_b32 s58, s57, 0")
    A("s_cmp_eq_u32 s3, 2"); A("s_cselect_b32 s57, s57, 0")
    A("s_cmp_gt_u32 s56, 34"); A("s_cselect_b32 s59, 1, 0")
    A("s_cmp_gt_u32 s56, 50"); A("s_cselect_b32 s60, 1, 0")
    A("s_cmp_lt_u32 s3, 2"); A("s_cselect_b32 s59, s59, 0"); A("s_cselect_b32 s60, s60, 0")
    A("s_and_b32 s45, s3, 1")
    A("s_cmp_eq_u32 s45, 1")
    A("s_cselect_b64 s[62:63], -1, 0")
    A("s_waitcnt lgkmcnt(0)")
    for q in range(2):
        b = SB[0] + q*8
        A(f"v_max3_f32 {T0}, v{b}, v{b+2}, v{b+4}")
        A(f"v_max_f32 {T0}, {T0}, v{b+6}")
        for e in range(4):
            A(f"v_sub_f32 v{b+2*e}, v{b+2*e}, {T0}")
            A(f"v_mul_f32 v{b+2*e}, s68, v{b+2*e}")
            A(f"v_exp_f32 v{b+2*e}, v{b+2*e}")
        A("s_nop 0")
        A(f"v_mul_f32 {LS[q]}, v{b}, v{b+1}")
        for e in range(1, 4):
            A(f"v_fmac_f32 {LS[q]}, v{b+2*e}, v{b+2*e+1}")
        A(f"v_rcp_f32 {LS[q]}, {LS[q]}")
        A(f"v_cndmask_b32 {FAC[q]}, v{b}, v{b+2}, s[62:63]")
        A(f"v_cndmask_b32 {TM[q]}, v{b+2}, v{b}, s[62:63]")
    own = allO[8:]
    def store_addrs():
        A("s_sub_u32 s6, 31, s5")
        A("s_cmp_lt_u32 s3, 2")
        A("s_cselect_b32 s6, s6, s5")
        A("s_lshl_b32 s45, s6, 19")
        A("s_lshl_b32 s43, s4, 14")
        A("s_add_u32 s45, s45, s43")
        A("s_and_b32 s43, s3, 1")
        A("s_lshl_b32 s43, s43, 13")
        A("s_add_u32 s45, s45, s43")
        A("s_add_u32 s44, s45, 262144")
        A("s_add_u32 s46, s45, 4096")
        A("s_add_u32 s47, s44, 4096")
    def final_l(n_, tmp):
        gq, d, q = own[n_]
        f, b = Oreg(gq, d, q)
        t = tmp + (n_ % 2) * 16
        out = []
        if f == "a":
            out += [f"v_accvgpr_read_b32 v{t+r}, a{b+r}" for r in range(16)]
            b = t
        out += [f"v_pk_mul_f32 {v(t+r,2)}, {v(b+r,2)}, v[12:13] op_sel:[0,{q}] op_sel_hi:[1,{q}]" for r in range(0, 16, 2)]
        out += [f"v_cvt_pk_bf16_f32 v{t+r}, v{t+2*r}, v{t+2*r+1}" for r in range(8)]
        out += [f"buffer_store_dwordx4 {v(t+4*s_,4)}, {VL16}, s[20:23], s{[45,44,46,47][(gq-2)*2+q]} offen offset:{(2*d+s_)*1024}{SC}" for s_ in range(2)]
        return out
    def neq(dst, f2, absent_if, absent_val):
        A(f"v_cmp_neq_f32 vcc, 1.0, {f2[0]}")
        A(f"v_cmp_neq_f32 s[50:51], 1.0, {f2[1]}")
        A("s_or_b64 s[50:51], vcc, s[50:51]")
        A("s_cselect_b32 s43, 1, 0")
        A(f"s_cmp_eq_u32 {absent_if}, {absent_val}")
        A("s_cselect_b32 s43, 0, s43")
        A(f"s_or_b32 {dst}, {dst}, s43")
    FD = [[f"v{SB[0]+q*8+4+2*k}" for q in range(2)] for k in range(2)]
    A("s_mov_b32 s42, 0")
    neq("s42", FAC, "s57", 1); neq("s42", TM, "s58", 1); neq("s42", FD[0], "s59", 0); neq("s42", FD[1], "s60", 0)
    A("s_cmp_lg_u32 s42, 0")
    A("s_cbranch_scc1 PC_SLOW")
    A("s_xor_b32 s44, s3, 1")
    xaddr("s45", "s44")
    A("s_cmp_eq_u32 s58, 0"); A("s_cselect_b32 s45, s45, 0"); A("s_cselect_b32 s36, -1, 0")
    A(f"v_add_u32 {T0}, s45, {VL16}")
    A("s_lshl_b32 s45, s3, 14"); A("s_add_u32 s45, s45, 65536"); A("s_add_u32 s44, s45, 32768")
    A("s_cmp_lg_u32 s59, 0"); A("s_cselect_b32 s45, s45, 0"); A("s_cselect_b32 s37, -1, 0")
    A(f"v_add_u32 {T1}, s45, {VL16}")
    A("s_cmp_lg_u32 s60, 0"); A("s_cselect_b32 s44, s44, 0"); A("s_cselect_b32 s38, -1, 0")
    A(f"v_add_u32 {T2}, s44, {VL16}")
    SRC = [T0, T1, T2]
    FRB = 128
    def frd(n_): return [f"ds_read_b128 {v(FRB+(n_%4)*24+(k*2+s_)*4,4)}, {SRC[k]} offset:{(n_*2+s_)*1024}" for k in range(3) for s_ in range(2)]
    for n_ in range(3): emit(g, frd(n_))
    SELX = 32
    for k in range(3):
        for r in range(8): A(f"v_and_b32 v{SELX+k*8+r}, s{36+k}, v{SEL[0]+r}")
    store_addrs()
    pend = []
    for n_ in range(8):
        A(f"s_waitcnt lgkmcnt({6*min(2, 7-n_)})")
        acc = OR(*own[n_])
        items = [([], f"v_mfma_f32_32x32x16_bf16 {acc}, {v(SELX+k*8+4*s_,4)}, {v(FRB+(n_%4)*24+(k*2+s_)*4,4)}, {acc}", []) for k in range(3) for s_ in range(2)]
        stream(items, (frd(n_ + 3) if n_ + 3 < 8 else []) + pend)
        pend = final_l(n_ - 1, SB[1]) if n_ >= 1 else []
    for x in pend: A(x)
    for x in final_l(7, SB[1]): A(x)
    A("s_branch PC_DONE")
    A.label("PC_SLOW")
    A("s_cmp_lg_u32 s57, 0")
    A("s_cbranch_scc1 PC_NORESC")
    A(f"v_cmp_neq_f32 vcc, 1.0, {FAC[0]}")
    A(f"v_cmp_neq_f32 s[50:51], 1.0, {FAC[1]}")
    A("s_or_b64 s[50:51], vcc, s[50:51]")
    A("s_cbranch_scc0 PC_NORESC")
    rescaleO(own)
    A.label("PC_NORESC")
    RB = 128
    def receive(tag, fq):
        for i in range(16):
            A(f"ds_read_b128 {v(RB+4*i,4)}, {T1} offset:{i*1024}")
        A(f"v_cmp_neq_f32 vcc, 1.0, {fq[0]}")
        A(f"v_cmp_neq_f32 s[50:51], 1.0, {fq[1]}")
        A("s_or_b64 s[50:51], vcc, s[50:51]")
        A(f"s_cbranch_scc0 PC_RX_{tag}")
        A("s_waitcnt lgkmcnt(0)")
        for i in range(16):
            q = (i >> 1) & 1
            for r in range(4):
                x = f"v{RB+4*i+r}"
                A(f"v_lshlrev_b32 {T0}, 16, {x}")
                A(f"v_and_b32 {x}, 0xffff0000, {x}")
                A(f"v_mul_f32 {T0}, {T0}, {fq[q]}")
                A(f"v_mul_f32 {x}, {x}, {fq[q]}")
                A(f"v_cvt_pk_bf16_f32 {x}, {T0}, {x}")
        A("s_nop 1")
        A.label(f"PC_RX_{tag}")
        for i in range(16):
            gq, d, q, s_ = 2 + (i >> 3), (i >> 2) & 1, (i >> 1) & 1, i & 1
            A(f"s_waitcnt lgkmcnt({15-i})")
            acc = OR(gq, d, q)
            A(f"v_mfma_f32_32x32x16_bf16 {acc}, {v(SEL[s_],4)}, {v(RB+4*i,4)}, {acc}")
    A("s_cmp_lg_u32 s58, 0")
    A("s_cbranch_scc1 PC_NOP")
    A("s_xor_b32 s44, s3, 1")
    xaddr("s45", "s44")
    A(f"v_add_u32 {T1}, s45, {VL16}")
    receive("P", TM)
    A.label("PC_NOP")
    for k, fl in ((0, "s59"), (1, "s60")):
        A(f"s_cmp_eq_u32 {fl}, 0")
        A(f"s_cbranch_scc1 PC_NOD{k}")
        A("s_lshl_b32 s45, s3, 14")
        A(f"s_add_u32 s45, s45, {65536 + k*32768}")
        A(f"v_add_u32 {T1}, s45, {VL16}")
        receive(f"D{k}", [f"v{SB[0]+q*8+4+2*k}" for q in range(2)])
        A.label(f"PC_NOD{k}")
    store_addrs()
    A("s_nop 7")
    for n_ in range(8):
        for x in final_l(n_, SB[1]): A(x)
    A("s_branch PC_DONE")
    for (p, tag) in rare_blocks:
        A.label(f"PC_MASK_{tag}")
        mask_code(p)
        A(f"s_branch PC_MASKRET_{tag}")
        A.label(f"PC_RARE_{tag}")
        for q in range(2):
            xhalf(A, "v_max_f32", TM[q], T0)
            A(f"v_max_f32 {TM[q]}, {TM[q]}, {MR[q]}")
            A(f"v_sub_f32 {T1}, {MR[q]}, {TM[q]}")
            A(f"v_mul_f32 {T1}, s68, {T1}")
            A(f"v_exp_f32 {FAC[q]}, {T1}")
            A(f"v_mov_b32 {MR[q]}, {TM[q]}")
            A(f"v_mul_f32 {MC[q]}, s68, {MR[q]}")
            A(f"v_add_f32 {THR[q]}, s69, {MR[q]}")
            A(f"v_mul_f32 {LS[q]}, {LS[q]}, {FAC[q]}")
        A("s_mov_b32 s42, 1")
        A(f"s_branch PC_RARERET_{tag}")
        A.label(f"PC_PEND_{tag}")
        rescaleO()
        A("s_mov_b32 s42, 0")
        A(f"s_branch PC_PENDRET_{tag}")
    A.label("PC_DONE")
    ST(10)

def reduce4(ACC):
    o = ["v_add_u32 v4, s86, v5", "s_nop 7", "s_nop 2"]
    for b in range(4):
        for r in range(4):
            o.append(f"ds_write_b128 v4, {v(ACC+b*16+4*r,4)} offset:{b*4096 + r*1024}")
    o += ["s_waitcnt lgkmcnt(0)", "s_barrier", "s_lshl_b32 s45, s3, 12", "v_add_u32 v4, s45, v5", "v_add_u32 v28, 81920, v4"]
    for src in range(4):
        for r in range(4):
            o.append(f"ds_read_b128 {v(ACC+src*16+4*r,4)}, {'v4' if src < 2 else 'v28'} offset:{(src%2)*40960 + r*1024}")
    o.append("s_waitcnt lgkmcnt(0)")
    for r in range(0, 16, 2):
        o.append(f"v_pk_add_f32 {v(ACC+r,2)}, {v(ACC+r,2)}, {v(ACC+16+r,2)}")
        o.append(f"v_pk_add_f32 {v(ACC+32+r,2)}, {v(ACC+32+r,2)}, {v(ACC+48+r,2)}")
    for r in range(0, 16, 2):
        o.append(f"v_pk_add_f32 {v(ACC+r,2)}, {v(ACC+r,2)}, {v(ACC+32+r,2)}")
    return o

def add_resid(ACC, RES, OUT):
    o = []
    for r in range(8):
        o.append(f"v_cvt_pk_bf16_f32 v{ACC+16+r}, v{ACC+2*r}, v{ACC+2*r+1}")
    for r in range(8):
        o += [f"v_lshlrev_b32 v{ACC+2*r}, 16, v{ACC+16+r}", f"v_and_b32 v{ACC+2*r+1}, 0xffff0000, v{ACC+16+r}",
              f"v_lshlrev_b32 v{ACC+32+2*r}, 16, v{RES+r}", f"v_and_b32 v{ACC+32+2*r+1}, 0xffff0000, v{RES+r}"]
    for r in range(0, 16, 2):
        o.append(f"v_pk_add_f32 {v(ACC+r,2)}, {v(ACC+r,2)}, {v(ACC+32+r,2)}")
    for r in range(8):
        o.append(f"v_cvt_pk_bf16_f32 v{OUT+r}, v{ACC+2*r}, v{ACC+2*r+1}")
    return o

def xhalf_l(op, x, t):
    return [f"v_mov_b32 {t}, {x}", "s_nop 1", f"v_permlane32_swap_b32 {x}, {t}", f"{op} {x}, {x}, {t}"]

def mix(g, main, side, every):
    k = 0
    for i, x in enumerate(main):
        emit(g, [x])
        if (i + 1) % every == 0 and k < len(side) and not (isinstance(x, str) and x.startswith("s_nop")):
            emit(g, side[k]); k += 1
    return side[k:]

def phaseDEF(g):
    A, ST, vm = g.A, g.ST, g.vm
    vm.ops = []
    ACC = 32
    A("s_load_dwordx2 s[36:37], s[0:1], 0")
    A("s_load_dwordx2 s[38:39], s[0:1], 72")
    A("s_load_dwordx2 s[56:57], s[0:1], 40")
    A("s_load_dwordx4 s[60:63], s[0:1], 56")
    A("s_lshr_b32 s40, s2, 3")
    A("s_mul_i32 s6, s40, 9363")
    A("s_lshr_b32 s6, s6, 16")
    A("s_mul_i32 s7, s6, 7")
    A("s_sub_u32 s7, s40, s7")
    A("s_and_b32 s41, s2, 7")
    A("s_lshl_b32 s41, s41, 2")
    A("s_add_u32 s6, s6, s41")
    A("s_mul_i32 s86, s3, 40960")
    A(f"s_mul_i32 s42, s3, {1024*896}")
    A("s_lshl_b32 s44, s7, 7")
    A("s_add_u32 s42, s42, s44")
    A(f"s_mul_i32 s43, s6, {2*256*1024}")
    A("s_lshl_b32 s44, s3, 16")
    A("s_add_u32 s43, s43, s44")
    A(f"v_add_u32 v6, {256*1024}, v5")
    W = 20
    CW = int(os.environ.get("CW", "8"))
    NR = 16 + (256 - 8*CW) // 8
    wo = Stager(g, "s[32:35]", 896, "s42", "s86", [2048*i for i in range(W)], "v0", "v1", "v3", "v28", "a")
    wo.setup(("v32", "v33")); wo.setup_tr(("v32", "v33"))
    A("s_mov_b32 s58, s42"); A("s_mov_b32 s59, s43"); A("s_and_b32 s53, s2, 7")
    wo_dma0 = wo.dma
    def wo_dma(ks):
        pre = []
        if ROT and ks % 8 == 0:
            pre = [f"s_add_u32 s42, s53, {ks//8}", "s_and_b32 s42, s42, 7", f"s_mul_i32 s42, s42, {8*16*896}", "s_add_u32 s42, s42, s58"]
        return pre + wo_dma0(ks)
    wo.dma = wo_dma
    A("s_waitcnt vmcnt(0) lgkmcnt(0)")
    A("s_barrier")
    ST(23)
    srd(A, 32, 56, 4096*448*2); srd(A, 76, 60, 448*1792*2); srd(A, 80, 62, 448*1792*2)
    A("s_lshl_b32 s45, s5, 6"); A("s_lshl_b32 s44, s4, 2"); A("s_add_u32 s45, s45, s44")
    A(f"s_add_u32 s45, s45, {F_CTX*4}")
    set_flag(g, "s45")
    A("s_sub_u32 s45, 31, s5"); A("s_lshl_b32 s45, s45, 6"); A("s_add_u32 s45, s45, s44")
    A(f"s_add_u32 s45, s45, {F_CTX*4}")
    set_flag(g, "s45")
    A("s_cmp_lt_u32 s40, 28")
    A("s_cbranch_scc0 MEGA_FIN")
    for ks in range(W): emit(g, wo.dma(ks))
    ws_srd(A, 16, 54, H_OFF, H_SZ)
    srd(A, 24, 36, 2048*448*2)
    srd(A, 28, 38, 2048*448*2)
    ws_srd(A, 8, 54, HS_OFF, HS_SZ)
    A("s_lshr_b32 s46, s3, 1"); A("s_lshl_b32 s45, s7, 1"); A("s_add_u32 s46, s46, s45")
    A("s_and_b32 s47, s3, 1"); A("s_lshl_b32 s45, s6, 1"); A("s_add_u32 s47, s47, s45")
    A("v_and_b32 v7, 31, v2")
    A("v_lshrrev_b32 v8, 5, v2")
    A("s_lshl_b32 s45, s47, 5")
    A("v_add_u32 v7, s45, v7")
    A("v_mul_u32_u24 v9, 896, v7")
    A("v_lshl_add_u32 v9, v8, 3, v9")
    A("s_lshl_b32 s48, s46, 6")
    A("s_mul_i32 s49, s47, 28672")
    A("s_lshl_b32 s45, s46, 11")
    A("s_add_u32 s49, s49, s45")
    for gq in range(4):
        A(f"buffer_load_dwordx2 {v(12+2*gq,2)}, v9, s[24:27], s48 offen offset:{16*gq}")
    vm.issue(("x", 0), 4)
    def wreg(ks): return (v, 128 + 8*ks) if ks < 16 else (a, 8*CW + 8*(ks-16))
    for ks in range(NR + 2):
        if ks < NR:
            A(f"s_waitcnt vmcnt({vm.newer(lambda t: t == ('a', ks))})")
            rf, b = wreg(ks)
            emit(g, wo.tr(ks, b, b + 4, rf=rf))
        k2 = ks - 2
        if k2 >= 0:
            A(f"s_waitcnt lgkmcnt({4*min(2, NR-1-k2)})")
            if k2 + W < 64: emit(g, wo.dma(k2 + W))
    A("v_and_b32 v10, 15, v2")
    A("v_lshlrev_b32 v10, 2, v10")
    A("s_lshl_b32 s45, s6, 6")
    A(f"s_add_u32 s45, s45, {F_CTX*4}")
    ST(22)
    poll(g, 11, "v10", "s45")
    ST(11)
    def ldB(ks):
        o = (ks % 4) * 1024; sl = ks % CW
        pre = []
        if ROT and ks % 8 == 0:
            pre = [f"s_add_u32 s43, s53, {ks//8}", "s_and_b32 s43, s43, 7", "s_lshl_b32 s43, s43, 13", "s_add_u32 s43, s43, s59"]
        out = pre + [(f"buffer_load_dwordx4 {a(sl*8,4)}, v5, s[20:23], s43 offen offset:{o}{SC}", ("b", ks)),
               (f"buffer_load_dwordx4 {a(sl*8+4,4)}, v6, s[20:23], s43 offen offset:{o}{SC}", ("b", ks))]
        if ks % 4 == 3: out.append("s_add_u32 s43, s43, 4096")
        return out
    for ks in range(CW): emit(g, ldB(ks))
    WF = [96, 104, 112, 120]
    for ks in range(64):
        nxt = ks + 2
        n = vm.newer(lambda t: t == ("b", ks))
        if NR <= nxt < 64:
            n = min(n, vm.newer(lambda t: t == ("a", nxt)))
            A(f"s_waitcnt vmcnt({n})")
            emit(g, wo.tr(nxt, WF[nxt % 4], WF[nxt % 4] + 4))
        else:
            A(f"s_waitcnt vmcnt({n})")
        if ks >= NR:
            A(f"s_waitcnt lgkmcnt({4*min(2, 63-ks)})")
            rf, b = v, WF[ks % 4]
        else: rf, b = wreg(ks)
        for i in range(2):
            for q in range(2):
                acc = v(ACC + (i*2+q)*16, 16)
                A(f"v_mfma_f32_32x32x16_bf16 {acc}, {rf(b+4*i,4)}, {a((ks%CW)*8+4*q,4)}, {'0' if ks == 0 else acc}")
        if NR <= ks and ks + W < 64: emit(g, wo.dma(ks + W))
        if ks + CW < 64: emit(g, ldB(ks + CW))
    ST(12)
    HP = 20
    A("s_lshl_b32 s42, s7, 9"); A("s_lshl_b32 s45, s3, 7"); A("s_add_u32 s42, s42, s45")
    A("s_lshl_b32 s51, s7, 3"); A("s_lshl_b32 s45, s3, 1"); A("s_add_u32 s51, s51, s45")
    RS12 = [16384 + 2048*i for i in range(12)]
    w1 = Stager(g, "s[76:79]", 3584, "s42", "s86", RS12, "v0", "v1", "v3", "v8", "w1")
    w1.setup(("v96", "v97"))
    A("v_xor_b32 v8, 64, v3")
    vm.ops = []
    ep = reduce4(ACC) + add_resid(ACC, 12, HP)
    for s_ in range(2):
        ep.append((f"buffer_store_dwordx4 {v(HP+4*s_,4)}, v5, s[16:19], s49 offen offset:{1024*s_}{SC}", ("hs", 0)))
    for r in range(8):
        ep += [f"v_lshlrev_b32 v{ACC+2*r}, 16, v{HP+r}", f"v_and_b32 v{ACC+2*r+1}, 0xffff0000, v{HP+r}"]
    ep += [f"v_add_f32 v10, v{ACC}, v{ACC+1}"] + [f"v_add_f32 v10, v10, v{ACC+r}" for r in range(2, 16)]
    ep += xhalf_l("v_add_f32", "v10", "v12") + ["v_mul_f32 v13, 0x3d000000, v10", "v_mov_b32 v11, 0"]
    for r in range(16):
        ep += [f"v_sub_f32 v12, v{ACC+r}, v13", "v_fmac_f32 v11, v12, v12"]
    ep += xhalf_l("v_add_f32", "v11", "v12") + ["v_and_b32 v12, 31, v2", "v_lshlrev_b32 v12, 3, v12", "s_mul_i32 s45, s47, 3584", "s_lshl_b32 s44, s46, 8", "s_add_u32 s45, s45, s44"]
    ep.append((f"buffer_store_dwordx2 v[10:11], v12, s[8:11], s45 offen{SC}", ("hs", 0)))
    mix(g, ep, [w1.dma(ks) for ks in range(12)], 8)
    A(f"s_waitcnt vmcnt({vm.newer(lambda t: t[0] == 'hs')})")
    A("s_barrier")
    A("s_lshl_b32 s45, s6, 5"); A("s_lshl_b32 s44, s7, 2"); A("s_add_u32 s45, s45, s44")
    A(f"s_add_u32 s52, s45, {F_H1*4}")
    A(f"s_add_u32 s45, s45, {F_H*4}")
    set_flag(g, "s45")
    ST(13)
    for r in range(4): A(f"v_mov_b32 v{12+r}, 0x3f803f80")
    CS = 96
    def drain(stg, fn=None):
        for ks in range(28 + 2):
            if ks < 28:
                A(f"s_waitcnt vmcnt({vm.newer(lambda t: t == (stg.tag, ks))})")
                emit(g, stg.tr(ks, 4*ks, 4*(28+ks), rf=a))
            k2 = ks - 2
            if k2 >= 0:
                A(f"s_waitcnt lgkmcnt({4*min(2, 27-k2)})")
                if fn: fn(k2)
                if k2 + 12 < 28: emit(g, stg.dma(k2 + 12))
    def cs_mfma(ks):
        for i in range(2):
            acc = v(CS + i*16, 16)
            A(f"v_mfma_f32_32x32x16_bf16 {acc}, {a(4*(i*28+ks),4)}, v[12:15], {'0' if ks == 0 else acc}")
    drain(w1, cs_mfma)
    A("v_and_b32 v10, 7, v2")
    A("v_min_u32 v10, 6, v10")
    A("v_lshlrev_b32 v10, 2, v10")
    A("s_lshl_b32 s45, s6, 5")
    A(f"s_add_u32 s45, s45, {F_H*4}")
    poll(g, 11, "v10", "s45")
    ST(14)
    A("s_mul_i32 s42, s6, 57344")
    A("s_mul_i32 s43, s3, 14336")
    A("s_add_u32 s42, s42, s43")
    for i in range(14):
        if i % 4 == 0:
            A(f"s_add_u32 m0, s86, {i*1024}")
            A(f"s_add_u32 s44, s42, {i*1024}")
        A(f"buffer_load_dwordx4 v5, s[16:19], s44 offen offset:{(i%4)*1024}{SC} lds")
    A("v_and_b32 v10, 31, v2")
    A("v_lshlrev_b32 v10, 3, v10")
    A("s_mul_i32 s45, s6, 7168")
    A("s_add_u32 s44, s45, 3584")
    STB = [128, 156]
    for q in range(2):
        for i in range(14):
            A(f"buffer_load_dwordx2 {v(STB[q]+2*i,2)}, v10, s[8:11], {'s44' if q else 's45'} offen offset:{256*i}{SC}")
    A(f"s_mul_i32 s42, s3, {448*896}")
    A("s_lshl_b32 s44, s7, 7")
    A("s_add_u32 s42, s42, s44")
    w2 = Stager(g, "s[80:83]", 896, "s42", "s86", RS12, "v0", "v1", "v3", "v8", "w2")
    w2.setup(("v192", "v193"))
    A("v_add_u32 v6, 81920, v5")
    vm.ops = [("st", 0)] * 28
    A("s_waitcnt vmcnt(28)")
    A("s_barrier")
    MB_ = ["v16", "v17"]; RS = ["v18", "v19"]
    stats = [lambda: A(f"s_waitcnt vmcnt({vm.newer(lambda t: t[0] == 'st')})")]
    for q in range(2):
        b = STB[q]
        stats += [f"v_add_f32 v10, v{b}, v{b+2}"] + [f"v_add_f32 v10, v10, v{b+2*i}" for i in range(2, 14)]
        stats += ["v_mul_f32 v10, 0x3b124925, v10", f"v_add_f32 v11, v{b+1}, v{b+3}"] + [f"v_add_f32 v11, v11, v{b+2*i+1}" for i in range(2, 14)]
        stats += ["v_mov_b32 v4, 0"]
        for i in range(14):
            stats += [f"v_mul_f32 v{b+2*i}, 0x3d000000, v{b+2*i}", f"v_sub_f32 v{b+2*i}, v{b+2*i}, v10", f"v_fmac_f32 v4, v{b+2*i}, v{b+2*i}"]
        stats += ["v_mul_f32 v4, 0x42000000, v4", "v_add_f32 v11, v11, v4", "v_mul_f32 v11, 0x3b124925, v11"]
        stats += bf16_round_l(MB_[q], "v10") + bf16_round_l("v11", "v11") + ["v_add_f32 v11, 0x3727c5ac, v11"] + bf16_round_l("v11", "v11")
        stats += ["v_sqrt_f32 v11, v11", "s_nop 0"] + bf16_round_l("v11", "v11") + [f"v_rcp_f32 {RS[q]}, v11", "s_nop 0", f"v_mul_f32 {MB_[q]}, {MB_[q]}, {RS[q]}"]
    XF = [192, 200, 208, 216]
    def xr(ks):
        out = []
        for q in range(2):
            f = q*28 + ks; src = f // 14
            out.append(f"ds_read_b128 {v(XF[ks%4]+4*q,4)}, {'v5' if src < 2 else 'v6'} offset:{(src%2)*40960 + (f%14)*1024}")
        return out
    for ks in range(3): emit(g, xr(ks))
    for ks in range(28):
        sched = {}
        if ks + 3 < 28: spread(sched, xr(ks + 3), 0, 1)
        if ks < 12: sched.setdefault(2, []).extend(w2.dma(ks))
        A(f"s_waitcnt lgkmcnt({2*min(2, 27-ks)})")
        ms = []
        for i in range(2):
            for q in range(2):
                acc = v(ACC + (i*2+q)*16, 16)
                ms.append(f"v_mfma_f32_32x32x16_bf16 {acc}, {a(4*(i*28+ks),4)}, {v(XF[ks%4]+4*q,4)}, {'0' if ks == 0 else acc}")
        run_sched(A, ms, sched, stats if ks >= 4 else [], 4, vm)
    assert not stats
    ST(15)
    ws_srd(A, 20, 54, H1_OFF, H1_SZ)
    A(f"s_mul_i32 s44, s6, {2*112*1024}")
    A("s_lshl_b32 s45, s51, 11")
    A("s_add_u32 s44, s44, s45")
    A(f"s_add_u32 s45, s44, {112*1024}")
    A(f"s_mov_b32 s50, {f32bits(-1.4426950408889634):#x}")
    A("s_mov_b32 s51, s50")
    A("v_mov_b32 v10, 1.0"); A("v_mov_b32 v11, 1.0")
    T = 128
    ep = []
    for i in range(2):
        for q in range(2):
            b = ACC + (i*2+q)*16; cs = CS + i*16
            mbp = "v[16:17]"; rsp = "v[18:19]"; sel = f"op_sel:[0,{q}] op_sel_hi:[1,{q}]"
            for r in range(0, 16, 2): ep.append(f"v_pk_mul_f32 {v(T+r,2)}, {v(cs+r,2)}, {mbp} {sel}")
            for r in range(0, 16, 2): ep.append(f"v_pk_fma_f32 {v(b+r,2)}, {v(b+r,2)}, {rsp}, {v(T+r,2)} op_sel:[0,{q},0] op_sel_hi:[1,{q},1] neg_lo:[0,0,1] neg_hi:[0,0,1]")
            for r in range(0, 16, 2): ep.append(f"v_pk_mul_f32 {v(T+r,2)}, {v(b+r,2)}, s[50:51]")
            for r in range(16): ep.append(f"v_exp_f32 v{T+r}, v{T+r}")
            for r in range(0, 16, 2): ep.append(f"v_pk_add_f32 {v(T+r,2)}, {v(T+r,2)}, v[10:11]")
            for r in range(16): ep.append(f"v_rcp_f32 v{T+r}, v{T+r}")
            for r in range(0, 16, 2): ep.append(f"v_pk_mul_f32 {v(b+r,2)}, {v(b+r,2)}, {v(T+r,2)}")
            for r in range(8): ep.append(f"v_cvt_pk_bf16_f32 v{b+r}, v{b+2*r}, v{b+2*r+1}")
            for s_ in range(2):
                ep.append((f"buffer_store_dwordx4 {v(b+4*s_,4)}, v5, s[20:23], {'s45' if q else 's44'} offen offset:{(2*i+s_)*1024}{SC}", ("h1s", 0)))
    grp = []
    for ks in range(28 + 2):
        it = []
        if ks < 28:
            it.append(lambda ks=ks: A(f"s_waitcnt vmcnt({vm.newer(lambda t: t == ('w2', ks))})"))
            it += w2.tr(ks, 4*ks, 4*(28+ks), rf=a)
        k2 = ks - 2
        if k2 >= 0 and k2 + 12 < 28:
            it.append(f"s_waitcnt lgkmcnt({4*min(2, 27-k2)})")
            it += w2.dma(k2 + 12)
        grp.append(it)
    grp = mix(g, ep, grp, W2EV)
    A(f"s_waitcnt vmcnt({vm.newer(lambda t: t[0] == 'h1s')})")
    A("s_barrier")
    set_flag(g, "s52")
    ST(16)
    for it in grp: emit(g, it)
    A("v_and_b32 v10, 7, v2")
    A("v_min_u32 v10, 6, v10")
    A("v_lshlrev_b32 v10, 2, v10")
    A("s_lshl_b32 s45, s6, 5")
    A(f"s_add_u32 s45, s45, {F_H1*4}")
    poll(g, 11, "v10", "s45")
    ST(17)
    A(f"s_mul_i32 s42, s6, {2*112*1024}")
    A("s_mul_i32 s43, s3, 28672")
    A("s_add_u32 s42, s42, s43")
    A(f"v_add_u32 v6, {112*1024}, v5")
    def ldH(ks):
        sl = ks % 14
        out = [(f"buffer_load_dwordx4 {v(96+sl*8,4)}, v5, s[20:23], s42 offen offset:{(ks%4)*1024}{SC}", ("h", ks)),
               (f"buffer_load_dwordx4 {v(96+sl*8+4,4)}, v6, s[20:23], s42 offen offset:{(ks%4)*1024}{SC}", ("h", ks))]
        if ks % 4 == 3: out.append("s_add_u32 s42, s42, 4096")
        return out
    for ks in range(14): emit(g, ldH(ks))
    A("s_waitcnt lgkmcnt(0)")
    for ks in range(28):
        A(f"s_waitcnt vmcnt({vm.newer(lambda t: t == ('h', ks))})")
        for i in range(2):
            for q in range(2):
                acc = v(ACC + (i*2+q)*16, 16)
                A(f"v_mfma_f32_32x32x16_bf16 {acc}, {a(4*(i*28+ks),4)}, {v(96+(ks%14)*8+4*q,4)}, {'0' if ks == 0 else acc}")
        if ks + 14 < 28: emit(g, ldH(ks + 14))
    ST(18)
    emit(g, reduce4(ACC) + add_resid(ACC, HP, 12))
    for gq in range(4):
        A(f"buffer_store_dwordx2 {v(12+2*gq,2)}, v9, s[28:31], s48 offen offset:{16*gq}")

def gen_mega(stamps=False):
    g = G()
    g.A = A = Asm()
    name = "mega_kernel"
    kernel_begin(A, name)
    A("s_cmp_ge_u32 s2, 256")
    A("s_cbranch_scc0 MEGA_GO")
    A("s_endpgm")
    A.label("MEGA_GO")
    g.ST = Stamps(A, stamps)
    g.ST.tmp = "s[100:101]"
    g.vm = VM()
    g.ST2 = Stamps(A, True, "v63") if (stamps and os.environ.get("STG")) else None
    if stamps:
        A("v_mov_b32 v31, 0")
        g.ST(0); g.ST(20, real=True)
    phaseA(g)
    phaseC(g)
    phaseDEF(g)
    A.label("MEGA_FIN")
    if stamps:
        A("s_waitcnt vmcnt(0)")
        g.ST(19); g.ST(21, real=True)
        if os.environ.get("DBGOUT"):
            A("s_cmp_lg_u32 s2, 9"); A("s_cbranch_scc1 NODBG"); A("s_cmp_lg_u32 s3, 0"); A("s_cbranch_scc1 NODBG")
            A("v_readlane_b32 s45, v31, 0")
            A("s_nop 1")
            A("v_subrev_u32 v31, s45, v31")
            A("v_subrev_u32 v1, 5, v2")
            A("v_cmp_gt_u32 vcc, 15, v1")
            A("v_lshlrev_b32 v1, 2, v1")
            A("s_and_saveexec_b64 s[94:95], vcc")
            A("global_store_dword v1, v31, s[92:93] offset:4")
            A("s_mov_b64 exec, s[94:95]")
            A.label("NODBG")
        else:
            g.ST.flush(54, "s3", "v2")
    A.label("MEGA_END")
    A("s_endpgm")
    return name, A.text(), kernel_desc(name, 512, 102, 256), (256, 256, 163840)
```

```python
from common import *
from k1b import rl_setup, rl_reads
import os
CSC = math.log2(math.e) / 16.0
TTHR = 8.0
BIG = 2.0 ** 100
SC = " sc1"
SPIN = 1 << 16
G0 = int(os.environ.get('G0', '12'))
ROT = int(os.environ.get('ROT', '1'))
WOT = int(os.environ.get('WOT', '0'))
TQ = int(os.environ.get('TQ', '2'))
TD = int(os.environ.get('TD', '1'))
NOSIDE = int(os.environ.get('NOSIDE', '0'))
TR1 = int(os.environ.get('TR1', '1'))
TR2 = int(os.environ.get('TR2', '8'))
FSA = int(os.environ.get('FSA', '16'))
LNS = int(os.environ.get('LNS', '5'))
CUT = int(os.environ.get('CUT', '46'))
W1EV = int(os.environ.get('W1EV', '6'))
W2EV = int(os.environ.get('W2EV', '40'))
TW = eval(os.environ.get('TW', '(0, 3, 6, 9, 13, 17)'))
TA = int(os.environ.get('TA', '7'))
TOUCH = int(os.environ.get('TOUCH', '1'))

class G:
    pass

def emit(g, items):
    for x in items:
        if isinstance(x, tuple): g.A(x[0]); g.vm.issue(x[1])
        elif callable(x): x()
        else: g.A(x)

def poll(g, vdst, voff, soff, n4=False, name=None):
    A = g.A
    L = A.newlabel("POLL")
    A(f"s_mov_b32 s87, 0")
    A.label(L)
    if n4:
        A(f"buffer_load_dwordx4 {v(vdst,4)}, {voff}, s[88:91], {soff} offen sc1")
        A("s_waitcnt vmcnt(0)")
        A(f"v_and_b32 v{vdst}, v{vdst}, v{vdst+1}")
        A(f"v_and_b32 v{vdst+2}, v{vdst+2}, v{vdst+3}")
        A(f"v_and_b32 v{vdst}, v{vdst}, v{vdst+2}")
    else:
        A(f"buffer_load_dword v{vdst}, {voff}, s[88:91], {soff} offen sc1")
        A("s_waitcnt vmcnt(0)")
    A(f"v_cmp_ne_u32 vcc, 1, v{vdst}")
    A(f"s_cbranch_vccz {L}_OK")
    A("s_sleep 1")
    A("s_add_u32 s87, s87, 1")
    A(f"s_cmp_lt_u32 s87, {SPIN}")
    A(f"s_cbranch_scc1 {L}")
    A.label(L + "_OK")
    g.vm.ops = []

def set_flag(g, soff_bytes):
    A = g.A
    L = A.newlabel("SETF")
    A("s_cmp_lg_u32 s3, 0")
    A(f"s_cbranch_scc1 {L}")
    A("s_mov_b64 exec, 1")
    A(f"buffer_store_dword v30, v29, s[88:91], {soff_bytes} offen sc1")
    A("s_mov_b64 exec, -1")
    A.label(L)


class Stager:
    def __init__(self, g, srd, stride, s_off, s_ring, slots, vA, vB, vT0, vT1, tag):
        self.__dict__.update(locals())
    def setup(self, tmp=("v60", "v61")):
        A = self.g.A; t0, t1 = tmp
        A(f"v_lshrrev_b32 {t0}, 3, v2")
        A(f"v_mul_u32_u24 {self.vA}, {self.stride}, {t0}")
        A(f"v_bfe_u32 {t0}, v2, 4, 1")
        A(f"v_lshlrev_b32 {t0}, 2, {t0}")
        A(f"v_and_b32 {t1}, 7, v2")
        A(f"v_xor_b32 {t0}, {t0}, {t1}")
        A(f"v_lshl_add_u32 {self.vA}, {t0}, 4, {self.vA}")
        A(f"v_add_u32 {self.vB}, {8*self.stride - 1024}, {self.vA}")
    def setup_tr(self, tmp=("v60", "v61")):
        A = self.g.A; t0, t1 = tmp
        A(f"v_lshrrev_b32 {t0}, 5, v2")
        A(f"v_bfe_u32 {t1}, v2, 2, 2")
        A(f"v_lshl_add_u32 {t0}, {t0}, 2, {t1}")
        A(f"v_lshlrev_b32 {t0}, 7, {t0}")
        A(f"v_bfe_u32 {t1}, v2, 3, 1")
        A(f"v_lshl_add_u32 {t0}, {t1}, 6, {t0}")
        A(f"v_bfe_u32 {t1}, v2, 4, 1")
        A(f"v_lshl_add_u32 {t0}, {t1}, 5, {t0}")
        A(f"v_and_b32 {t1}, 3, v2")
        A(f"v_lshl_add_u32 {t0}, {t1}, 3, {t0}")
        A(f"v_add_u32 {self.vT0}, {self.s_ring}, {t0}")
        A(f"v_xor_b32 {self.vT1}, 64, {self.vT0}")
    def dma(self, ks):
        o = self.slots[ks % len(self.slots)]
        return [f"s_add_u32 m0, {self.s_ring}, {o}", "s_nop 0",
                (f"buffer_load_dwordx4 {self.vA}, {self.srd}, {self.s_off} offen lds", (self.tag, ks)),
                (f"buffer_load_dwordx4 {self.vB}, {self.srd}, {self.s_off} offen offset:1024 lds", (self.tag, ks)),
                f"s_add_u32 {self.s_off}, {self.s_off}, {16*self.stride}"]
    def tr(self, ks, d0, d1, rf=v):
        o = self.slots[ks % len(self.slots)]
        return [f"ds_read_b64_tr_b16 {rf(d0,2)}, {self.vT0} offset:{o}", f"ds_read_b64_tr_b16 {rf(d0+2,2)}, {self.vT0} offset:{o+1024}",
                f"ds_read_b64_tr_b16 {rf(d1,2)}, {self.vT1} offset:{o}", f"ds_read_b64_tr_b16 {rf(d1+2,2)}, {self.vT1} offset:{o+1024}"]

def phaseA(g):
    A, ST, vm = g.A, g.ST, g.vm
    A("s_load_dwordx16 s[36:51], s[0:1], 0")
    A("s_load_dwordx2 s[52:53], s[0:1], 64")
    A("s_load_dwordx4 s[92:95], s[0:1], 80")
    A("v_lshrrev_b32 v1, 6, v0")
    A("v_and_b32 v2, 63, v0")
    A("v_readfirstlane_b32 s3, v1")
    A("s_and_b32 s4, s2, 7")
    A("s_lshr_b32 s5, s2, 3")
    A("s_and_b32 s6, s5, 7")
    A("s_lshr_b32 s5, s5, 3")
    A("s_lshr_b32 s7, s5, 1")
    A("s_and_b32 s5, s5, 1")
    A("s_lshl_b32 s4, s4, 1")
    A("s_add_u32 s4, s4, s5")
    A("v_lshrrev_b32 v3, 3, v2")
    A("v_lshlrev_b32 v3, 11, v3")
    A("v_and_b32 v4, 7, v2")
    A("v_bfe_u32 v8, v2, 4, 2")
    A("v_xor_b32 v4, v4, v8")
    A("v_lshl_add_u32 v3, v4, 4, v3")
    A("s_lshl_b32 s56, s6, 19")
    A("s_lshl_b32 s57, s3, 17")
    A("s_add_u32 s56, s56, s57")
    A("v_add_u32 v8, s56, v3")
    A("v_xor_b32 v9, 64, v8")
    A("v_lshrrev_b32 v3, 5, v2")
    A("v_and_b32 v4, 31, v2")
    A("s_and_b32 s57, s3, 1")
    A("v_xor_b32 v4, s57, v4")
    A("v_lshlrev_b32 v5, 2, v3")
    A("v_xor_b32 v4, v4, v5")
    A("v_lshlrev_b32 v4, 4, v4")
    A("v_lshl_add_u32 v4, v3, 13, v4")
    A("s_lshl_b32 s56, s4, 9")
    A("s_lshl_b32 s57, s3, 16")
    A("s_add_u32 s56, s56, s57")
    A("v_add_u32 v12, s56, v4")
    A("v_xor_b32 v13, 128, v12")
    A(f"v_add_u32 v13, {16384-1024}, v13")
    A(f"v_add_u32 v14, {2*(16384-1024)}, v12")
    A(f"v_add_u32 v15, {2*(16384-1024)}, v13")
    A("s_lshl_b32 s64, s3, 12")
    A("s_mov_b32 s65, 0")
    A("s_mov_b32 s66, 0")
    A("s_waitcnt lgkmcnt(0)")
    A("s_mov_b32 s54, s94"); A("s_mov_b32 s55, s95")
    srd(A, 8, 38, 2048*1024*2)
    A("s_cmp_eq_u32 s7, 0")
    A("s_cselect_b32 s12, s42, s44")
    A("s_cselect_b32 s13, s43, s45")
    A("s_and_b32 s13, s13, 0xffff")
    A(f"s_mov_b32 s14, {1024*4096*2:#x}")
    A("s_mov_b32 s15, 0x00020000")
    def dmaA(P):
        out = []
        for i in range(8):
            if i % 4 == 0: out.append(f"s_add_u32 m0, s63, {(P%2)*32768 + i*1024}")
            out.append(f"s_add_u32 s62, s65, {i*16384 - (i%4)*1024}")
            out.append((f"buffer_load_dwordx4 v{8+((i>>1)&1)}, s[8:11], s62 offen offset:{1024*(i%4)} lds", ("A", P)))
        out.append("s_add_u32 s65, s65, 128")
        return out
    def dma(stage):
        slot = stage % 4
        out = [f"s_add_u32 m0, s64, {65536+slot*16384}", "s_nop 0"]
        for i in range(4):
            out.append((f"buffer_load_dwordx4 v{12+i}, s[12:15], s66 offen offset:{1024*i} lds", ("d", stage)))
        out.append("s_add_u32 s66, s66, 262144")
        return out
    A("s_lshl_b32 s63, s3, 13")
    emit(g, dma(0) + dmaA(0) + dma(1))
    ST(1)
    A("v_bfe_u32 v240, v2, 3, 1")
    A("v_lshlrev_b32 v240, 11, v240")
    A("v_and_b32 v241, 7, v2")
    A("v_lshl_add_u32 v240, v241, 7, v240")
    A("s_lshl_b32 s56, s2, 14")
    A("s_lshl_b32 s57, s3, 12")
    A("s_add_u32 s56, s56, s57")
    A("v_add_u32 v241, s56, v240")
    A("s_cmp_lt_u32 s2, 128")
    A("s_cselect_b32 s98, s42, s44")
    A("s_cselect_b32 s99, s43, s45")
    A("s_and_b32 s56, s2, 127")
    A("s_lshl_b32 s56, s56, 13")
    A("s_lshl_b32 s57, s3, 11")
    A("s_add_u32 s56, s56, s57")
    A("v_and_b32 v242, 15, v2")
    A("v_lshlrev_b32 v242, 7, v242")
    A("v_add_u32 v242, s56, v242")
    def touchA(i): return [(f"buffer_load_dword v244, v241, s[8:11], 0 offen offset:{1024*i}", "t")]
    def touchW(): return ["v_add_u32 v242, 0x100000, v242", ("global_load_dword v245, v242, s[98:99]", "t")]
    if TOUCH:
        emit(g, touchA(0) + touchW())
        A("s_getpc_b64 s[56:57]")
        A.label("PCREF")
        A("s_lshr_b32 s58, s2, 3")
        A("s_lshl_b32 s58, s58, 2")
        A("s_add_u32 s58, s58, s3")
        A("s_mul_i32 s58, s58, 1280")
        A("v_min_u32 v249, 9, v2")
        A("v_lshlrev_b32 v249, 7, v249")
        A("v_add_u32 v249, s58, v249")
        A("v_min_u32 v249, (MEGA_END - PCREF), v249")
        emit(g, [("global_load_dword v250, v249, s[56:57]", "t")])
    ws_srd(A, 88, 54, FLAG_OFF, FLAG_SZ)
    A("v_mov_b32 v29, 0")
    A("v_mov_b32 v30, 1")
    A("s_cmp_lg_u32 s2, 0")
    A("s_cbranch_scc1 NOZERO")
    A("v_lshlrev_b32 v3, 5, v0")
    for r in range(4): A(f"v_mov_b32 v{32+r}, 0")
    A("buffer_store_dwordx4 v[32:35], v3, s[88:91], 0 offen sc1")
    A("buffer_store_dwordx4 v[32:35], v3, s[88:91], 0 offen offset:16 sc1")
    A.label("NOZERO")
    ws_srd(A, 16, 54, KV_OFF, KV_SZ)
    srd(A, 20, 36, 2048*448*2)
    ws_srd(A, 24, 54, XN_OFF, XN_SZ)
    A("v_and_b32 v3, 31, v2")
    A("v_lshrrev_b32 v4, 5, v2")
    A("s_lshl_b32 s56, s2, 3")
    A("s_lshl_b32 s57, s3, 1")
    A("s_add_u32 s56, s56, s57")
    A("v_add_u32 v4, s56, v4")
    A("v_mul_u32_u24 v25, 896, v4")
    A("v_lshl_add_u32 v25, v3, 5, v25")
    A("v_and_b32 v5, 7, v4")
    A("v_lshlrev_b32 v26, 8, v3")
    A("v_lshl_add_u32 v26, v5, 4, v26")
    A("v_add_u32 v26, 0x24000, v26")
    A("s_mul_i32 s56, s3, 112")
    A("v_add_u32 v251, s56, v2")
    A("v_lshlrev_b32 v252, 4, v251")
    A("v_add_u32 v252, 0x24000, v252")
    A("v_lshrrev_b32 v253, 3, v251")
    A("v_lshlrev_b32 v253, 9, v253")
    A("v_and_b32 v251, 7, v251")
    A("v_lshl_add_u32 v253, v251, 4, v253")
    A("s_lshr_b32 s56, s2, 2")
    A("s_mul_i32 s56, s56, 28672")
    A("s_and_b32 s57, s2, 3")
    A("s_lshl_b32 s57, s57, 7")
    A("s_add_u32 s56, s56, s57")
    A("v_add_u32 v253, s56, v253")
    A("v_mov_b32 v5, 0x7ffffff0")
    A("v_cmp_gt_u32 vcc, 56, v2")
    A("s_nop 1")
    A("v_cndmask_b32 v253, v5, v253, vcc")
    A("v_cmp_gt_u32 vcc, 28, v3")
    A("v_mov_b32 v5, 0x7ffffff0")
    A("s_nop 0")
    A("v_cndmask_b32 v25, v5, v25, vcc")
    A("v_cndmask_b32 v7, 0, 1.0, vcc")
    A("s_and_b32 s67, s3, 1")
    A("s_lshr_b32 s68, s3, 1")
    A("v_and_b32 v3, 15, v2")
    A("v_lshrrev_b32 v4, 4, v2")
    A("v_lshrrev_b32 v5, 3, v3")
    A("v_and_b32 v6, 7, v3")
    A("v_lshl_add_u32 v6, v5, 4, v6")
    A("v_lshlrev_b32 v5, 2, v5")
    A("v_bfe_u32 v16, v3, 1, 2")
    A("v_or_b32 v5, v5, v16")
    A("v_xor_b32 v5, v4, v5")
    A("v_lshlrev_b32 v16, 7, v6")
    A("v_lshl_add_u32 v16, v5, 4, v16")
    A("s_lshl_b32 s56, s67, 14")
    A("v_add_u32 v16, s56, v16")
    A("v_xor_b32 v10, 64, v16")
    A("v_lshlrev_b32 v6, 4, v6")
    A("v_lshrrev_b32 v5, 1, v4")
    A("v_lshl_add_u32 v6, v5, 10, v6")
    A("v_and_b32 v5, 1, v4")
    A("v_lshl_add_u32 v6, v5, 9, v6")
    A("v_lshrrev_b32 v60, 2, v3")
    A("v_lshl_add_u32 v61, v4, 3, v60")
    A("v_lshlrev_b32 v61, 9, v61")
    A("v_and_b32 v62, 1, v3")
    A("v_lshl_add_u32 v61, v62, 3, v61")
    A("s_lshl_b32 s56, s68, 8")
    A("s_add_u32 s56, s56, 65536")
    A("v_add_u32 v61, s56, v61")
    A("v_lshl_or_b32 v60, v60, 2, v5")
    A("v_and_b32 v62, 2, v3")
    A("v_xor_b32 v60, v60, v62")
    for j in range(8):
        A(f"v_xor_b32 v62, {4*(j>>1)+(j&1)}, v60")
        A(f"v_lshl_add_u32 v{17+j}, v62, 4, v61")
    A("v_lshlrev_b32 v5, 4, v2")
    A("s_and_b32 s56, s2, 7"); A("s_lshr_b32 s57, s2, 7"); A("s_lshl_b32 s56, s56, 1"); A("s_add_u32 s85, s56, s57")
    A("s_lshl_b32 s60, s85, 9"); A("s_lshl_b32 s56, s3, 7"); A("s_add_u32 s60, s60, s56")
    A("s_lshl_b32 s86, s3, 12")
    A("s_add_u32 s86, s86, 114688")
    srd(A, 28, 40, 448*4096*2)
    g.wq = Stager(g, "s[28:31]", 8192, "s60", "s86", [16384, 18432, 32768, 34816, 0, 2048], "v27", "v28", "v3", "v4", "w")
    g.wq.setup(); g.wq.setup_tr()
    A("s_lshl_b32 s69, s2, 2")
    A("s_add_u32 s69, s69, s3")
    A("s_lshl_b32 s70, s69, 12")
    A("v_and_b32 v246, 15, v2")
    A("v_lshlrev_b32 v246, 7, v246")
    A("v_add_u32 v247, s70, v246")
    A("s_lshl_b32 s70, s69, 11")
    A("v_add_u32 v246, s70, v246")
    srd(A, 32, 46, 4096*448*2); srd(A, 76, 50, 448*1792*2); srd(A, 80, 52, 448*1792*2)
    TWT = {TQ: ("v247", 28, 0), TQ + 2: ("v247", 28, 2048), 19: ("v247", 32, 0), 21: ("v247", 32, 2048), 23: ("v246", 76, 0), 25: ("v246", 80, 0)}
    ln = [lambda: A(f"s_waitcnt vmcnt({vm.newer(lambda t: t == 'ln')})")]
    for i in range(8):
        ln += [f"v_lshlrev_b32 v{40+2*i}, 16, v{32+i}", f"v_and_b32 v{41+2*i}, 0xffff0000, v{32+i}"]
    ln += ["v_add_f32 v56, v40, v41"] + [f"v_add_f32 v56, v56, v{40+i}" for i in range(2, 16)]
    ln += half_sum_l("v56", "v57") + ["v_mul_f32 v56, 0x3b124925, v56", "v_mov_b32 v58, 0"]
    for i in range(16):
        ln += [f"v_sub_f32 v57, v{40+i}, v56", "v_fmac_f32 v58, v57, v57"]
    ln += ["v_mul_f32 v58, v58, v7"] + half_sum_l("v58", "v57") + ["v_mul_f32 v58, 0x3b124925, v58"]
    ln += bf16_round_l("v56", "v56") + bf16_round_l("v58", "v58") + ["v_add_f32 v58, 0x3727c5ac, v58"] + bf16_round_l("v58", "v58")
    ln += ["v_sqrt_f32 v58, v58", "s_nop 0"] + bf16_round_l("v58", "v58") + ["v_rcp_f32 v58, v58"]
    ln += [f"v_sub_f32 v{40+i}, v{40+i}, v56" for i in range(16)]
    ln += [f"v_cvt_pk_bf16_f32 v{32+i}, v{40+2*i}, v{41+2*i}" for i in range(8)]
    for i in range(8):
        ln += [f"v_lshlrev_b32 v{40+2*i}, 16, v{32+i}", f"v_and_b32 v{41+2*i}, 0xffff0000, v{32+i}"]
    ln += [f"v_mul_f32 v{40+i}, v{40+i}, v58" for i in range(16)]
    ln += [f"v_cvt_pk_bf16_f32 v{32+[0,1,4,5,2,3,6,7][i]}, v{40+2*i}, v{41+2*i}" for i in range(8)]
    ln += ["ds_write_b128 v26, v[32:35]", "ds_write_b128 v26, v[36:39] offset:128"]
    ln2 = ["ds_read_b128 v[32:35], v252", "ds_read_b128 v[36:39], v252 offset:896"]
    ln3 = [(f"buffer_store_dwordx4 v[32:35], v253, s[24:27], 0 offen{SC}", "sA"), (f"buffer_store_dwordx4 v[36:39], v253, s[24:27], 0 offen offset:3584{SC}", "sA")]
    SETS = [64, 128]
    def reads(stage, st_):
        slot = stage % 4
        b = SETS[st_]
        ra = [f"ds_read_b128 {v(b+4*i,4)}, {'v10' if stage & 1 else 'v16'} offset:{((stage>>1)&1)*32768 + (32*(i>>1)+8*(i&1))*128}" for i in range(8)]
        rw = [[f"ds_read_b64_tr_b16 {v(b+32+4*j+2*t,2)}, v{17+j} offset:{slot*16384 + 2048*t}" for t in range(2)] for j in range(8)]
        out = []
        for i in range(8): out += [ra[i]] + rw[i]
        return out
    def mf(typ, i, j, st_, first=False):
        b = SETS[st_]
        acc = a((i*8+j)*4, 4)
        c = "0" if first else acc
        ca, w_ = v(b+4*i, 4), v(b+32+4*j, 4)
        return f"v_mfma_f32_16x16x32_bf16 {acc}, {w_}, {ca}, {c}" if typ == 0 else f"v_mfma_f32_16x16x32_bf16 {acc}, {ca}, {w_}, {c}"
    A("s_lshr_b32 s56, s2, 3")
    A("s_and_b32 s5, s56, 15")
    A("s_lshl_b32 s57, s5, 1")
    A("s_add_u32 s58, s57, s3")
    A("s_sub_u32 s59, 60, s57")
    A("s_add_u32 s59, s59, s3")
    A("s_cmp_lt_u32 s3, 2")
    A("s_cselect_b32 s58, s58, s59")
    A("s_mul_i32 s69, s58, 28672")
    XCH = [65536, 81920, 0, 16384, 98304, 32768, 49152]
    g.XCH = XCH
    def xdma(c):
        out = [f"s_add_u32 m0, s64, {XCH[c]}", f"s_add_u32 s56, s69, {c*4096}"]
        out += [(f"buffer_load_dwordx4 v5, s[24:27], s56 offen offset:{1024*i}{SC} lds", ("x", c)) for i in range(4)]
        return out
    vm0 = list(vm.ops)
    A("s_cmp_eq_u32 s7, 1")
    A("s_cbranch_scc1 PA_V")
    for typ in (0, 1):
        if typ: A.label("PA_V")
        vm.ops = list(vm0)
        A(f"s_waitcnt vmcnt({vm.newer(lambda t: t == ('A', 0))})")
        A("s_barrier")
        ST(2)
        emit(g, reads(0, 0))
        A("s_waitcnt lgkmcnt(0)")
        carry = []
        for s_ in range(32):
            sched = {}
            g0 = 0
            if s_ == 0:
                spread(sched, dma(2) + dmaA(1) + dma(3), 0, G0 - 1); g0 = G0
            def w(s_=s_):
                n = min(vm.newer(lambda t: t == ("d", s_ + 1)), vm.newer(lambda t: t == ("A", (s_ + 1) // 2)))
                if s_ == FSA: n = min(n, vm.newer(lambda t: t == "sA"))
                A(f"s_waitcnt vmcnt({n})")
            if s_ < 31:
                sched.setdefault(g0, []).extend([w, "s_barrier"])
                spread(sched, reads(s_ + 1, (s_ + 1) % 2), g0 + 1, 54)
            if s_ == 31: sched.setdefault(0, []).append("s_barrier")
            dl = []
            if s_ % 2 == 1 and (s_ + 3) // 2 < 16: dl += dmaA((s_ + 3) // 2)
            if s_ + 4 < 32: dl += dma(s_ + 4)
            if dl: spread(sched, dl, g0 + 2, 48)
            if s_ == FSA: sched[g0].append(lambda: (A("s_lshl_b32 s56, s2, 2"), set_flag(g, "s56")))
            if TOUCH and s_ in TWT:
                tv, ts, to = TWT[s_]
                sched.setdefault(52, []).append((f"buffer_load_dword v248, {tv}, s[{ts}:{ts+3}], 0 offen offset:{to}", "t"))
            if s_ == LNS - 3 and not NOSIDE: sched.setdefault(51, []).extend([("buffer_load_dwordx4 v[32:35], v25, s[20:23], 0 offen", "ln"), ("buffer_load_dwordx4 v[36:39], v25, s[20:23], 0 offen offset:16", "ln")])
            if s_ == LNS and not NOSIDE: carry += ln
            if s_ == LNS + 4:
                assert not carry
                sched.setdefault(20, []).extend(ln2)
            if s_ == LNS + 5: sched.setdefault(20, []).extend(ln3)
            if s_ == 5:
                def raise_dbg():
                    L = A.newlabel("RDBG")
                    A("s_or_b32 s56, s2, s3")
                    A(f"s_cbranch_scc1 {L}")
                    A("s_mov_b64 exec, 1")
                    A("global_store_dword v29, v30, s[92:93] sc1")
                    A("s_mov_b64 exec, -1")
                    A.label(L)
                sched[g0].append(raise_dbg)
            if TOUCH and s_ in TW: sched.setdefault(50, []).extend(touchW())
            if TOUCH and s_ == TA: sched.setdefault(50, []).extend(touchA(1))
            if s_ == FSA - 4:
                sched.setdefault(50, []).append(("global_load_dword v59, v29, s[92:93] sc1", "dbg"))
            if s_ == FSA - 1:
                def chk_dbg():
                    L = A.newlabel("DBG")
                    A(f"s_waitcnt vmcnt({vm.newer(lambda t: t == 'dbg')})")
                    A("s_mov_b32 s87, 0")
                    A.label(L)
                    A("v_cmp_ne_u32 vcc, 1, v59")
                    A(f"s_cbranch_vccz {L}_OK")
                    A("s_sleep 1")
                    A("global_load_dword v59, v29, s[92:93] sc1")
                    A("s_waitcnt vmcnt(0)")
                    A("s_add_u32 s87, s87, 1")
                    A(f"s_cmp_lt_u32 s87, {SPIN}")
                    A(f"s_cbranch_scc1 {L}")
                    A.label(L + "_OK")
                sched.setdefault(50, []).append(chk_dbg)
            if s_ == 24:
                sched.setdefault(50, []).append((f"buffer_load_dwordx4 v[56:59], v5, s[88:91], 0 offen offset:{F_SA*4} sc1", "pf"))
            if s_ == 26:
                def chk_sa():
                    L = A.newlabel("PSA")
                    A(f"s_waitcnt vmcnt({vm.newer(lambda t: t == 'pf')})")
                    A("s_mov_b32 s87, 0")
                    A.label(L)
                    A("v_and_b32 v56, v56, v57"); A("v_and_b32 v58, v58, v59"); A("v_and_b32 v56, v56, v58")
                    A("v_cmp_ne_u32 vcc, 1, v56")
                    A(f"s_cbranch_vccz {L}_OK")
                    A("s_sleep 1")
                    A(f"buffer_load_dwordx4 v[56:59], v5, s[88:91], 0 offen offset:{F_SA*4} sc1")
                    A("s_waitcnt vmcnt(0)")
                    A("s_add_u32 s87, s87, 1")
                    A(f"s_cmp_lt_u32 s87, {SPIN}")
                    A(f"s_cbranch_scc1 {L}")
                    A.label(L + "_OK")
                sched.setdefault(50, []).append(chk_sa)
            xc = {28: [0], 29: [1, 2, 3], 30: [4], 31: [5, 6]}.get(s_, [])
            if xc:
                items = []
                for c in xc: items += xdma(c)
                spread(sched, items, 2, 30)
            wk = {28: [0, 1], 29: [2, 3], 31: [4, 5]}.get(s_, [])
            if wk:
                items = []
                for ks in wk: items += g.wq.dma(ks)
                spread(sched, items, 34, 60)
            ms = [mf(typ, i, j, s_ % 2, first=(s_ == 0)) for i in range(8) for j in range(8)]
            run_sched(A, ms, sched, carry, 2, vm)
            if s_ < 31: A("s_waitcnt lgkmcnt(0)")
            if s_ in (7, 15, 23): ST(3 + s_ // 8)
            if g.ST2: g.ST2(s_)
        assert not carry
        ST(6)
        if g.ST2:
            ws_srd(A, 24, 54, STAMP_OFF + (1 << 20), 1 << 20)
            A("s_lshl_b32 s56, s2, 2"); A("s_add_u32 s56, s56, s3"); A("s_lshl_b32 s56, s56, 8")
            A("v_lshlrev_b32 v62, 2, v2")
            A("buffer_store_dword v63, v62, s[24:27], s56 offen")
        phaseB(g, typ)
        if typ == 0: A("s_branch PB_JOIN")
    A.label("PB_JOIN")

def phaseB(g, typ):
    A, ST, vm = g.A, g.ST, g.vm
    A("s_lshl_b32 s70, s4, 21")
    A("s_lshl_b32 s71, s6, 18")
    A("s_add_u32 s70, s70, s71")
    A("s_lshl_b32 s71, s67, 17")
    A("s_add_u32 s70, s70, s71")
    A("s_lshl_b32 s71, s68, 13")
    A("s_add_u32 s70, s70, s71")
    if typ: A("s_add_u32 s70, s70, 16384")
    for kb in range(4):
        A(f"s_add_u32 s{72+2*kb}, s70, {kb*32768}")
        A(f"s_add_u32 s{73+2*kb}, s70, {kb*32768+4096}")
    epi = []
    cnt = 0
    for u in range(8):
        for pp in range(4):
            if typ == 0: i, j0 = u, 2*pp; t0, t1 = (i*8+j0)*4, (i*8+j0+1)*4; kb, odd, db = i >> 1, i & 1, pp
            else: j, i0 = u, 2*pp; t0, t1 = (i0*8+j)*4, ((i0+1)*8+j)*4; kb, odd, db = pp, j & 1, j >> 1
            t = 32 + (cnt % 2) * 16; cnt += 1
            epi += [f"v_accvgpr_read_b32 v{t+r}, a{t0+r}" for r in range(4)]
            epi += [f"v_accvgpr_read_b32 v{t+4+r}, a{t1+r}" for r in range(4)]
            epi += [f"v_cvt_pk_bf16_f32 v{t+8+r}, v{t+2*r}, v{t+2*r+1}" for r in range(4)]
            epi.append((f"buffer_store_dwordx4 {v(t+8,4)}, v6, s[16:19], s{72+2*kb+(db>>1)} offen offset:{(db&1)*2048 + odd*128}{SC}", "kv"))
    QACC = 96
    XF = [64, 80]
    A("v_add_u32 v7, 0x10000, v5"); A("v_add_u32 v8, 0x20000, v5")
    def xreads(ks):
        b = XF[ks % 2]
        out = []
        for q in range(4):
            o = g.XCH[ks // 4] + q * 4096 + (ks % 4) * 1024
            out.append(f"ds_read_b128 {v(b+4*q,4)}, {['v5','v7','v8'][o >> 16]} offset:{o & 0xffff}")
        return out
    WF = [224, 232]
    A(f"s_waitcnt vmcnt({min(vm.newer(lambda t: t == ('x', 3)), vm.newer(lambda t: t == ('w', 0)))})")
    A("s_barrier")
    emit(g, xreads(0) + g.wq.tr(0, WF[0], WF[0] + 4))
    EPB = int(os.environ.get("EPB", "5"))
    FLAGKS = int(os.environ.get("FLAGKS", "18"))
    def kvflag():
        assert not epi
        A(f"s_waitcnt vmcnt({vm.newer(lambda t: t == 'kv')})")
        A("s_barrier")
        A("s_lshl_b32 s56, s4, 6"); A("s_lshl_b32 s57, s7, 5"); A("s_add_u32 s56, s56, s57"); A("s_lshl_b32 s57, s6, 2"); A("s_add_u32 s56, s56, s57")
        A(f"s_add_u32 s56, s56, {F_KV*4}")
        set_flag(g, "s56")
    for ks in range(28):
        sched = {}
        A("s_waitcnt lgkmcnt(0)")
        if ks == FLAGKS: kvflag()
        if ks + 1 < 28:
            def w(ks=ks):
                n = vm.newer(lambda t: t == ('w', ks + 1))
                if ks == 15: n = min(n, vm.newer(lambda t: t == ('x', 6)))
                A(f"s_waitcnt vmcnt({n})")
                if ks == 15: A("s_barrier")
            items = [w] + g.wq.tr(ks + 1, WF[(ks+1) % 2], WF[(ks+1) % 2] + 4) + xreads(ks + 1)
            if ks + 6 < 28: items += g.wq.dma(ks + 6)
            spread(sched, items, 0, 6)
        ms = []
        for q in range(4):
            for d in range(2):
                acc = v(QACC + (d*4+q)*16, 16)
                c = "0" if ks == 0 else acc
                ms.append(f"v_mfma_f32_32x32x16_bf16 {acc}, {v(WF[ks%2]+4*d,4)}, {v(XF[ks%2]+4*q,4)}, {c}")
        run_sched(A, ms, sched, epi, EPB + 1, vm)
    assert not epi, len(epi)
    ST(7)
    if FLAGKS >= 28: kvflag()
    else: A("s_barrier")

def phaseC(g):
    A, ST, vm = g.A, g.ST, g.vm
    VL16 = "v5"
    MC = ["v8", "v9"]; THR = ["v10", "v11"]; LS = ["v12", "v13"]; FAC = ["v14", "v15"]; TM = ["v16", "v17"]; MR = ["v18", "v19"]
    T0, T1, T2 = "v4", "v6", "v7"
    SEL = [20, 24]
    VQROW, VSTAT, VSTR = "v0", "v1", "v3"
    SB = [32, 64]
    WIN = 128
    QA = 0
    KV = "s[16:19]"
    def Oreg(gq, dbl, qb):
        b = (gq * 2 + dbl) * 2 + qb
        if b < 8: return ("v", 128 + b * 16)
        if b < 10: return ("v", 96 + (b - 8) * 16)
        return ("a", 160 + (b - 10) * 16)
    def OR(gq, dbl, qb):
        f, b = Oreg(gq, dbl, qb)
        return (a if f == "a" else v)(b, 16)
    allO = [(gq, d, q) for gq in range(4) for d in range(2) for q in range(2)]
    QACC = 96
    A("s_mov_b32 s4, s85")
    A("s_lshl_b32 s45, s3, 12")
    A(f"v_add_u32 {T0}, s45, {VL16}")
    for q in range(4):
        for d in range(2):
            b = QACC + (d*4+q)*16
            for r in range(8):
                A(f"v_cvt_pk_bf16_f32 v{b+r}, v{b+2*r}, v{b+2*r+1}")
            for s_ in range(2):
                A(f"ds_write_b128 {T0}, {v(b+4*s_,4)} offset:{q*16384 + (2*d+s_)*1024}")
    ws_srd(A, 20, 54, CTX_OFF, CTX_SZ)
    A("s_and_b32 s45, s3, 1")
    A("s_lshl_b32 s45, s45, 1")
    for gq in range(4):
        A(f"s_add_u32 s{64+gq}, s45, {gq+2}")
        A(f"s_and_b32 s{64+gq}, s{64+gq}, 3")
        A(f"s_lshl_b32 s{64+gq}, s{64+gq}, 12")
    A("s_lshl_b32 s45, s5, 1")
    A("s_sub_u32 s56, 64, s45")
    A("s_mul_i32 s57, s3, 17")
    A("s_min_u32 s57, s57, 50")
    A("s_add_u32 s58, s57, 17")
    A("s_cmp_ge_u32 s3, 2")
    A("s_cselect_b32 s45, 1, 0")
    A("s_sub_u32 s58, s58, s45")
    A("s_min_u32 s59, s58, s56")
    A("s_sub_i32 s59, s59, s57")
    A("s_max_i32 s59, s59, 0")
    A("s_max_u32 s60, s57, s56")
    A("s_sub_i32 s53, s58, s60")
    A("s_max_i32 s53, s53, 0")
    A("s_sub_u32 s60, s60, s56")
    A("s_cmp_gt_u32 s59, 0")
    A("s_cselect_b32 s34, 0, 1")
    A("s_cselect_b32 s40, s57, s60")
    A("s_cselect_b32 s7, s59, s53")
    A("s_cselect_b32 s53, s53, 0")
    A("s_mov_b32 s52, 0")
    A("s_cmp_gt_u32 s56, 50")
    A("s_cselect_b32 s61, 0x8000, 0")
    A("s_add_u32 s61, s61, 98304")
    A("v_and_b32 v32, 31, v2")
    A("v_lshrrev_b32 v33, 5, v2")
    A(f"v_lshlrev_b32 {VSTR}, 6, v32")
    A(f"v_add_u32 {VSTR}, s61, {VSTR}")
    A(f"v_lshlrev_b32 {VSTAT}, 4, v32")
    A(f"v_add_u32 {VSTAT}, s61, {VSTAT}")
    A(f"v_add_u32 {VSTAT}, 4096, {VSTAT}")
    A("v_lshlrev_b32 v34, 2, v33")
    A("v_sub_u32 v34, v32, v34")
    A(f"v_cvt_f32_i32 {VQROW}, v34")
    A(f"v_add_f32 {VQROW}, 0.5, {VQROW}")
    A("v_mov_b32 v35, 0x3f80")
    A("v_mov_b32 v36, 0x3f800000")
    for s_ in range(2):
        for p in range(4):
            e0 = 2*p
            c0 = 16*s_ + 8*(e0 >> 2) + (e0 & 3)
            A(f"v_cmp_eq_u32 vcc, {c0}, v34")
            A(f"v_cmp_eq_u32 s[50:51], {c0+1}, v34")
            A("s_nop 1")
            A(f"v_cndmask_b32 v{SEL[s_]+p}, 0, v35, vcc")
            A(f"v_cndmask_b32 v{SEL[s_]+p}, v{SEL[s_]+p}, v36, s[50:51]")
    if WOT:
        A("s_load_dwordx2 s[72:73], s[0:1], 40")
        A("s_lshr_b32 s45, s2, 3"); A("s_lshl_b32 s45, s45, 2"); A("s_add_u32 s45, s45, s3")
        A("s_mul_i32 s70, s45, 28672")
        A("v_and_b32 v37, 31, v2")
        A("v_lshlrev_b32 v37, 7, v37")
        A("v_accvgpr_write_b32 a255, v37") if False else None
        A("s_waitcnt lgkmcnt(0)")
        srd(A, 24, 72, 4096*448*2)
    A(f"s_mov_b32 s68, {f32bits(CSC):#x}")
    A(f"s_mov_b32 s69, {f32bits(TTHR/CSC):#x}")
    A("v_and_b32 v32, 15, v2")
    A("v_lshlrev_b32 v32, 2, v32")
    A("s_lshl_b32 s45, s4, 6")
    A(f"s_add_u32 s45, s45, {F_KV*4}")
    poll(g, 36, "v32", "s45")
    ST(8)
    A("s_lshl_b32 s48, s4, 21")
    A("s_lshl_b32 s35, s40, 15")
    A("s_add_u32 s35, s35, s48")
    for f in range(8):
        if f % 4 == 0: A(f"s_add_u32 s45, s35, {(f//4)*4096}")
        A(f"buffer_load_dwordx4 {a(WIN+4*f,4)}, {VL16}, {KV}, s45 offen offset:{(f%4)*1024}{SC}")
    A("s_waitcnt lgkmcnt(0)")
    A("s_barrier")
    A(f"v_mov_b32 v32, {f32bits(-BIG):#x}"); A("v_mov_b32 v33, 0"); A("v_mov_b32 v34, v32"); A("v_mov_b32 v35, 0")
    for q in range(2):
        A(f"ds_write_b128 {VSTR}, v[32:35] offset:{q*2048+32}")
        A(f"ds_write_b128 {VSTR}, v[32:35] offset:{q*2048+48}")
    A("s_cmp_eq_u32 s34, 0")
    A("s_cselect_b32 s45, 0x8000, 0")
    A(f"v_add_u32 {T0}, s45, {VL16}")
    for i in range(32):
        A(f"ds_read_b128 {a(QA+4*i,4)}, {T0} offset:{i*1024}")
    def zeroO():
        out = []
        for (gq, d, q) in allO:
            f, b = Oreg(gq, d, q)
            for r in range(16):
                out.append(f"v_mov_b32 v{b+r}, 0" if f == "v" else f"v_accvgpr_write_b32 a{b+r}, 0")
        return out
    def stream(items, fillers, budget=None, first_gap=0):
        cst = [3 if callable(x) else cost(x) for x in fillers]
        tot = sum(cst); ng = len(items) - first_gap
        fi = 0; done = 0
        for gi, (pre, m, post) in enumerate(items):
            for x in pre: A(x)
            A(m)
            for x in post: A(x)
            if gi >= first_gap:
                target = tot * (gi - first_gap + 1) / ng
                while fi < len(fillers) and done + cst[fi] / 2 <= target:
                    x = fillers[fi]
                    if callable(x): x()
                    else: A(x)
                    done += cst[fi]; fi += 1
        while fi < len(fillers):
            x = fillers[fi]; fi += 1
            if callable(x): x()
            else: A(x)
    def ld(sl, soff, f): return f"buffer_load_dwordx4 {a(sl,4)}, {VL16}, {KV}, {soff} offen offset:{(f%4)*1024}{SC}"
    def X_items(p, loads2):
        items = []
        for f in range(16):
            sl = WIN + 4 * (f % 8)
            for q in range(2):
                acc = v(SB[p] + q*16, 16)
                c = "0" if f == 0 else acc
                pre = ["s_waitcnt vmcnt(7)"] if q == 0 else []
                post = []
                if q == 1:
                    if f < 8:
                        if f % 4 == 0: post.append(f"s_add_u32 s45, s36, {(2+f//4)*4096}")
                        post.append(ld(sl, "s45", f))
                    else: post.append(ld(sl, loads2[(f-8)//4], f))
                items.append((pre, f"v_mfma_f32_32x32x16_bf16 {acc}, {a(sl,4)}, {a(QA+(q*16+f)*4,4)}, {c}", post))
        return items
    def Y_items(p, loads2, first=False):
        items = []
        for f in range(16):
            sl = WIN + 4 * (f % 8)
            gq, d, s_ = f // 4, (f // 2) % 2, f % 2
            for q in range(2):
                acc = OR(gq, d, q)
                pre = ["s_waitcnt vmcnt(7)"] if q == 0 else []
                post = []
                if q == 1:
                    if f < 8:
                        if f % 4 == 0: post.append(f"s_add_u32 s45, s37, s{64+2+f//4}")
                        post.append(ld(sl, "s45", f))
                    else: post.append(ld(sl, loads2[(f-8)//4], f))
                items.append((pre, f"v_mfma_f32_32x32x16_bf16 {acc}, {a(sl,4)}, {v(SB[p]+q*16+4*s_,4)}, {'0' if (first and s_ == 0) else acc}", post))
        return items
    def expq(p, q):
        b = SB[p] + q*16
        out = []
        def post(k):
            return [f"v_add_f32 {LS[q]}, {LS[q]}, v{b+2*k}", f"v_add_f32 {LS[q]}, {LS[q]}, v{b+2*k+1}",
                    f"v_cvt_pk_bf16_f32 v{b+k}, v{b+2*k}, v{b+2*k+1}"]
        for k in range(8):
            out.append(f"v_fma_f32 v{b+2*k}, v{b+2*k}, s68, -{MC[q]}")
            out.append(f"v_fma_f32 v{b+2*k+1}, v{b+2*k+1}, s68, -{MC[q]}")
            out.append(f"v_exp_f32 v{b+2*k}, v{b+2*k}")
            out.append(f"v_exp_f32 v{b+2*k+1}, v{b+2*k+1}")
            if k > 0: out += post(k-1)
        out.append("s_nop 0")
        out += post(7)
        return out
    def maxq(p, q):
        b = SB[p] + q*16
        out = [f"v_max3_f32 {TM[q]}, v{b}, v{b+1}, v{b+2}"]
        for r in range(3, 15, 2):
            out.append(f"v_max3_f32 {TM[q]}, {TM[q]}, v{b+r}, v{b+r+1}")
        out.append(f"v_max_f32 {TM[q]}, {TM[q]}, v{b+15}")
        return out
    def mask_code(p):
        A("s_lshl_b32 s63, s6, 1")
        A("s_sub_u32 s63, s63, s40")
        A("s_lshl_b32 s63, s63, 5")
        A(f"v_cvt_f32_i32 {T0}, s63")
        A(f"v_add_f32 {T0}, {T0}, {VQROW}")
        for q in range(2):
            A(f"v_mov_b32 {T1}, {T0}" if q == 0 else f"v_add_f32 {T1}, 0x42000000, {T0}")
            A(f"v_mul_f32 {T1}, {f32bits(BIG):#x}, {T1}")
            b = SB[p] + q*16
            for r in range(16):
                cr = 8*(r >> 2) + (r & 3)
                A(f"v_add_f32 {T2}, {f32bits(-cr*BIG):#x}, {T1}" if cr else f"v_mov_b32 {T2}, {T1}")
                A(f"v_min_f32 v{b+r}, v{b+r}, {T2}")
    def rescaleO(blocks=None):
        A("s_nop 7"); A("s_nop 7")
        for (gq, d, q) in (blocks or allO):
            f, b = Oreg(gq, d, q)
            for r in range(16):
                if f == "v":
                    A(f"v_mul_f32 v{b+r}, v{b+r}, {FAC[q]}")
                else:
                    A(f"v_accvgpr_read_b32 {T0}, a{b+r}")
                    A(f"v_mul_f32 {T0}, {T0}, {FAC[q]}")
                    A(f"v_accvgpr_write_b32 a{b+r}, {T0}")
        A("s_nop 1")
    rare_blocks = []
    def P1(p, tag):
        def maskbr():
            A("s_cmp_ge_u32 s40, s41")
            A(f"s_cbranch_scc1 PC_MASK_{tag}")
            A.label(f"PC_MASKRET_{tag}")
        def chk():
            A(f"v_cmp_gt_f32 vcc, {TM[0]}, {THR[0]}")
            A(f"v_cmp_gt_f32 s[50:51], {TM[1]}, {THR[1]}")
            A("s_or_b64 s[50:51], vcc, s[50:51]")
            A(f"s_cbranch_scc1 PC_RARE_{tag}")
            A.label(f"PC_RARERET_{tag}")
        rare_blocks.append((p, tag))
        return [maskbr] + maxq(p, 0) + maxq(p, 1) + [chk, "s_add_u32 s40, s40, 1"] + expq(p, 0)[:CUT]
    STEP = 32768
    def pack_l(gq, addr, off, tmp):
        out = []
        for d in range(2):
            for q in range(2):
                f, b = Oreg(gq, d, q)
                if f == "a":
                    t = tmp + ((d*2+q) % 2) * 16
                    out += [f"v_accvgpr_read_b32 v{t+r}, a{b+r}" for r in range(16)]
                    b = t
                out += [f"v_cvt_pk_bf16_f32 v{b+r}, v{b+2*r}, v{b+2*r+1}" for r in range(8)]
                out += [f"ds_write_b128 {addr}, {v(b+4*s_,4)} offset:{off + ((d*2+q)*2+s_)*1024}" for s_ in range(2)]
        return out
    def xaddr(dst, wreg):
        A(f"s_lshr_b32 s43, {wreg}, 1")
        A("s_mul_i32 s43, s43, 98304")
        A(f"s_and_b32 {dst}, {wreg}, 1")
        A(f"s_lshl_b32 {dst}, {dst}, 14")
        A(f"s_add_u32 {dst}, {dst}, s43")
        A(f"s_add_u32 {dst}, {dst}, 32768")
    def seg_head():
        A("s_sub_u32 s6, 31, s5")
        A("s_cmp_eq_u32 s34, 0")
        A("s_cselect_b32 s6, s6, s5")
        A("s_lshl_b32 s41, s6, 1")
        A("s_mov_b32 s42, 0")
        A(f"v_mov_b32 {LS[0]}, 0"); A(f"v_mov_b32 {LS[1]}, 0")
        xaddr("s45", "s3")
        A("s_lshl_b32 s43, s3, 15")
        A("s_lshl_b32 s44, s64, 1")
        A("s_add_u32 s43, s43, s44")
        A("s_lshr_b32 s44, s3, 1")
        A("s_xor_b32 s49, s34, 1")
        A("s_and_b32 s49, s49, s44")
        A("s_cselect_b32 s45, s43, s45")
        A(f"v_add_u32 v28, s45, {VL16}")
        A("s_mov_b32 s36, s35")
        A(f"s_add_u32 s43, s35, {STEP}")
        A(f"s_add_u32 s44, s35, {STEP+4096}")
        A("s_add_u32 s45, s35, 16384")
        A("s_add_u32 s38, s45, s64")
        A("s_add_u32 s39, s45, s65")
        A("s_cmp_gt_u32 s7, 1")
        A("s_cselect_b32 s43, s43, s38")
        A("s_cselect_b32 s44, s44, s39")
        A("s_waitcnt lgkmcnt(0)")
    seg_head()
    stream(X_items(0, ["s43", "s44"]), [])
    A.label("PC_X0DONE")
    A("s_nop 7"); A("s_nop 3")
    A("s_cmp_ge_u32 s40, s41")
    A("s_cbranch_scc0 PC_NOMASK0")
    mask_code(0)
    A.label("PC_NOMASK0")
    for x in maxq(0, 0) + maxq(0, 1): A(x)
    xhalf(A, "v_max_f32", TM[0], T0)
    xhalf(A, "v_max_f32", TM[1], T1)
    A("s_lshl_b32 s45, s34, 10")
    A(f"v_add_u32 {T1}, s45, {VSTAT}")
    A("s_cmp_lg_u32 s52, 0")
    A("s_cbranch_scc1 PC_NOPUB")
    A("s_lshl_b32 s43, s3, 2")
    A(f"v_add_u32 {T0}, s43, {T1}")
    A(f"v_xor_b32 {T2}, 1024, {T0}")
    A(f"v_mov_b32 v{SB[1]}, {f32bits(-BIG):#x}")
    for q in range(2):
        A(f"ds_write_b32 {T0}, {TM[q]} offset:{q*512}")
        A(f"ds_write_b32 {T2}, v{SB[1]} offset:{q*512}")
    A("s_waitcnt lgkmcnt(0)")
    A("s_barrier")
    A.label("PC_NOPUB")
    for q in range(2):
        A(f"ds_read_b128 {v(SB[1]+q*4,4)}, {T1} offset:{q*512}")
    A("s_waitcnt lgkmcnt(0)")
    for q in range(2):
        b = SB[1] + q*4
        A(f"v_max3_f32 {MR[q]}, v{b}, v{b+1}, v{b+2}")
        A(f"v_max_f32 {MR[q]}, {MR[q]}, v{b+3}")
        A(f"v_add_f32 {THR[q]}, s69, {MR[q]}")
        A(f"v_cmp_gt_f32 vcc, {TM[q]}, {THR[q]}")
        A("s_nop 1")
        A(f"v_cndmask_b32 {MR[q]}, {MR[q]}, {TM[q]}, vcc")
        A(f"v_mul_f32 {MC[q]}, s68, {MR[q]}")
        A(f"v_add_f32 {THR[q]}, s69, {MR[q]}")
    A("s_add_u32 s40, s40, 1")
    for x in expq(0, 0)[:CUT]: A(x)
    A("s_cmp_eq_u32 s7, 1")
    A("s_cbranch_scc1 PC_TAILF")
    def body(p, tag, first=False):
        A(f"s_add_u32 s36, s35, {STEP}")
        A("s_add_u32 s37, s35, 16384")
        A("s_add_u32 s43, s37, s64")
        A("s_add_u32 s44, s37, s65")
        stream(X_items(p ^ 1, ["s43", "s44"]), expq(p, 0)[CUT:] + expq(p, 1))
        A(f"s_add_u32 s43, s35, {2*STEP}")
        A(f"s_add_u32 s44, s35, {2*STEP+4096}")
        A(f"s_add_u32 s45, s35, {STEP+16384}")
        A("s_add_u32 s38, s45, s64")
        A("s_add_u32 s39, s45, s65")
        A("s_cmp_gt_u32 s7, 2")
        A("s_cselect_b32 s43, s43, s38")
        A("s_cselect_b32 s44, s44, s39")
        if WOT:
            A(f"s_cmp_le_u32 s7, {WOT}")
            A("s_cselect_b32 s71, s70, 0x7ff00000")
            A("s_cselect_b32 s45, 4096, 0")
            A("s_add_u32 s70, s70, s45")
            A(f"v_lshlrev_b32 {T0}, 2, {VL16}")
            A(f"buffer_load_dword v{SB[p]+15}, {T0}, s[24:27], s71 offen")
        stream(Y_items(p, ["s43", "s44"], first), P1(p ^ 1, tag), first_gap=2)
        A("s_cmp_lg_u32 s42, 0")
        A(f"s_cbranch_scc1 PC_PEND_{tag}")
        A.label(f"PC_PENDRET_{tag}")
        A(f"s_add_u32 s35, s35, {STEP}")
        A("s_sub_u32 s7, s7, 1")
        A("s_cmp_eq_u32 s7, 1")
    body(0, "BF", first=True)
    A("s_cbranch_scc1 PC_TAIL1")
    A("s_branch PC_LOOPB")
    A.label("PC_LOOP")
    body(0, "B0")
    A("s_cbranch_scc1 PC_TAIL1")
    A.label("PC_LOOPB")
    body(1, "B1")
    A("s_cbranch_scc0 PC_LOOP")
    for (lab, p, first) in (("0", 0, False), ("1", 1, False), ("F", 0, True)):
        A.label(f"PC_TAIL{lab}")
        for x in expq(p, 0)[CUT:] + expq(p, 1): A(x)
        A("s_add_u32 s37, s35, 16384")
        A("s_cmp_lg_u32 s53, 0")
        A(f"s_cselect_b32 s43, s48, {KV_SZ:#x}")
        A("s_add_u32 s44, s43, 4096")
        items = Y_items(p, ["s43", "s44"], first)
        qr = [f"ds_read_b128 {a(QA+4*i,4)}, {VL16} offset:{i*1024}" for i in range(32)]
        stream(items[:12], qr)
        stream(items[12:20], pack_l(0, "v28", 0, 0))
        stream(items[20:], pack_l(1, "v28", 8192, 0))
        if lab != "F": A("s_branch PC_SEGEND")
    A.label("PC_SEGEND")
    ST(9)
    xhalf(A, "v_add_f32", LS[0], T0)
    xhalf(A, "v_add_f32", LS[1], T1)
    def put_stats(slot_sgpr):
        A(f"v_add_u32 {T0}, {slot_sgpr}, {VSTR}")
        for q in range(2):
            A(f"v_mov_b32 v{SB[1]+2*q}, {MR[q]}")
            A(f"v_mov_b32 v{SB[1]+2*q+1}, {LS[q]}")
            A(f"ds_write_b64 {T0}, {v(SB[1]+2*q,2)} offset:{q*2048}")
    A("s_cmp_eq_u32 s49, 0")
    A("s_cbranch_scc1 PC_NODUMP")
    A("s_lshl_b32 s45, s3, 3")
    A("s_add_u32 s45, s45, 16")
    put_stats("s45")
    A(f"v_xor_b32 {T2}, 0x4000, v28")
    A("s_mov_b32 s34, 1")
    A("s_cmp_eq_u32 s53, 0")
    A("s_cbranch_scc1 PC_EMPTIED")
    A("s_mov_b32 s7, s53")
    A("s_mov_b32 s53, 0")
    A("s_mov_b32 s52, 1")
    A("s_mov_b32 s40, 0")
    A("s_mov_b32 s35, s48")
    seg_head()
    stream(X_items(0, ["s43", "s44"]), pack_l(2, T2, 0, SB[1]) + pack_l(3, T2, 8192, SB[1]))
    A("s_branch PC_X0DONE")
    A.label("PC_EMPTIED")
    for x in pack_l(2, T2, 0, SB[0]) + pack_l(3, T2, 8192, SB[0]): A(x)
    for x in zeroO()[128:]: A(x)
    for q in range(2):
        A(f"v_mov_b32 {MR[q]}, {f32bits(-BIG):#x}"); A(f"v_mov_b32 {LS[q]}, 0")
    A.label("PC_NODUMP")
    A("s_lshl_b32 s45, s3, 3")
    put_stats("s45")
    A.label("PC_SENT")
    A("s_waitcnt lgkmcnt(0)")
    A("s_barrier")
    A("s_lshr_b32 s45, s3, 1")
    A("s_lshl_b32 s45, s45, 4")
    A(f"v_add_u32 {T0}, s45, {VSTR}")
    for q in range(2):
        A(f"ds_read_b128 {v(SB[0]+q*8,4)}, {T0} offset:{q*2048}")
        A(f"ds_read_b128 {v(SB[0]+q*8+4,4)}, {T0} offset:{q*2048+32}")
    A("s_cmp_ge_u32 s56, 50"); A("s_cselect_b32 s57, 1, 0")
    A("s_cmp_eq_u32 s3, 3"); A("s_cselect_b32 s58, s57, 0")
    A("s_cmp_eq_u32 s3, 2"); A("s_cselect_b32 s57, s57, 0")
    A("s_cmp_gt_u32 s56, 34"); A("s_cselect_b32 s59, 1, 0")
    A("s_cmp_gt_u32 s56, 50"); A("s_cselect_b32 s60, 1, 0")
    A("s_cmp_lt_u32 s3, 2"); A("s_cselect_b32 s59, s59, 0"); A("s_cselect_b32 s60, s60, 0")
    A("s_and_b32 s45, s3, 1")
    A("s_cmp_eq_u32 s45, 1")
    A("s_cselect_b64 s[62:63], -1, 0")
    A("s_waitcnt lgkmcnt(0)")
    for q in range(2):
        b = SB[0] + q*8
        A(f"v_max3_f32 {T0}, v{b}, v{b+2}, v{b+4}")
        A(f"v_max_f32 {T0}, {T0}, v{b+6}")
        for e in range(4):
            A(f"v_sub_f32 v{b+2*e}, v{b+2*e}, {T0}")
            A(f"v_mul_f32 v{b+2*e}, s68, v{b+2*e}")
            A(f"v_exp_f32 v{b+2*e}, v{b+2*e}")
        A("s_nop 0")
        A(f"v_mul_f32 {LS[q]}, v{b}, v{b+1}")
        for e in range(1, 4):
            A(f"v_fmac_f32 {LS[q]}, v{b+2*e}, v{b+2*e+1}")
        A(f"v_rcp_f32 {LS[q]}, {LS[q]}")
        A(f"v_cndmask_b32 {FAC[q]}, v{b}, v{b+2}, s[62:63]")
        A(f"v_cndmask_b32 {TM[q]}, v{b+2}, v{b}, s[62:63]")
    own = allO[8:]
    def store_addrs():
        A("s_sub_u32 s6, 31, s5")
        A("s_cmp_lt_u32 s3, 2")
        A("s_cselect_b32 s6, s6, s5")
        A("s_lshl_b32 s45, s6, 19")
        A("s_lshl_b32 s43, s4, 14")
        A("s_add_u32 s45, s45, s43")
        A("s_and_b32 s43, s3, 1")
        A("s_lshl_b32 s43, s43, 13")
        A("s_add_u32 s45, s45, s43")
        A("s_add_u32 s44, s45, 262144")
        A("s_add_u32 s46, s45, 4096")
        A("s_add_u32 s47, s44, 4096")
    def final_l(n_, tmp):
        gq, d, q = own[n_]
        f, b = Oreg(gq, d, q)
        t = tmp + (n_ % 2) * 16
        out = []
        if f == "a":
            out += [f"v_accvgpr_read_b32 v{t+r}, a{b+r}" for r in range(16)]
            b = t
        out += [f"v_pk_mul_f32 {v(t+r,2)}, {v(b+r,2)}, v[12:13] op_sel:[0,{q}] op_sel_hi:[1,{q}]" for r in range(0, 16, 2)]
        out += [f"v_cvt_pk_bf16_f32 v{t+r}, v{t+2*r}, v{t+2*r+1}" for r in range(8)]
        out += [f"buffer_store_dwordx4 {v(t+4*s_,4)}, {VL16}, s[20:23], s{[45,44,46,47][(gq-2)*2+q]} offen offset:{(2*d+s_)*1024}{SC}" for s_ in range(2)]
        return out
    def neq(dst, f2, absent_if, absent_val):
        A(f"v_cmp_neq_f32 vcc, 1.0, {f2[0]}")
        A(f"v_cmp_neq_f32 s[50:51], 1.0, {f2[1]}")
        A("s_or_b64 s[50:51], vcc, s[50:51]")
        A("s_cselect_b32 s43, 1, 0")
        A(f"s_cmp_eq_u32 {absent_if}, {absent_val}")
        A("s_cselect_b32 s43, 0, s43")
        A(f"s_or_b32 {dst}, {dst}, s43")
    FD = [[f"v{SB[0]+q*8+4+2*k}" for q in range(2)] for k in range(2)]
    A("s_mov_b32 s42, 0")
    neq("s42", FAC, "s57", 1); neq("s42", TM, "s58", 1); neq("s42", FD[0], "s59", 0); neq("s42", FD[1], "s60", 0)
    A("s_cmp_lg_u32 s42, 0")
    A("s_cbranch_scc1 PC_SLOW")
    A("s_xor_b32 s44, s3, 1")
    xaddr("s45", "s44")
    A("s_cmp_eq_u32 s58, 0"); A("s_cselect_b32 s45, s45, 0"); A("s_cselect_b32 s36, -1, 0")
    A(f"v_add_u32 {T0}, s45, {VL16}")
    A("s_lshl_b32 s45, s3, 14"); A("s_add_u32 s45, s45, 65536"); A("s_add_u32 s44, s45, 32768")
    A("s_cmp_lg_u32 s59, 0"); A("s_cselect_b32 s45, s45, 0"); A("s_cselect_b32 s37, -1, 0")
    A(f"v_add_u32 {T1}, s45, {VL16}")
    A("s_cmp_lg_u32 s60, 0"); A("s_cselect_b32 s44, s44, 0"); A("s_cselect_b32 s38, -1, 0")
    A(f"v_add_u32 {T2}, s44, {VL16}")
    SRC = [T0, T1, T2]
    FRB = 128
    def frd(n_): return [f"ds_read_b128 {v(FRB+(n_%4)*24+(k*2+s_)*4,4)}, {SRC[k]} offset:{(n_*2+s_)*1024}" for k in range(3) for s_ in range(2)]
    for n_ in range(3): emit(g, frd(n_))
    SELX = 32
    for k in range(3):
        for r in range(8): A(f"v_and_b32 v{SELX+k*8+r}, s{36+k}, v{SEL[0]+r}")
    store_addrs()
    pend = []
    for n_ in range(8):
        A(f"s_waitcnt lgkmcnt({6*min(2, 7-n_)})")
        acc = OR(*own[n_])
        items = [([], f"v_mfma_f32_32x32x16_bf16 {acc}, {v(SELX+k*8+4*s_,4)}, {v(FRB+(n_%4)*24+(k*2+s_)*4,4)}, {acc}", []) for k in range(3) for s_ in range(2)]
        stream(items, (frd(n_ + 3) if n_ + 3 < 8 else []) + pend)
        pend = final_l(n_ - 1, SB[1]) if n_ >= 1 else []
    for x in pend: A(x)
    for x in final_l(7, SB[1]): A(x)
    A("s_branch PC_DONE")
    A.label("PC_SLOW")
    A("s_cmp_lg_u32 s57, 0")
    A("s_cbranch_scc1 PC_NORESC")
    A(f"v_cmp_neq_f32 vcc, 1.0, {FAC[0]}")
    A(f"v_cmp_neq_f32 s[50:51], 1.0, {FAC[1]}")
    A("s_or_b64 s[50:51], vcc, s[50:51]")
    A("s_cbranch_scc0 PC_NORESC")
    rescaleO(own)
    A.label("PC_NORESC")
    RB = 128
    def receive(tag, fq):
        for i in range(16):
            A(f"ds_read_b128 {v(RB+4*i,4)}, {T1} offset:{i*1024}")
        A(f"v_cmp_neq_f32 vcc, 1.0, {fq[0]}")
        A(f"v_cmp_neq_f32 s[50:51], 1.0, {fq[1]}")
        A("s_or_b64 s[50:51], vcc, s[50:51]")
        A(f"s_cbranch_scc0 PC_RX_{tag}")
        A("s_waitcnt lgkmcnt(0)")
        for i in range(16):
            q = (i >> 1) & 1
            for r in range(4):
                x = f"v{RB+4*i+r}"
                A(f"v_lshlrev_b32 {T0}, 16, {x}")
                A(f"v_and_b32 {x}, 0xffff0000, {x}")
                A(f"v_mul_f32 {T0}, {T0}, {fq[q]}")
                A(f"v_mul_f32 {x}, {x}, {fq[q]}")
                A(f"v_cvt_pk_bf16_f32 {x}, {T0}, {x}")
        A("s_nop 1")
        A.label(f"PC_RX_{tag}")
        for i in range(16):
            gq, d, q, s_ = 2 + (i >> 3), (i >> 2) & 1, (i >> 1) & 1, i & 1
            A(f"s_waitcnt lgkmcnt({15-i})")
            acc = OR(gq, d, q)
            A(f"v_mfma_f32_32x32x16_bf16 {acc}, {v(SEL[s_],4)}, {v(RB+4*i,4)}, {acc}")
    A("s_cmp_lg_u32 s58, 0")
    A("s_cbranch_scc1 PC_NOP")
    A("s_xor_b32 s44, s3, 1")
    xaddr("s45", "s44")
    A(f"v_add_u32 {T1}, s45, {VL16}")
    receive("P", TM)
    A.label("PC_NOP")
    for k, fl in ((0, "s59"), (1, "s60")):
        A(f"s_cmp_eq_u32 {fl}, 0")
        A(f"s_cbranch_scc1 PC_NOD{k}")
        A("s_lshl_b32 s45, s3, 14")
        A(f"s_add_u32 s45, s45, {65536 + k*32768}")
        A(f"v_add_u32 {T1}, s45, {VL16}")
        receive(f"D{k}", [f"v{SB[0]+q*8+4+2*k}" for q in range(2)])
        A.label(f"PC_NOD{k}")
    store_addrs()
    A("s_nop 7")
    for n_ in range(8):
        for x in final_l(n_, SB[1]): A(x)
    A("s_branch PC_DONE")
    for (p, tag) in rare_blocks:
        A.label(f"PC_MASK_{tag}")
        mask_code(p)
        A(f"s_branch PC_MASKRET_{tag}")
        A.label(f"PC_RARE_{tag}")
        for q in range(2):
            xhalf(A, "v_max_f32", TM[q], T0)
            A(f"v_max_f32 {TM[q]}, {TM[q]}, {MR[q]}")
            A(f"v_sub_f32 {T1}, {MR[q]}, {TM[q]}")
            A(f"v_mul_f32 {T1}, s68, {T1}")
            A(f"v_exp_f32 {FAC[q]}, {T1}")
            A(f"v_mov_b32 {MR[q]}, {TM[q]}")
            A(f"v_mul_f32 {MC[q]}, s68, {MR[q]}")
            A(f"v_add_f32 {THR[q]}, s69, {MR[q]}")
            A(f"v_mul_f32 {LS[q]}, {LS[q]}, {FAC[q]}")
        A("s_mov_b32 s42, 1")
        A(f"s_branch PC_RARERET_{tag}")
        A.label(f"PC_PEND_{tag}")
        rescaleO()
        A("s_mov_b32 s42, 0")
        A(f"s_branch PC_PENDRET_{tag}")
    A.label("PC_DONE")
    ST(10)

def reduce4(ACC):
    o = ["v_add_u32 v4, s86, v5", "s_nop 7", "s_nop 2"]
    for b in range(4):
        for r in range(4):
            o.append(f"ds_write_b128 v4, {v(ACC+b*16+4*r,4)} offset:{b*4096 + r*1024}")
    o += ["s_waitcnt lgkmcnt(0)", "s_barrier", "s_lshl_b32 s45, s3, 12", "v_add_u32 v4, s45, v5", "v_add_u32 v28, 81920, v4"]
    for src in range(4):
        for r in range(4):
            o.append(f"ds_read_b128 {v(ACC+src*16+4*r,4)}, {'v4' if src < 2 else 'v28'} offset:{(src%2)*40960 + r*1024}")
    o.append("s_waitcnt lgkmcnt(0)")
    for r in range(0, 16, 2):
        o.append(f"v_pk_add_f32 {v(ACC+r,2)}, {v(ACC+r,2)}, {v(ACC+16+r,2)}")
        o.append(f"v_pk_add_f32 {v(ACC+32+r,2)}, {v(ACC+32+r,2)}, {v(ACC+48+r,2)}")
    for r in range(0, 16, 2):
        o.append(f"v_pk_add_f32 {v(ACC+r,2)}, {v(ACC+r,2)}, {v(ACC+32+r,2)}")
    return o

def add_resid(ACC, RES, OUT):
    o = []
    for r in range(8):
        o.append(f"v_cvt_pk_bf16_f32 v{ACC+16+r}, v{ACC+2*r}, v{ACC+2*r+1}")
    for r in range(8):
        o += [f"v_lshlrev_b32 v{ACC+2*r}, 16, v{ACC+16+r}", f"v_and_b32 v{ACC+2*r+1}, 0xffff0000, v{ACC+16+r}",
              f"v_lshlrev_b32 v{ACC+32+2*r}, 16, v{RES+r}", f"v_and_b32 v{ACC+32+2*r+1}, 0xffff0000, v{RES+r}"]
    for r in range(0, 16, 2):
        o.append(f"v_pk_add_f32 {v(ACC+r,2)}, {v(ACC+r,2)}, {v(ACC+32+r,2)}")
    for r in range(8):
        o.append(f"v_cvt_pk_bf16_f32 v{OUT+r}, v{ACC+2*r}, v{ACC+2*r+1}")
    return o

def xhalf_l(op, x, t):
    return [f"v_mov_b32 {t}, {x}", "s_nop 1", f"v_permlane32_swap_b32 {x}, {t}", f"{op} {x}, {x}, {t}"]

def mix(g, main, side, every):
    k = 0
    for i, x in enumerate(main):
        emit(g, [x])
        if (i + 1) % every == 0 and k < len(side) and not (isinstance(x, str) and x.startswith("s_nop")):
            emit(g, side[k]); k += 1
    return side[k:]

def phaseDEF(g):
    A, ST, vm = g.A, g.ST, g.vm
    vm.ops = []
    ACC = 32
    A("s_load_dwordx2 s[36:37], s[0:1], 0")
    A("s_load_dwordx2 s[38:39], s[0:1], 72")
    A("s_load_dwordx2 s[56:57], s[0:1], 40")
    A("s_load_dwordx4 s[60:63], s[0:1], 56")
    A("s_lshr_b32 s40, s2, 3")
    A("s_mul_i32 s6, s40, 9363")
    A("s_lshr_b32 s6, s6, 16")
    A("s_mul_i32 s7, s6, 7")
    A("s_sub_u32 s7, s40, s7")
    A("s_and_b32 s41, s2, 7")
    A("s_lshl_b32 s41, s41, 2")
    A("s_add_u32 s6, s6, s41")
    A("s_mul_i32 s86, s3, 40960")
    A(f"s_mul_i32 s42, s3, {1024*896}")
    A("s_lshl_b32 s44, s7, 7")
    A("s_add_u32 s42, s42, s44")
    A(f"s_mul_i32 s43, s6, {2*256*1024}")
    A("s_lshl_b32 s44, s3, 16")
    A("s_add_u32 s43, s43, s44")
    A(f"v_add_u32 v6, {256*1024}, v5")
    W = 20
    CW = int(os.environ.get("CW", "8"))
    NR = 16 + (256 - 8*CW) // 8
    wo = Stager(g, "s[32:35]", 896, "s42", "s86", [2048*i for i in range(W)], "v0", "v1", "v3", "v28", "a")
    wo.setup(("v32", "v33")); wo.setup_tr(("v32", "v33"))
    A("s_mov_b32 s58, s42"); A("s_mov_b32 s59, s43"); A("s_and_b32 s53, s2, 7")
    wo_dma0 = wo.dma
    def wo_dma(ks):
        pre = []
        if ROT and ks % 8 == 0:
            pre = [f"s_add_u32 s42, s53, {ks//8}", "s_and_b32 s42, s42, 7", f"s_mul_i32 s42, s42, {8*16*896}", "s_add_u32 s42, s42, s58"]
        return pre + wo_dma0(ks)
    wo.dma = wo_dma
    A("s_waitcnt vmcnt(0) lgkmcnt(0)")
    A("s_barrier")
    ST(23)
    srd(A, 32, 56, 4096*448*2); srd(A, 76, 60, 448*1792*2); srd(A, 80, 62, 448*1792*2)
    A("s_lshl_b32 s45, s5, 6"); A("s_lshl_b32 s44, s4, 2"); A("s_add_u32 s45, s45, s44")
    A(f"s_add_u32 s45, s45, {F_CTX*4}")
    set_flag(g, "s45")
    A("s_sub_u32 s45, 31, s5"); A("s_lshl_b32 s45, s45, 6"); A("s_add_u32 s45, s45, s44")
    A(f"s_add_u32 s45, s45, {F_CTX*4}")
    set_flag(g, "s45")
    A("s_cmp_lt_u32 s40, 28")
    A("s_cbranch_scc0 MEGA_FIN")
    for ks in range(W): emit(g, wo.dma(ks))
    ws_srd(A, 16, 54, H_OFF, H_SZ)
    srd(A, 24, 36, 2048*448*2)
    srd(A, 28, 38, 2048*448*2)
    ws_srd(A, 8, 54, HS_OFF, HS_SZ)
    A("s_lshr_b32 s46, s3, 1"); A("s_lshl_b32 s45, s7, 1"); A("s_add_u32 s46, s46, s45")
    A("s_and_b32 s47, s3, 1"); A("s_lshl_b32 s45, s6, 1"); A("s_add_u32 s47, s47, s45")
    A("v_and_b32 v7, 31, v2")
    A("v_lshrrev_b32 v8, 5, v2")
    A("s_lshl_b32 s45, s47, 5")
    A("v_add_u32 v7, s45, v7")
    A("v_mul_u32_u24 v9, 896, v7")
    A("v_lshl_add_u32 v9, v8, 3, v9")
    A("s_lshl_b32 s48, s46, 6")
    A("s_mul_i32 s49, s47, 28672")
    A("s_lshl_b32 s45, s46, 11")
    A("s_add_u32 s49, s49, s45")
    for gq in range(4):
        A(f"buffer_load_dwordx2 {v(12+2*gq,2)}, v9, s[24:27], s48 offen offset:{16*gq}")
    vm.issue(("x", 0), 4)
    def wreg(ks): return (v, 128 + 8*ks) if ks < 16 else (a, 8*CW + 8*(ks-16))
    for ks in range(NR + 2):
        if ks < NR:
            A(f"s_waitcnt vmcnt({vm.newer(lambda t: t == ('a', ks))})")
            rf, b = wreg(ks)
            emit(g, wo.tr(ks, b, b + 4, rf=rf))
        k2 = ks - 2
        if k2 >= 0:
            A(f"s_waitcnt lgkmcnt({4*min(2, NR-1-k2)})")
            if k2 + W < 64: emit(g, wo.dma(k2 + W))
    A("v_and_b32 v10, 15, v2")
    A("v_lshlrev_b32 v10, 2, v10")
    A("s_lshl_b32 s45, s6, 6")
    A(f"s_add_u32 s45, s45, {F_CTX*4}")
    ST(22)
    poll(g, 11, "v10", "s45")
    ST(11)
    def ldB(ks):
        o = (ks % 4) * 1024; sl = ks % CW
        pre = []
        if ROT and ks % 8 == 0:
            pre = [f"s_add_u32 s43, s53, {ks//8}", "s_and_b32 s43, s43, 7", "s_lshl_b32 s43, s43, 13", "s_add_u32 s43, s43, s59"]
        out = pre + [(f"buffer_load_dwordx4 {a(sl*8,4)}, v5, s[20:23], s43 offen offset:{o}{SC}", ("b", ks)),
               (f"buffer_load_dwordx4 {a(sl*8+4,4)}, v6, s[20:23], s43 offen offset:{o}{SC}", ("b", ks))]
        if ks % 4 == 3: out.append("s_add_u32 s43, s43, 4096")
        return out
    for ks in range(CW): emit(g, ldB(ks))
    WF = [96, 104, 112, 120]
    for ks in range(64):
        nxt = ks + 2
        n = vm.newer(lambda t: t == ("b", ks))
        if NR <= nxt < 64:
            n = min(n, vm.newer(lambda t: t == ("a", nxt)))
            A(f"s_waitcnt vmcnt({n})")
            emit(g, wo.tr(nxt, WF[nxt % 4], WF[nxt % 4] + 4))
        else:
            A(f"s_waitcnt vmcnt({n})")
        if ks >= NR:
            A(f"s_waitcnt lgkmcnt({4*min(2, 63-ks)})")
            rf, b = v, WF[ks % 4]
        else: rf, b = wreg(ks)
        for i in range(2):
            for q in range(2):
                acc = v(ACC + (i*2+q)*16, 16)
                A(f"v_mfma_f32_32x32x16_bf16 {acc}, {rf(b+4*i,4)}, {a((ks%CW)*8+4*q,4)}, {'0' if ks == 0 else acc}")
        if NR <= ks and ks + W < 64: emit(g, wo.dma(ks + W))
        if ks + CW < 64: emit(g, ldB(ks + CW))
    ST(12)
    HP = 20
    A("s_lshl_b32 s42, s7, 9"); A("s_lshl_b32 s45, s3, 7"); A("s_add_u32 s42, s42, s45")
    A("s_lshl_b32 s51, s7, 3"); A("s_lshl_b32 s45, s3, 1"); A("s_add_u32 s51, s51, s45")
    RS12 = [16384 + 2048*i for i in range(12)]
    w1 = Stager(g, "s[76:79]", 3584, "s42", "s86", RS12, "v0", "v1", "v3", "v8", "w1")
    w1.setup(("v96", "v97"))
    A("v_xor_b32 v8, 64, v3")
    vm.ops = []
    ep = reduce4(ACC) + add_resid(ACC, 12, HP)
    for s_ in range(2):
        ep.append((f"buffer_store_dwordx4 {v(HP+4*s_,4)}, v5, s[16:19], s49 offen offset:{1024*s_}{SC}", ("hs", 0)))
    for r in range(8):
        ep += [f"v_lshlrev_b32 v{ACC+2*r}, 16, v{HP+r}", f"v_and_b32 v{ACC+2*r+1}, 0xffff0000, v{HP+r}"]
    ep += [f"v_add_f32 v10, v{ACC}, v{ACC+1}"] + [f"v_add_f32 v10, v10, v{ACC+r}" for r in range(2, 16)]
    ep += xhalf_l("v_add_f32", "v10", "v12") + ["v_mul_f32 v13, 0x3d000000, v10", "v_mov_b32 v11, 0"]
    for r in range(16):
        ep += [f"v_sub_f32 v12, v{ACC+r}, v13", "v_fmac_f32 v11, v12, v12"]
    ep += xhalf_l("v_add_f32", "v11", "v12") + ["v_and_b32 v12, 31, v2", "v_lshlrev_b32 v12, 3, v12", "s_mul_i32 s45, s47, 3584", "s_lshl_b32 s44, s46, 8", "s_add_u32 s45, s45, s44"]
    ep.append((f"buffer_store_dwordx2 v[10:11], v12, s[8:11], s45 offen{SC}", ("hs", 0)))
    mix(g, ep, [w1.dma(ks) for ks in range(12)], 8)
    A(f"s_waitcnt vmcnt({vm.newer(lambda t: t[0] == 'hs')})")
    A("s_barrier")
    A("s_lshl_b32 s45, s6, 5"); A("s_lshl_b32 s44, s7, 2"); A("s_add_u32 s45, s45, s44")
    A(f"s_add_u32 s52, s45, {F_H1*4}")
    A(f"s_add_u32 s45, s45, {F_H*4}")
    set_flag(g, "s45")
    ST(13)
    for r in range(4): A(f"v_mov_b32 v{12+r}, 0x3f803f80")
    CS = 96
    def drain(stg, fn=None):
        for ks in range(28 + 2):
            if ks < 28:
                A(f"s_waitcnt vmcnt({vm.newer(lambda t: t == (stg.tag, ks))})")
                emit(g, stg.tr(ks, 4*ks, 4*(28+ks), rf=a))
            k2 = ks - 2
            if k2 >= 0:
                A(f"s_waitcnt lgkmcnt({4*min(2, 27-k2)})")
                if fn: fn(k2)
                if k2 + 12 < 28: emit(g, stg.dma(k2 + 12))
    def cs_mfma(ks):
        for i in range(2):
            acc = v(CS + i*16, 16)
            A(f"v_mfma_f32_32x32x16_bf16 {acc}, {a(4*(i*28+ks),4)}, v[12:15], {'0' if ks == 0 else acc}")
    drain(w1, cs_mfma)
    A("v_and_b32 v10, 7, v2")
    A("v_min_u32 v10, 6, v10")
    A("v_lshlrev_b32 v10, 2, v10")
    A("s_lshl_b32 s45, s6, 5")
    A(f"s_add_u32 s45, s45, {F_H*4}")
    poll(g, 11, "v10", "s45")
    ST(14)
    A("s_mul_i32 s42, s6, 57344")
    A("s_mul_i32 s43, s3, 14336")
    A("s_add_u32 s42, s42, s43")
    for i in range(14):
        if i % 4 == 0:
            A(f"s_add_u32 m0, s86, {i*1024}")
            A(f"s_add_u32 s44, s42, {i*1024}")
        A(f"buffer_load_dwordx4 v5, s[16:19], s44 offen offset:{(i%4)*1024}{SC} lds")
    A("v_and_b32 v10, 31, v2")
    A("v_lshlrev_b32 v10, 3, v10")
    A("s_mul_i32 s45, s6, 7168")
    A("s_add_u32 s44, s45, 3584")
    STB = [128, 156]
    for q in range(2):
        for i in range(14):
            A(f"buffer_load_dwordx2 {v(STB[q]+2*i,2)}, v10, s[8:11], {'s44' if q else 's45'} offen offset:{256*i}{SC}")
    A(f"s_mul_i32 s42, s3, {448*896}")
    A("s_lshl_b32 s44, s7, 7")
    A("s_add_u32 s42, s42, s44")
    w2 = Stager(g, "s[80:83]", 896, "s42", "s86", RS12, "v0", "v1", "v3", "v8", "w2")
    w2.setup(("v192", "v193"))
    A("v_add_u32 v6, 81920, v5")
    vm.ops = [("st", 0)] * 28
    A("s_waitcnt vmcnt(28)")
    A("s_barrier")
    MB_ = ["v16", "v17"]; RS = ["v18", "v19"]
    stats = [lambda: A(f"s_waitcnt vmcnt({vm.newer(lambda t: t[0] == 'st')})")]
    for q in range(2):
        b = STB[q]
        stats += [f"v_add_f32 v10, v{b}, v{b+2}"] + [f"v_add_f32 v10, v10, v{b+2*i}" for i in range(2, 14)]
        stats += ["v_mul_f32 v10, 0x3b124925, v10", f"v_add_f32 v11, v{b+1}, v{b+3}"] + [f"v_add_f32 v11, v11, v{b+2*i+1}" for i in range(2, 14)]
        stats += ["v_mov_b32 v4, 0"]
        for i in range(14):
            stats += [f"v_mul_f32 v{b+2*i}, 0x3d000000, v{b+2*i}", f"v_sub_f32 v{b+2*i}, v{b+2*i}, v10", f"v_fmac_f32 v4, v{b+2*i}, v{b+2*i}"]
        stats += ["v_mul_f32 v4, 0x42000000, v4", "v_add_f32 v11, v11, v4", "v_mul_f32 v11, 0x3b124925, v11"]
        stats += bf16_round_l(MB_[q], "v10") + bf16_round_l("v11", "v11") + ["v_add_f32 v11, 0x3727c5ac, v11"] + bf16_round_l("v11", "v11")
        stats += ["v_sqrt_f32 v11, v11", "s_nop 0"] + bf16_round_l("v11", "v11") + [f"v_rcp_f32 {RS[q]}, v11", "s_nop 0", f"v_mul_f32 {MB_[q]}, {MB_[q]}, {RS[q]}"]
    XF = [192, 200, 208, 216]
    def xr(ks):
        out = []
        for q in range(2):
            f = q*28 + ks; src = f // 14
            out.append(f"ds_read_b128 {v(XF[ks%4]+4*q,4)}, {'v5' if src < 2 else 'v6'} offset:{(src%2)*40960 + (f%14)*1024}")
        return out
    for ks in range(3): emit(g, xr(ks))
    for ks in range(28):
        sched = {}
        if ks + 3 < 28: spread(sched, xr(ks + 3), 0, 1)
        if ks < 12: sched.setdefault(2, []).extend(w2.dma(ks))
        A(f"s_waitcnt lgkmcnt({2*min(2, 27-ks)})")
        ms = []
        for i in range(2):
            for q in range(2):
                acc = v(ACC + (i*2+q)*16, 16)
                ms.append(f"v_mfma_f32_32x32x16_bf16 {acc}, {a(4*(i*28+ks),4)}, {v(XF[ks%4]+4*q,4)}, {'0' if ks == 0 else acc}")
        run_sched(A, ms, sched, stats if ks >= 4 else [], 4, vm)
    assert not stats
    ST(15)
    ws_srd(A, 20, 54, H1_OFF, H1_SZ)
    A(f"s_mul_i32 s44, s6, {2*112*1024}")
    A("s_lshl_b32 s45, s51, 11")
    A("s_add_u32 s44, s44, s45")
    A(f"s_add_u32 s45, s44, {112*1024}")
    A(f"s_mov_b32 s50, {f32bits(-1.4426950408889634):#x}")
    A("s_mov_b32 s51, s50")
    A("v_mov_b32 v10, 1.0"); A("v_mov_b32 v11, 1.0")
    T = 128
    ep = []
    for i in range(2):
        for q in range(2):
            b = ACC + (i*2+q)*16; cs = CS + i*16
            mbp = "v[16:17]"; rsp = "v[18:19]"; sel = f"op_sel:[0,{q}] op_sel_hi:[1,{q}]"
            for r in range(0, 16, 2): ep.append(f"v_pk_mul_f32 {v(T+r,2)}, {v(cs+r,2)}, {mbp} {sel}")
            for r in range(0, 16, 2): ep.append(f"v_pk_fma_f32 {v(b+r,2)}, {v(b+r,2)}, {rsp}, {v(T+r,2)} op_sel:[0,{q},0] op_sel_hi:[1,{q},1] neg_lo:[0,0,1] neg_hi:[0,0,1]")
            for r in range(0, 16, 2): ep.append(f"v_pk_mul_f32 {v(T+r,2)}, {v(b+r,2)}, s[50:51]")
            for r in range(16): ep.append(f"v_exp_f32 v{T+r}, v{T+r}")
            for r in range(0, 16, 2): ep.append(f"v_pk_add_f32 {v(T+r,2)}, {v(T+r,2)}, v[10:11]")
            for r in range(16): ep.append(f"v_rcp_f32 v{T+r}, v{T+r}")
            for r in range(0, 16, 2): ep.append(f"v_pk_mul_f32 {v(b+r,2)}, {v(b+r,2)}, {v(T+r,2)}")
            for r in range(8): ep.append(f"v_cvt_pk_bf16_f32 v{b+r}, v{b+2*r}, v{b+2*r+1}")
            for s_ in range(2):
                ep.append((f"buffer_store_dwordx4 {v(b+4*s_,4)}, v5, s[20:23], {'s45' if q else 's44'} offen offset:{(2*i+s_)*1024}{SC}", ("h1s", 0)))
    grp = []
    for ks in range(28 + 2):
        it = []
        if ks < 28:
            it.append(lambda ks=ks: A(f"s_waitcnt vmcnt({vm.newer(lambda t: t == ('w2', ks))})"))
            it += w2.tr(ks, 4*ks, 4*(28+ks), rf=a)
        k2 = ks - 2
        if k2 >= 0 and k2 + 12 < 28:
            it.append(f"s_waitcnt lgkmcnt({4*min(2, 27-k2)})")
            it += w2.dma(k2 + 12)
        grp.append(it)
    grp = mix(g, ep, grp, W2EV)
    A(f"s_waitcnt vmcnt({vm.newer(lambda t: t[0] == 'h1s')})")
    A("s_barrier")
    set_flag(g, "s52")
    ST(16)
    for it in grp: emit(g, it)
    A("v_and_b32 v10, 7, v2")
    A("v_min_u32 v10, 6, v10")
    A("v_lshlrev_b32 v10, 2, v10")
    A("s_lshl_b32 s45, s6, 5")
    A(f"s_add_u32 s45, s45, {F_H1*4}")
    poll(g, 11, "v10", "s45")
    ST(17)
    A(f"s_mul_i32 s42, s6, {2*112*1024}")
    A("s_mul_i32 s43, s3, 28672")
    A("s_add_u32 s42, s42, s43")
    A(f"v_add_u32 v6, {112*1024}, v5")
    def ldH(ks):
        sl = ks % 14
        out = [(f"buffer_load_dwordx4 {v(96+sl*8,4)}, v5, s[20:23], s42 offen offset:{(ks%4)*1024}{SC}", ("h", ks)),
               (f"buffer_load_dwordx4 {v(96+sl*8+4,4)}, v6, s[20:23], s42 offen offset:{(ks%4)*1024}{SC}", ("h", ks))]
        if ks % 4 == 3: out.append("s_add_u32 s42, s42, 4096")
        return out
    for ks in range(14): emit(g, ldH(ks))
    A("s_waitcnt lgkmcnt(0)")
    for ks in range(28):
        A(f"s_waitcnt vmcnt({vm.newer(lambda t: t == ('h', ks))})")
        for i in range(2):
            for q in range(2):
                acc = v(ACC + (i*2+q)*16, 16)
                A(f"v_mfma_f32_32x32x16_bf16 {acc}, {a(4*(i*28+ks),4)}, {v(96+(ks%14)*8+4*q,4)}, {'0' if ks == 0 else acc}")
        if ks + 14 < 28: emit(g, ldH(ks + 14))
    ST(18)
    emit(g, reduce4(ACC) + add_resid(ACC, HP, 12))
    for gq in range(4):
        A(f"buffer_store_dwordx2 {v(12+2*gq,2)}, v9, s[28:31], s48 offen offset:{16*gq}")

def gen_mega(stamps=False):
    g = G()
    g.A = A = Asm()
    name = "mega_kernel"
    kernel_begin(A, name)
    A("s_cmp_ge_u32 s2, 256")
    A("s_cbranch_scc0 MEGA_GO")
    A("s_endpgm")
    A.label("MEGA_GO")
    g.ST = Stamps(A, stamps)
    g.ST.tmp = "s[100:101]"
    g.vm = VM()
    g.ST2 = Stamps(A, True, "v63") if (stamps and os.environ.get("STG")) else None
    if stamps:
        A("v_mov_b32 v31, 0")
        g.ST(0); g.ST(20, real=True)
    phaseA(g)
    phaseC(g)
    phaseDEF(g)
    A.label("MEGA_FIN")
    if stamps:
        A("s_waitcnt vmcnt(0)")
        g.ST(19); g.ST(21, real=True)
        if os.environ.get("DBGOUT"):
            A("s_cmp_lg_u32 s2, 9"); A("s_cbranch_scc1 NODBG"); A("s_cmp_lg_u32 s3, 0"); A("s_cbranch_scc1 NODBG")
            A("v_readlane_b32 s45, v31, 0")
            A("s_nop 1")
            A("v_subrev_u32 v31, s45, v31")
            A("v_subrev_u32 v1, 5, v2")
            A("v_cmp_gt_u32 vcc, 15, v1")
            A("v_lshlrev_b32 v1, 2, v1")
            A("s_and_saveexec_b64 s[94:95], vcc")
            A("global_store_dword v1, v31, s[92:93] offset:4")
            A("s_mov_b64 exec, s[94:95]")
            A.label("NODBG")
        else:
            g.ST.flush(54, "s3", "v2")
    A.label("MEGA_END")
    A("s_endpgm")
    return name, A.text(), kernel_desc(name, 512, 102, 256), (256, 256, 163840)
```

```python
import sys, os
from k1b import gen_k1
from k2 import gen_k2
from k3 import gen_proj, gen_k4
import re
def compact(t):
    lines = []
    for ln in t.split("\n"):
        if ln.startswith("    "): ln = ln[4:]
        ln = ln.replace(" offset:0 ", " ")
        if ln.endswith(" offset:0"): ln = ln[:-9]
        lines.append(ln)
    return "\n".join(lines)
def build(kernels, path):
    hdr = open("sequential_preLN__compressed_kv_cla__dense_activation_silu__prompt.s.ref").read().split("; Override launch")[0]
    hdr += "".join(f"; @launch kernel={n} grid=({g},1,1) block=({b},1,1) lds={l}\n" for n, _, _, (g, b, l) in kernels)
    out = hdr + '.amdgcn_target "amdgcn-amd-amdhsa--gfx950"\n' + "".join(t for _, t, _, _ in kernels) + "".join(d for _, _, d, _ in kernels)
    out = compact(out)
    if os.environ.get("ALIGN", "1") == "1":
        from align import align_text
        out, n = align_text(out)
        print("aligned runs:", n)
    open(path, "w").write(out)
if __name__ == "__main__" and len(sys.argv) > 1 and sys.argv[1].startswith('m'):
    from mega import gen_mega
    st = sys.argv[1] == 'ms'
    build([gen_mega(stamps=st)], "dev.s" if st else "sequential_preLN__compressed_kv_cla__dense_activation_silu__prompt.s")
elif __name__ == "__main__":
    st = int(sys.argv[1]) if len(sys.argv) > 1 else 0
    build([gen_k1(stamps=st==1), gen_k2(stamps=st==2), gen_proj(3, stamps=st==3), gen_k4(stamps=st==4), gen_proj(5, stamps=st==5)], "dev.s" if st else "sequential_preLN__compressed_kv_cla__dense_activation_silu__prompt.s")
```

```python
from common import *
from k1b import rl_setup, rl_reads
import os
CSC = math.log2(math.e) / 16.0
TTHR = 8.0
BIG = 2.0 ** 100
SC = " sc1"
SPIN = 1 << 16
G0 = int(os.environ.get('G0', '12'))
ROT = int(os.environ.get('ROT', '1'))
WOT = int(os.environ.get('WOT', '0'))
TQ = int(os.environ.get('TQ', '2'))
TD = int(os.environ.get('TD', '1'))
NOSIDE = int(os.environ.get('NOSIDE', '0'))
TR1 = int(os.environ.get('TR1', '1'))
TR2 = int(os.environ.get('TR2', '8'))
FSA = int(os.environ.get('FSA', '16'))
LNS = int(os.environ.get('LNS', '5'))
CUT = int(os.environ.get('CUT', '46'))
W1EV = int(os.environ.get('W1EV', '6'))
W2EV = int(os.environ.get('W2EV', '40'))
TW = eval(os.environ.get('TW', '(0, 3, 6, 9, 13, 17)'))
TA = int(os.environ.get('TA', '7'))
TOUCH = int(os.environ.get('TOUCH', '1'))

class G:
    pass

def emit(g, items):
    for x in items:
        if isinstance(x, tuple): g.A(x[0]); g.vm.issue(x[1])
        elif callable(x): x()
        else: g.A(x)

def poll(g, vdst, voff, soff, n4=False, name=None):
    A = g.A
    L = A.newlabel("POLL")
    A(f"s_mov_b32 s87, 0")
    A.label(L)
    if n4:
        A(f"buffer_load_dwordx4 {v(vdst,4)}, {voff}, s[88:91], {soff} offen sc1")
        A("s_waitcnt vmcnt(0)")
        A(f"v_and_b32 v{vdst}, v{vdst}, v{vdst+1}")
        A(f"v_and_b32 v{vdst+2}, v{vdst+2}, v{vdst+3}")
        A(f"v_and_b32 v{vdst}, v{vdst}, v{vdst+2}")
    else:
        A(f"buffer_load_dword v{vdst}, {voff}, s[88:91], {soff} offen sc1")
        A("s_waitcnt vmcnt(0)")
    A(f"v_cmp_ne_u32 vcc, 1, v{vdst}")
    A(f"s_cbranch_vccz {L}_OK")
    A("s_sleep 1")
    A("s_add_u32 s87, s87, 1")
    A(f"s_cmp_lt_u32 s87, {SPIN}")
    A(f"s_cbranch_scc1 {L}")
    A.label(L + "_OK")
    g.vm.ops = []

def set_flag(g, soff_bytes):
    A = g.A
    L = A.newlabel("SETF")
    A("s_cmp_lg_u32 s3, 0")
    A(f"s_cbranch_scc1 {L}")
    A("s_mov_b64 exec, 1")
    A(f"buffer_store_dword v30, v29, s[88:91], {soff_bytes} offen sc1")
    A("s_mov_b64 exec, -1")
    A.label(L)


class Stager:
    def __init__(self, g, srd, stride, s_off, s_ring, slots, vA, vB, vT0, vT1, tag):
        self.__dict__.update(locals())
    def setup(self, tmp=("v60", "v61")):
        A = self.g.A; t0, t1 = tmp
        A(f"v_lshrrev_b32 {t0}, 3, v2")
        A(f"v_mul_u32_u24 {self.vA}, {self.stride}, {t0}")
        A(f"v_bfe_u32 {t0}, v2, 4, 1")
        A(f"v_lshlrev_b32 {t0}, 2, {t0}")
        A(f"v_and_b32 {t1}, 7, v2")
        A(f"v_xor_b32 {t0}, {t0}, {t1}")
        A(f"v_lshl_add_u32 {self.vA}, {t0}, 4, {self.vA}")
        A(f"v_add_u32 {self.vB}, {8*self.stride - 1024}, {self.vA}")
    def setup_tr(self, tmp=("v60", "v61")):
        A = self.g.A; t0, t1 = tmp
        A(f"v_lshrrev_b32 {t0}, 5, v2")
        A(f"v_bfe_u32 {t1}, v2, 2, 2")
        A(f"v_lshl_add_u32 {t0}, {t0}, 2, {t1}")
        A(f"v_lshlrev_b32 {t0}, 7, {t0}")
        A(f"v_bfe_u32 {t1}, v2, 3, 1")
        A(f"v_lshl_add_u32 {t0}, {t1}, 6, {t0}")
        A(f"v_bfe_u32 {t1}, v2, 4, 1")
        A(f"v_lshl_add_u32 {t0}, {t1}, 5, {t0}")
        A(f"v_and_b32 {t1}, 3, v2")
        A(f"v_lshl_add_u32 {t0}, {t1}, 3, {t0}")
        A(f"v_add_u32 {self.vT0}, {self.s_ring}, {t0}")
        A(f"v_xor_b32 {self.vT1}, 64, {self.vT0}")
    def dma(self, ks):
        o = self.slots[ks % len(self.slots)]
        return [f"s_add_u32 m0, {self.s_ring}, {o}", "s_nop 0",
                (f"buffer_load_dwordx4 {self.vA}, {self.srd}, {self.s_off} offen lds", (self.tag, ks)),
                (f"buffer_load_dwordx4 {self.vB}, {self.srd}, {self.s_off} offen offset:1024 lds", (self.tag, ks)),
                f"s_add_u32 {self.s_off}, {self.s_off}, {16*self.stride}"]
    def tr(self, ks, d0, d1, rf=v):
        o = self.slots[ks % len(self.slots)]
        return [f"ds_read_b64_tr_b16 {rf(d0,2)}, {self.vT0} offset:{o}", f"ds_read_b64_tr_b16 {rf(d0+2,2)}, {self.vT0} offset:{o+1024}",
                f"ds_read_b64_tr_b16 {rf(d1,2)}, {self.vT1} offset:{o}", f"ds_read_b64_tr_b16 {rf(d1+2,2)}, {self.vT1} offset:{o+1024}"]

def phaseA(g):
    A, ST, vm = g.A, g.ST, g.vm
    A("s_load_dwordx16 s[36:51], s[0:1], 0")
    A("s_load_dwordx2 s[52:53], s[0:1], 64")
    A("s_load_dwordx4 s[92:95], s[0:1], 80")
    A("v_lshrrev_b32 v1, 6, v0")
    A("v_and_b32 v2, 63, v0")
    A("v_readfirstlane_b32 s3, v1")
    A("s_and_b32 s4, s2, 7")
    A("s_lshr_b32 s5, s2, 3")
    A("s_and_b32 s6, s5, 7")
    A("s_lshr_b32 s5, s5, 3")
    A("s_lshr_b32 s7, s5, 1")
    A("s_and_b32 s5, s5, 1")
    A("s_lshl_b32 s4, s4, 1")
    A("s_add_u32 s4, s4, s5")
    A("v_lshrrev_b32 v3, 3, v2")
    A("v_lshlrev_b32 v3, 11, v3")
    A("v_and_b32 v4, 7, v2")
    A("v_bfe_u32 v8, v2, 4, 2")
    A("v_xor_b32 v4, v4, v8")
    A("v_lshl_add_u32 v3, v4, 4, v3")
    A("s_lshl_b32 s56, s6, 19")
    A("s_lshl_b32 s57, s3, 17")
    A("s_add_u32 s56, s56, s57")
    A("v_add_u32 v8, s56, v3")
    A("v_xor_b32 v9, 64, v8")
    A("v_lshrrev_b32 v3, 5, v2")
    A("v_and_b32 v4, 31, v2")
    A("s_and_b32 s57, s3, 1")
    A("v_xor_b32 v4, s57, v4")
    A("v_lshlrev_b32 v5, 2, v3")
    A("v_xor_b32 v4, v4, v5")
    A("v_lshlrev_b32 v4, 4, v4")
    A("v_lshl_add_u32 v4, v3, 13, v4")
    A("s_lshl_b32 s56, s4, 9")
    A("s_lshl_b32 s57, s3, 16")
    A("s_add_u32 s56, s56, s57")
    A("v_add_u32 v12, s56, v4")
    A("v_xor_b32 v13, 128, v12")
    A(f"v_add_u32 v13, {16384-1024}, v13")
    A(f"v_add_u32 v14, {2*(16384-1024)}, v12")
    A(f"v_add_u32 v15, {2*(16384-1024)}, v13")
    A("s_lshl_b32 s64, s3, 12")
    A("s_mov_b32 s65, 0")
    A("s_mov_b32 s66, 0")
    A("s_waitcnt lgkmcnt(0)")
    A("s_mov_b32 s54, s94"); A("s_mov_b32 s55, s95")
    srd(A, 8, 38, 2048*1024*2)
    A("s_cmp_eq_u32 s7, 0")
    A("s_cselect_b32 s12, s42, s44")
    A("s_cselect_b32 s13, s43, s45")
    A("s_and_b32 s13, s13, 0xffff")
    A(f"s_mov_b32 s14, {1024*4096*2:#x}")
    A("s_mov_b32 s15, 0x00020000")
    def dmaA(P):
        out = []
        for i in range(8):
            if i % 4 == 0: out.append(f"s_add_u32 m0, s63, {(P%2)*32768 + i*1024}")
            out.append(f"s_add_u32 s62, s65, {i*16384 - (i%4)*1024}")
            out.append((f"buffer_load_dwordx4 v{8+((i>>1)&1)}, s[8:11], s62 offen offset:{1024*(i%4)} lds", ("A", P)))
        out.append("s_add_u32 s65, s65, 128")
        return out
    def dma(stage):
        slot = stage % 4
        out = [f"s_add_u32 m0, s64, {65536+slot*16384}", "s_nop 0"]
        for i in range(4):
            out.append((f"buffer_load_dwordx4 v{12+i}, s[12:15], s66 offen offset:{1024*i} lds", ("d", stage)))
        out.append("s_add_u32 s66, s66, 262144")
        return out
    A("s_lshl_b32 s63, s3, 13")
    emit(g, dma(0) + dmaA(0) + dma(1))
    ST(1)
    A("v_bfe_u32 v240, v2, 3, 1")
    A("v_lshlrev_b32 v240, 11, v240")
    A("v_and_b32 v241, 7, v2")
    A("v_lshl_add_u32 v240, v241, 7, v240")
    A("s_lshl_b32 s56, s2, 14")
    A("s_lshl_b32 s57, s3, 12")
    A("s_add_u32 s56, s56, s57")
    A("v_add_u32 v241, s56, v240")
    A("s_cmp_lt_u32 s2, 128")
    A("s_cselect_b32 s98, s42, s44")
    A("s_cselect_b32 s99, s43, s45")
    A("s_and_b32 s56, s2, 127")
    A("s_lshl_b32 s56, s56, 13")
    A("s_lshl_b32 s57, s3, 11")
    A("s_add_u32 s56, s56, s57")
    A("v_and_b32 v242, 15, v2")
    A("v_lshlrev_b32 v242, 7, v242")
    A("v_add_u32 v242, s56, v242")
    def touchA(i): return [(f"buffer_load_dword v244, v241, s[8:11], 0 offen offset:{1024*i}", "t")]
    def touchW(): return ["v_add_u32 v242, 0x100000, v242", ("global_load_dword v245, v242, s[98:99]", "t")]
    if TOUCH:
        emit(g, touchA(0) + touchW())
        A("s_getpc_b64 s[56:57]")
        A.label("PCREF")
        A("s_lshr_b32 s58, s2, 3")
        A("s_lshl_b32 s58, s58, 2")
        A("s_add_u32 s58, s58, s3")
        A("s_mul_i32 s58, s58, 1280")
        A("v_min_u32 v249, 9, v2")
        A("v_lshlrev_b32 v249, 7, v249")
        A("v_add_u32 v249, s58, v249")
        A("v_min_u32 v249, (MEGA_END - PCREF), v249")
        emit(g, [("global_load_dword v250, v249, s[56:57]", "t")])
    ws_srd(A, 88, 54, FLAG_OFF, FLAG_SZ)
    A("v_mov_b32 v29, 0")
    A("v_mov_b32 v30, 1")
    A("s_cmp_lg_u32 s2, 0")
    A("s_cbranch_scc1 NOZERO")
    A("v_lshlrev_b32 v3, 5, v0")
    for r in range(4): A(f"v_mov_b32 v{32+r}, 0")
    A("buffer_store_dwordx4 v[32:35], v3, s[88:91], 0 offen sc1")
    A("buffer_store_dwordx4 v[32:35], v3, s[88:91], 0 offen offset:16 sc1")
    A.label("NOZERO")
    ws_srd(A, 16, 54, KV_OFF, KV_SZ)
    srd(A, 20, 36, 2048*448*2)
    ws_srd(A, 24, 54, XN_OFF, XN_SZ)
    A("v_and_b32 v3, 31, v2")
    A("v_lshrrev_b32 v4, 5, v2")
    A("s_lshl_b32 s56, s2, 3")
    A("s_lshl_b32 s57, s3, 1")
    A("s_add_u32 s56, s56, s57")
    A("v_add_u32 v4, s56, v4")
    A("v_mul_u32_u24 v25, 896, v4")
    A("v_lshl_add_u32 v25, v3, 5, v25")
    A("v_and_b32 v5, 7, v4")
    A("v_lshlrev_b32 v26, 8, v3")
    A("v_lshl_add_u32 v26, v5, 4, v26")
    A("v_add_u32 v26, 0x24000, v26")
    A("s_mul_i32 s56, s3, 112")
    A("v_add_u32 v251, s56, v2")
    A("v_lshlrev_b32 v252, 4, v251")
    A("v_add_u32 v252, 0x24000, v252")
    A("v_lshrrev_b32 v253, 3, v251")
    A("v_lshlrev_b32 v253, 9, v253")
    A("v_and_b32 v251, 7, v251")
    A("v_lshl_add_u32 v253, v251, 4, v253")
    A("s_lshr_b32 s56, s2, 2")
    A("s_mul_i32 s56, s56, 28672")
    A("s_and_b32 s57, s2, 3")
    A("s_lshl_b32 s57, s57, 7")
    A("s_add_u32 s56, s56, s57")
    A("v_add_u32 v253, s56, v253")
    A("v_mov_b32 v5, 0x7ffffff0")
    A("v_cmp_gt_u32 vcc, 56, v2")
    A("s_nop 1")
    A("v_cndmask_b32 v253, v5, v253, vcc")
    A("v_cmp_gt_u32 vcc, 28, v3")
    A("v_mov_b32 v5, 0x7ffffff0")
    A("s_nop 0")
    A("v_cndmask_b32 v25, v5, v25, vcc")
    A("v_cndmask_b32 v7, 0, 1.0, vcc")
    A("s_and_b32 s67, s3, 1")
    A("s_lshr_b32 s68, s3, 1")
    A("v_and_b32 v3, 15, v2")
    A("v_lshrrev_b32 v4, 4, v2")
    A("v_lshrrev_b32 v5, 3, v3")
    A("v_and_b32 v6, 7, v3")
    A("v_lshl_add_u32 v6, v5, 4, v6")
    A("v_lshlrev_b32 v5, 2, v5")
    A("v_bfe_u32 v16, v3, 1, 2")
    A("v_or_b32 v5, v5, v16")
    A("v_xor_b32 v5, v4, v5")
    A("v_lshlrev_b32 v16, 7, v6")
    A("v_lshl_add_u32 v16, v5, 4, v16")
    A("s_lshl_b32 s56, s67, 14")
    A("v_add_u32 v16, s56, v16")
    A("v_xor_b32 v10, 64, v16")
    A("v_lshlrev_b32 v6, 4, v6")
    A("v_lshrrev_b32 v5, 1, v4")
    A("v_lshl_add_u32 v6, v5, 10, v6")
    A("v_and_b32 v5, 1, v4")
    A("v_lshl_add_u32 v6, v5, 9, v6")
    A("v_lshrrev_b32 v60, 2, v3")
    A("v_lshl_add_u32 v61, v4, 3, v60")
    A("v_lshlrev_b32 v61, 9, v61")
    A("v_and_b32 v62, 1, v3")
    A("v_lshl_add_u32 v61, v62, 3, v61")
    A("s_lshl_b32 s56, s68, 8")
    A("s_add_u32 s56, s56, 65536")
    A("v_add_u32 v61, s56, v61")
    A("v_lshl_or_b32 v60, v60, 2, v5")
    A("v_and_b32 v62, 2, v3")
    A("v_xor_b32 v60, v60, v62")
    for j in range(8):
        A(f"v_xor_b32 v62, {4*(j>>1)+(j&1)}, v60")
        A(f"v_lshl_add_u32 v{17+j}, v62, 4, v61")
    A("v_lshlrev_b32 v5, 4, v2")
    A("s_and_b32 s56, s2, 7"); A("s_lshr_b32 s57, s2, 7"); A("s_lshl_b32 s56, s56, 1"); A("s_add_u32 s85, s56, s57")
    A("s_lshl_b32 s60, s85, 9"); A("s_lshl_b32 s56, s3, 7"); A("s_add_u32 s60, s60, s56")
    A("s_lshl_b32 s86, s3, 12")
    A("s_add_u32 s86, s86, 114688")
    srd(A, 28, 40, 448*4096*2)
    g.wq = Stager(g, "s[28:31]", 8192, "s60", "s86", [16384, 18432, 32768, 34816, 0, 2048], "v27", "v28", "v3", "v4", "w")
    g.wq.setup(); g.wq.setup_tr()
    A("s_lshl_b32 s69, s2, 2")
    A("s_add_u32 s69, s69, s3")
    A("s_lshl_b32 s70, s69, 12")
    A("v_and_b32 v246, 15, v2")
    A("v_lshlrev_b32 v246, 7, v246")
    A("v_add_u32 v247, s70, v246")
    A("s_lshl_b32 s70, s69, 11")
    A("v_add_u32 v246, s70, v246")
    srd(A, 32, 46, 4096*448*2); srd(A, 76, 50, 448*1792*2); srd(A, 80, 52, 448*1792*2)
    TWT = {TQ: ("v247", 28, 0), TQ + 2: ("v247", 28, 2048), 19: ("v247", 32, 0), 21: ("v247", 32, 2048), 23: ("v246", 76, 0), 25: ("v246", 80, 0)}
    ln = [lambda: A(f"s_waitcnt vmcnt({vm.newer(lambda t: t == 'ln')})")]
    for i in range(8):
        ln += [f"v_lshlrev_b32 v{40+2*i}, 16, v{32+i}", f"v_and_b32 v{41+2*i}, 0xffff0000, v{32+i}"]
    ln += ["v_add_f32 v56, v40, v41"] + [f"v_add_f32 v56, v56, v{40+i}" for i in range(2, 16)]
    ln += half_sum_l("v56", "v57") + ["v_mul_f32 v56, 0x3b124925, v56", "v_mov_b32 v58, 0"]
    for i in range(16):
        ln += [f"v_sub_f32 v57, v{40+i}, v56", "v_fmac_f32 v58, v57, v57"]
    ln += ["v_mul_f32 v58, v58, v7"] + half_sum_l("v58", "v57") + ["v_mul_f32 v58, 0x3b124925, v58"]
    ln += bf16_round_l("v56", "v56") + bf16_round_l("v58", "v58") + ["v_add_f32 v58, 0x3727c5ac, v58"] + bf16_round_l("v58", "v58")
    ln += ["v_sqrt_f32 v58, v58", "s_nop 0"] + bf16_round_l("v58", "v58") + ["v_rcp_f32 v58, v58"]
    ln += [f"v_sub_f32 v{40+i}, v{40+i}, v56" for i in range(16)]
    ln += [f"v_cvt_pk_bf16_f32 v{32+i}, v{40+2*i}, v{41+2*i}" for i in range(8)]
    for i in range(8):
        ln += [f"v_lshlrev_b32 v{40+2*i}, 16, v{32+i}", f"v_and_b32 v{41+2*i}, 0xffff0000, v{32+i}"]
    ln += [f"v_mul_f32 v{40+i}, v{40+i}, v58" for i in range(16)]
    ln += [f"v_cvt_pk_bf16_f32 v{32+[0,1,4,5,2,3,6,7][i]}, v{40+2*i}, v{41+2*i}" for i in range(8)]
    ln += ["ds_write_b128 v26, v[32:35]", "ds_write_b128 v26, v[36:39] offset:128"]
    ln2 = ["ds_read_b128 v[32:35], v252", "ds_read_b128 v[36:39], v252 offset:896"]
    ln3 = [(f"buffer_store_dwordx4 v[32:35], v253, s[24:27], 0 offen{SC}", "sA"), (f"buffer_store_dwordx4 v[36:39], v253, s[24:27], 0 offen offset:3584{SC}", "sA")]
    SETS = [64, 128]
    def reads(stage, st_):
        slot = stage % 4
        b = SETS[st_]
        ra = [f"ds_read_b128 {v(b+4*i,4)}, {'v10' if stage & 1 else 'v16'} offset:{((stage>>1)&1)*32768 + (32*(i>>1)+8*(i&1))*128}" for i in range(8)]
        rw = [[f"ds_read_b64_tr_b16 {v(b+32+4*j+2*t,2)}, v{17+j} offset:{slot*16384 + 2048*t}" for t in range(2)] for j in range(8)]
        out = []
        for i in range(8): out += [ra[i]] + rw[i]
        return out
    def mf(typ, i, j, st_, first=False):
        b = SETS[st_]
        acc = a((i*8+j)*4, 4)
        c = "0" if first else acc
        ca, w_ = v(b+4*i, 4), v(b+32+4*j, 4)
        return f"v_mfma_f32_16x16x32_bf16 {acc}, {w_}, {ca}, {c}" if typ == 0 else f"v_mfma_f32_16x16x32_bf16 {acc}, {ca}, {w_}, {c}"
    A("s_lshr_b32 s56, s2, 3")
    A("s_and_b32 s5, s56, 15")
    A("s_lshl_b32 s57, s5, 1")
    A("s_add_u32 s58, s57, s3")
    A("s_sub_u32 s59, 60, s57")
    A("s_add_u32 s59, s59, s3")
    A("s_cmp_lt_u32 s3, 2")
    A("s_cselect_b32 s58, s58, s59")
    A("s_mul_i32 s69, s58, 28672")
    XCH = [65536, 81920, 0, 16384, 98304, 32768, 49152]
    g.XCH = XCH
    def xdma(c):
        out = [f"s_add_u32 m0, s64, {XCH[c]}", f"s_add_u32 s56, s69, {c*4096}"]
        out += [(f"buffer_load_dwordx4 v5, s[24:27], s56 offen offset:{1024*i}{SC} lds", ("x", c)) for i in range(4)]
        return out
    vm0 = list(vm.ops)
    A("s_cmp_eq_u32 s7, 1")
    A("s_cbranch_scc1 PA_V")
    for typ in (0, 1):
        if typ: A.label("PA_V")
        vm.ops = list(vm0)
        A(f"s_waitcnt vmcnt({vm.newer(lambda t: t == ('A', 0))})")
        A("s_barrier")
        ST(2)
        emit(g, reads(0, 0))
        A("s_waitcnt lgkmcnt(0)")
        carry = []
        for s_ in range(32):
            sched = {}
            g0 = 0
            if s_ == 0:
                spread(sched, dma(2) + dmaA(1) + dma(3), 0, G0 - 1); g0 = G0
            def w(s_=s_):
                n = min(vm.newer(lambda t: t == ("d", s_ + 1)), vm.newer(lambda t: t == ("A", (s_ + 1) // 2)))
                if s_ == FSA: n = min(n, vm.newer(lambda t: t == "sA"))
                A(f"s_waitcnt vmcnt({n})")
            if s_ < 31:
                sched.setdefault(g0, []).extend([w, "s_barrier"])
                spread(sched, reads(s_ + 1, (s_ + 1) % 2), g0 + 1, 54)
            if s_ == 31: sched.setdefault(0, []).append("s_barrier")
            dl = []
            if s_ % 2 == 1 and (s_ + 3) // 2 < 16: dl += dmaA((s_ + 3) // 2)
            if s_ + 4 < 32: dl += dma(s_ + 4)
            if dl: spread(sched, dl, g0 + 2, 48)
            if s_ == FSA: sched[g0].append(lambda: (A("s_lshl_b32 s56, s2, 2"), set_flag(g, "s56")))
            if TOUCH and s_ in TWT:
                tv, ts, to = TWT[s_]
                sched.setdefault(52, []).append((f"buffer_load_dword v248, {tv}, s[{ts}:{ts+3}], 0 offen offset:{to}", "t"))
            if s_ == LNS - 3 and not NOSIDE: sched.setdefault(51, []).extend([("buffer_load_dwordx4 v[32:35], v25, s[20:23], 0 offen", "ln"), ("buffer_load_dwordx4 v[36:39], v25, s[20:23], 0 offen offset:16", "ln")])
            if s_ == LNS and not NOSIDE: carry += ln
            if s_ == LNS + 4:
                assert not carry
                sched.setdefault(20, []).extend(ln2)
            if s_ == LNS + 5: sched.setdefault(20, []).extend(ln3)
            if s_ == 5:
                def raise_dbg():
                    L = A.newlabel("RDBG")
                    A("s_or_b32 s56, s2, s3")
                    A(f"s_cbranch_scc1 {L}")
                    A("s_mov_b64 exec, 1")
                    A("global_store_dword v29, v30, s[92:93] sc1")
                    A("s_mov_b64 exec, -1")
                    A.label(L)
                sched[g0].append(raise_dbg)
            if TOUCH and s_ in TW: sched.setdefault(50, []).extend(touchW())
            if TOUCH and s_ == TA: sched.setdefault(50, []).extend(touchA(1))
            if s_ == FSA - 4:
                sched.setdefault(50, []).append(("global_load_dword v59, v29, s[92:93] sc1", "dbg"))
            if s_ == FSA - 1:
                def chk_dbg():
                    L = A.newlabel("DBG")
                    A(f"s_waitcnt vmcnt({vm.newer(lambda t: t == 'dbg')})")
                    A("s_mov_b32 s87, 0")
                    A.label(L)
                    A("v_cmp_ne_u32 vcc, 1, v59")
                    A(f"s_cbranch_vccz {L}_OK")
                    A("s_sleep 1")
                    A("global_load_dword v59, v29, s[92:93] sc1")
                    A("s_waitcnt vmcnt(0)")
                    A("s_add_u32 s87, s87, 1")
                    A(f"s_cmp_lt_u32 s87, {SPIN}")
                    A(f"s_cbranch_scc1 {L}")
                    A.label(L + "_OK")
                sched.setdefault(50, []).append(chk_dbg)
            if s_ == 24:
                sched.setdefault(50, []).append((f"buffer_load_dwordx4 v[56:59], v5, s[88:91], 0 offen offset:{F_SA*4} sc1", "pf"))
            if s_ == 26:
                def chk_sa():
                    L = A.newlabel("PSA")
                    A(f"s_waitcnt vmcnt({vm.newer(lambda t: t == 'pf')})")
                    A("s_mov_b32 s87, 0")
                    A.label(L)
                    A("v_and_b32 v56, v56, v57"); A("v_and_b32 v58, v58, v59"); A("v_and_b32 v56, v56, v58")
                    A("v_cmp_ne_u32 vcc, 1, v56")
                    A(f"s_cbranch_vccz {L}_OK")
                    A("s_sleep 1")
                    A(f"buffer_load_dwordx4 v[56:59], v5, s[88:91], 0 offen offset:{F_SA*4} sc1")
                    A("s_waitcnt vmcnt(0)")
                    A("s_add_u32 s87, s87, 1")
                    A(f"s_cmp_lt_u32 s87, {SPIN}")
                    A(f"s_cbranch_scc1 {L}")
                    A.label(L + "_OK")
                sched.setdefault(50, []).append(chk_sa)
            xc = {28: [0], 29: [1, 2, 3], 30: [4], 31: [5, 6]}.get(s_, [])
            if xc:
                items = []
                for c in xc: items += xdma(c)
                spread(sched, items, 2, 30)
            wk = {28: [0, 1], 29: [2, 3], 31: [4, 5]}.get(s_, [])
            if wk:
                items = []
                for ks in wk: items += g.wq.dma(ks)
                spread(sched, items, 34, 60)
            ms = [mf(typ, i, j, s_ % 2, first=(s_ == 0)) for i in range(8) for j in range(8)]
            run_sched(A, ms, sched, carry, 2, vm)
            if s_ < 31: A("s_waitcnt lgkmcnt(0)")
            if s_ in (7, 15, 23): ST(3 + s_ // 8)
            if g.ST2: g.ST2(s_)
        assert not carry
        ST(6)
        if g.ST2:
            ws_srd(A, 24, 54, STAMP_OFF + (1 << 20), 1 << 20)
            A("s_lshl_b32 s56, s2, 2"); A("s_add_u32 s56, s56, s3"); A("s_lshl_b32 s56, s56, 8")
            A("v_lshlrev_b32 v62, 2, v2")
            A("buffer_store_dword v63, v62, s[24:27], s56 offen")
        phaseB(g, typ)
        if typ == 0: A("s_branch PB_JOIN")
    A.label("PB_JOIN")

def phaseB(g, typ):
    A, ST, vm = g.A, g.ST, g.vm
    A("s_lshl_b32 s70, s4, 21")
    A("s_lshl_b32 s71, s6, 18")
    A("s_add_u32 s70, s70, s71")
    A("s_lshl_b32 s71, s67, 17")
    A("s_add_u32 s70, s70, s71")
    A("s_lshl_b32 s71, s68, 13")
    A("s_add_u32 s70, s70, s71")
    if typ: A("s_add_u32 s70, s70, 16384")
    for kb in range(4):
        A(f"s_add_u32 s{72+2*kb}, s70, {kb*32768}")
        A(f"s_add_u32 s{73+2*kb}, s70, {kb*32768+4096}")
    epi = []
    cnt = 0
    for u in range(8):
        for pp in range(4):
            if typ == 0: i, j0 = u, 2*pp; t0, t1 = (i*8+j0)*4, (i*8+j0+1)*4; kb, odd, db = i >> 1, i & 1, pp
            else: j, i0 = u, 2*pp; t0, t1 = (i0*8+j)*4, ((i0+1)*8+j)*4; kb, odd, db = pp, j & 1, j >> 1
            t = 32 + (cnt % 2) * 16; cnt += 1
            epi += [f"v_accvgpr_read_b32 v{t+r}, a{t0+r}" for r in range(4)]
            epi += [f"v_accvgpr_read_b32 v{t+4+r}, a{t1+r}" for r in range(4)]
            epi += [f"v_cvt_pk_bf16_f32 v{t+8+r}, v{t+2*r}, v{t+2*r+1}" for r in range(4)]
            epi.append((f"buffer_store_dwordx4 {v(t+8,4)}, v6, s[16:19], s{72+2*kb+(db>>1)} offen offset:{(db&1)*2048 + odd*128}{SC}", "kv"))
    QACC = 96
    XF = [64, 80]
    A("v_add_u32 v7, 0x10000, v5"); A("v_add_u32 v8, 0x20000, v5")
    def xreads(ks):
        b = XF[ks % 2]
        out = []
        for q in range(4):
            o = g.XCH[ks // 4] + q * 4096 + (ks % 4) * 1024
            out.append(f"ds_read_b128 {v(b+4*q,4)}, {['v5','v7','v8'][o >> 16]} offset:{o & 0xffff}")
        return out
    WF = [224, 232]
    A(f"s_waitcnt vmcnt({min(vm.newer(lambda t: t == ('x', 3)), vm.newer(lambda t: t == ('w', 0)))})")
    A("s_barrier")
    emit(g, xreads(0) + g.wq.tr(0, WF[0], WF[0] + 4))
    EPB = int(os.environ.get("EPB", "5"))
    FLAGKS = int(os.environ.get("FLAGKS", "18"))
    def kvflag():
        assert not epi
        A(f"s_waitcnt vmcnt({vm.newer(lambda t: t == 'kv')})")
        A("s_barrier")
        A("s_lshl_b32 s56, s4, 6"); A("s_lshl_b32 s57, s7, 5"); A("s_add_u32 s56, s56, s57"); A("s_lshl_b32 s57, s6, 2"); A("s_add_u32 s56, s56, s57")
        A(f"s_add_u32 s56, s56, {F_KV*4}")
        set_flag(g, "s56")
    for ks in range(28):
        sched = {}
        A("s_waitcnt lgkmcnt(0)")
        if ks == FLAGKS: kvflag()
        if ks + 1 < 28:
            def w(ks=ks):
                n = vm.newer(lambda t: t == ('w', ks + 1))
                if ks == 15: n = min(n, vm.newer(lambda t: t == ('x', 6)))
                A(f"s_waitcnt vmcnt({n})")
                if ks == 15: A("s_barrier")
            items = [w] + g.wq.tr(ks + 1, WF[(ks+1) % 2], WF[(ks+1) % 2] + 4) + xreads(ks + 1)
            if ks + 6 < 28: items += g.wq.dma(ks + 6)
            spread(sched, items, 0, 6)
        ms = []
        for q in range(4):
            for d in range(2):
                acc = v(QACC + (d*4+q)*16, 16)
                c = "0" if ks == 0 else acc
                ms.append(f"v_mfma_f32_32x32x16_bf16 {acc}, {v(WF[ks%2]+4*d,4)}, {v(XF[ks%2]+4*q,4)}, {c}")
        run_sched(A, ms, sched, epi, EPB + 1, vm)
    assert not epi, len(epi)
    ST(7)
    if FLAGKS >= 28: kvflag()
    else: A("s_barrier")

def phaseC(g):
    A, ST, vm = g.A, g.ST, g.vm
    VL16 = "v5"
    MC = ["v8", "v9"]; THR = ["v10", "v11"]; LS = ["v12", "v13"]; FAC = ["v14", "v15"]; TM = ["v16", "v17"]; MR = ["v18", "v19"]
    T0, T1, T2 = "v4", "v6", "v7"
    SEL = [20, 24]
    VQROW, VSTAT, VSTR = "v0", "v1", "v3"
    SB = [32, 64]
    WIN = 128
    QA = 0
    KV = "s[16:19]"
    def Oreg(gq, dbl, qb):
        b = (gq * 2 + dbl) * 2 + qb
        if b < 8: return ("v", 128 + b * 16)
        if b < 10: return ("v", 96 + (b - 8) * 16)
        return ("a", 160 + (b - 10) * 16)
    def OR(gq, dbl, qb):
        f, b = Oreg(gq, dbl, qb)
        return (a if f == "a" else v)(b, 16)
    allO = [(gq, d, q) for gq in range(4) for d in range(2) for q in range(2)]
    QACC = 96
    A("s_mov_b32 s4, s85")
    A("s_lshl_b32 s45, s3, 12")
    A(f"v_add_u32 {T0}, s45, {VL16}")
    for q in range(4):
        for d in range(2):
            b = QACC + (d*4+q)*16
            for r in range(8):
                A(f"v_cvt_pk_bf16_f32 v{b+r}, v{b+2*r}, v{b+2*r+1}")
            for s_ in range(2):
                A(f"ds_write_b128 {T0}, {v(b+4*s_,4)} offset:{q*16384 + (2*d+s_)*1024}")
    ws_srd(A, 20, 54, CTX_OFF, CTX_SZ)
    A("s_and_b32 s45, s3, 1")
    A("s_lshl_b32 s45, s45, 1")
    for gq in range(4):
        A(f"s_add_u32 s{64+gq}, s45, {gq+2}")
        A(f"s_and_b32 s{64+gq}, s{64+gq}, 3")
        A(f"s_lshl_b32 s{64+gq}, s{64+gq}, 12")
    A("s_lshl_b32 s45, s5, 1")
    A("s_sub_u32 s56, 64, s45")
    A("s_mul_i32 s57, s3, 17")
    A("s_min_u32 s57, s57, 50")
    A("s_add_u32 s58, s57, 17")
    A("s_cmp_ge_u32 s3, 2")
    A("s_cselect_b32 s45, 1, 0")
    A("s_sub_u32 s58, s58, s45")
    A("s_min_u32 s59, s58, s56")
    A("s_sub_i32 s59, s59, s57")
    A("s_max_i32 s59, s59, 0")
    A("s_max_u32 s60, s57, s56")
    A("s_sub_i32 s53, s58, s60")
    A("s_max_i32 s53, s53, 0")
    A("s_sub_u32 s60, s60, s56")
    A("s_cmp_gt_u32 s59, 0")
    A("s_cselect_b32 s34, 0, 1")
    A("s_cselect_b32 s40, s57, s60")
    A("s_cselect_b32 s7, s59, s53")
    A("s_cselect_b32 s53, s53, 0")
    A("s_mov_b32 s52, 0")
    A("s_cmp_gt_u32 s56, 50")
    A("s_cselect_b32 s61, 0x8000, 0")
    A("s_add_u32 s61, s61, 98304")
    A("v_and_b32 v32, 31, v2")
    A("v_lshrrev_b32 v33, 5, v2")
    A(f"v_lshlrev_b32 {VSTR}, 6, v32")
    A(f"v_add_u32 {VSTR}, s61, {VSTR}")
    A(f"v_lshlrev_b32 {VSTAT}, 4, v32")
    A(f"v_add_u32 {VSTAT}, s61, {VSTAT}")
    A(f"v_add_u32 {VSTAT}, 4096, {VSTAT}")
    A("v_lshlrev_b32 v34, 2, v33")
    A("v_sub_u32 v34, v32, v34")
    A(f"v_cvt_f32_i32 {VQROW}, v34")
    A(f"v_add_f32 {VQROW}, 0.5, {VQROW}")
    A("v_mov_b32 v35, 0x3f80")
    A("v_mov_b32 v36, 0x3f800000")
    for s_ in range(2):
        for p in range(4):
            e0 = 2*p
            c0 = 16*s_ + 8*(e0 >> 2) + (e0 & 3)
            A(f"v_cmp_eq_u32 vcc, {c0}, v34")
            A(f"v_cmp_eq_u32 s[50:51], {c0+1}, v34")
            A("s_nop 1")
            A(f"v_cndmask_b32 v{SEL[s_]+p}, 0, v35, vcc")
            A(f"v_cndmask_b32 v{SEL[s_]+p}, v{SEL[s_]+p}, v36, s[50:51]")
    if WOT:
        A("s_load_dwordx2 s[72:73], s[0:1], 40")
        A("s_lshr_b32 s45, s2, 3"); A("s_lshl_b32 s45, s45, 2"); A("s_add_u32 s45, s45, s3")
        A("s_mul_i32 s70, s45, 28672")
        A("v_and_b32 v37, 31, v2")
        A("v_lshlrev_b32 v37, 7, v37")
        A("v_accvgpr_write_b32 a255, v37") if False else None
        A("s_waitcnt lgkmcnt(0)")
        srd(A, 24, 72, 4096*448*2)
    A(f"s_mov_b32 s68, {f32bits(CSC):#x}")
    A(f"s_mov_b32 s69, {f32bits(TTHR/CSC):#x}")
    A("v_and_b32 v32, 15, v2")
    A("v_lshlrev_b32 v32, 2, v32")
    A("s_lshl_b32 s45, s4, 6")
    A(f"s_add_u32 s45, s45, {F_KV*4}")
    poll(g, 36, "v32", "s45")
    ST(8)
    A("s_lshl_b32 s48, s4, 21")
    A("s_lshl_b32 s35, s40, 15")
    A("s_add_u32 s35, s35, s48")
    for f in range(8):
        if f % 4 == 0: A(f"s_add_u32 s45, s35, {(f//4)*4096}")
        A(f"buffer_load_dwordx4 {a(WIN+4*f,4)}, {VL16}, {KV}, s45 offen offset:{(f%4)*1024}{SC}")
    A("s_waitcnt lgkmcnt(0)")
    A("s_barrier")
    A(f"v_mov_b32 v32, {f32bits(-BIG):#x}"); A("v_mov_b32 v33, 0"); A("v_mov_b32 v34, v32"); A("v_mov_b32 v35, 0")
    for q in range(2):
        A(f"ds_write_b128 {VSTR}, v[32:35] offset:{q*2048+32}")
        A(f"ds_write_b128 {VSTR}, v[32:35] offset:{q*2048+48}")
    A("s_cmp_eq_u32 s34, 0")
    A("s_cselect_b32 s45, 0x8000, 0")
    A(f"v_add_u32 {T0}, s45, {VL16}")
    for i in range(32):
        A(f"ds_read_b128 {a(QA+4*i,4)}, {T0} offset:{i*1024}")
    def zeroO():
        out = []
        for (gq, d, q) in allO:
            f, b = Oreg(gq, d, q)
            for r in range(16):
                out.append(f"v_mov_b32 v{b+r}, 0" if f == "v" else f"v_accvgpr_write_b32 a{b+r}, 0")
        return out
    def stream(items, fillers, budget=None, first_gap=0):
        cst = [3 if callable(x) else cost(x) for x in fillers]
        tot = sum(cst); ng = len(items) - first_gap
        fi = 0; done = 0
        for gi, (pre, m, post) in enumerate(items):
            for x in pre: A(x)
            A(m)
            for x in post: A(x)
            if gi >= first_gap:
                target = tot * (gi - first_gap + 1) / ng
                while fi < len(fillers) and done + cst[fi] / 2 <= target:
                    x = fillers[fi]
                    if callable(x): x()
                    else: A(x)
                    done += cst[fi]; fi += 1
        while fi < len(fillers):
            x = fillers[fi]; fi += 1
            if callable(x): x()
            else: A(x)
    def ld(sl, soff, f): return f"buffer_load_dwordx4 {a(sl,4)}, {VL16}, {KV}, {soff} offen offset:{(f%4)*1024}{SC}"
    def X_items(p, loads2):
        items = []
        for f in range(16):
            sl = WIN + 4 * (f % 8)
            for q in range(2):
                acc = v(SB[p] + q*16, 16)
                c = "0" if f == 0 else acc
                pre = ["s_waitcnt vmcnt(7)"] if q == 0 else []
                post = []
                if q == 1:
                    if f < 8:
                        if f % 4 == 0: post.append(f"s_add_u32 s45, s36, {(2+f//4)*4096}")
                        post.append(ld(sl, "s45", f))
                    else: post.append(ld(sl, loads2[(f-8)//4], f))
                items.append((pre, f"v_mfma_f32_32x32x16_bf16 {acc}, {a(sl,4)}, {a(QA+(q*16+f)*4,4)}, {c}", post))
        return items
    def Y_items(p, loads2, first=False):
        items = []
        for f in range(16):
            sl = WIN + 4 * (f % 8)
            gq, d, s_ = f // 4, (f // 2) % 2, f % 2
            for q in range(2):
                acc = OR(gq, d, q)
                pre = ["s_waitcnt vmcnt(7)"] if q == 0 else []
                post = []
                if q == 1:
                    if f < 8:
                        if f % 4 == 0: post.append(f"s_add_u32 s45, s37, s{64+2+f//4}")
                        post.append(ld(sl, "s45", f))
                    else: post.append(ld(sl, loads2[(f-8)//4], f))
                items.append((pre, f"v_mfma_f32_32x32x16_bf16 {acc}, {a(sl,4)}, {v(SB[p]+q*16+4*s_,4)}, {'0' if (first and s_ == 0) else acc}", post))
        return items
    def expq(p, q):
        b = SB[p] + q*16
        out = []
        def post(k):
            return [f"v_add_f32 {LS[q]}, {LS[q]}, v{b+2*k}", f"v_add_f32 {LS[q]}, {LS[q]}, v{b+2*k+1}",
                    f"v_cvt_pk_bf16_f32 v{b+k}, v{b+2*k}, v{b+2*k+1}"]
        for k in range(8):
            out.append(f"v_fma_f32 v{b+2*k}, v{b+2*k}, s68, -{MC[q]}")
            out.append(f"v_fma_f32 v{b+2*k+1}, v{b+2*k+1}, s68, -{MC[q]}")
            out.append(f"v_exp_f32 v{b+2*k}, v{b+2*k}")
            out.append(f"v_exp_f32 v{b+2*k+1}, v{b+2*k+1}")
            if k > 0: out += post(k-1)
        out.append("s_nop 0")
        out += post(7)
        return out
    def maxq(p, q):
        b = SB[p] + q*16
        out = [f"v_max3_f32 {TM[q]}, v{b}, v{b+1}, v{b+2}"]
        for r in range(3, 15, 2):
            out.append(f"v_max3_f32 {TM[q]}, {TM[q]}, v{b+r}, v{b+r+1}")
        out.append(f"v_max_f32 {TM[q]}, {TM[q]}, v{b+15}")
        return out
    def mask_code(p):
        A("s_lshl_b32 s63, s6, 1")
        A("s_sub_u32 s63, s63, s40")
        A("s_lshl_b32 s63, s63, 5")
        A(f"v_cvt_f32_i32 {T0}, s63")
        A(f"v_add_f32 {T0}, {T0}, {VQROW}")
        for q in range(2):
            A(f"v_mov_b32 {T1}, {T0}" if q == 0 else f"v_add_f32 {T1}, 0x42000000, {T0}")
            A(f"v_mul_f32 {T1}, {f32bits(BIG):#x}, {T1}")
            b = SB[p] + q*16
            for r in range(16):
                cr = 8*(r >> 2) + (r & 3)
                A(f"v_add_f32 {T2}, {f32bits(-cr*BIG):#x}, {T1}" if cr else f"v_mov_b32 {T2}, {T1}")
                A(f"v_min_f32 v{b+r}, v{b+r}, {T2}")
    def rescaleO(blocks=None):
        A("s_nop 7"); A("s_nop 7")
        for (gq, d, q) in (blocks or allO):
            f, b = Oreg(gq, d, q)
            for r in range(16):
                if f == "v":
                    A(f"v_mul_f32 v{b+r}, v{b+r}, {FAC[q]}")
                else:
                    A(f"v_accvgpr_read_b32 {T0}, a{b+r}")
                    A(f"v_mul_f32 {T0}, {T0}, {FAC[q]}")
                    A(f"v_accvgpr_write_b32 a{b+r}, {T0}")
        A("s_nop 1")
    rare_blocks = []
    def P1(p, tag):
        def maskbr():
            A("s_cmp_ge_u32 s40, s41")
            A(f"s_cbranch_scc1 PC_MASK_{tag}")
            A.label(f"PC_MASKRET_{tag}")
        def chk():
            A(f"v_cmp_gt_f32 vcc, {TM[0]}, {THR[0]}")
            A(f"v_cmp_gt_f32 s[50:51], {TM[1]}, {THR[1]}")
            A("s_or_b64 s[50:51], vcc, s[50:51]")
            A(f"s_cbranch_scc1 PC_RARE_{tag}")
            A.label(f"PC_RARERET_{tag}")
        rare_blocks.append((p, tag))
        return [maskbr] + maxq(p, 0) + maxq(p, 1) + [chk, "s_add_u32 s40, s40, 1"] + expq(p, 0)[:CUT]
    STEP = 32768
    def pack_l(gq, addr, off, tmp):
        out = []
        for d in range(2):
            for q in range(2):
                f, b = Oreg(gq, d, q)
                if f == "a":
                    t = tmp + ((d*2+q) % 2) * 16
                    out += [f"v_accvgpr_read_b32 v{t+r}, a{b+r}" for r in range(16)]
                    b = t
                out += [f"v_cvt_pk_bf16_f32 v{b+r}, v{b+2*r}, v{b+2*r+1}" for r in range(8)]
                out += [f"ds_write_b128 {addr}, {v(b+4*s_,4)} offset:{off + ((d*2+q)*2+s_)*1024}" for s_ in range(2)]
        return out
    def xaddr(dst, wreg):
        A(f"s_lshr_b32 s43, {wreg}, 1")
        A("s_mul_i32 s43, s43, 98304")
        A(f"s_and_b32 {dst}, {wreg}, 1")
        A(f"s_lshl_b32 {dst}, {dst}, 14")
        A(f"s_add_u32 {dst}, {dst}, s43")
        A(f"s_add_u32 {dst}, {dst}, 32768")
    def seg_head():
        A("s_sub_u32 s6, 31, s5")
        A("s_cmp_eq_u32 s34, 0")
        A("s_cselect_b32 s6, s6, s5")
        A("s_lshl_b32 s41, s6, 1")
        A("s_mov_b32 s42, 0")
        A(f"v_mov_b32 {LS[0]}, 0"); A(f"v_mov_b32 {LS[1]}, 0")
        xaddr("s45", "s3")
        A("s_lshl_b32 s43, s3, 15")
        A("s_lshl_b32 s44, s64, 1")
        A("s_add_u32 s43, s43, s44")
        A("s_lshr_b32 s44, s3, 1")
        A("s_xor_b32 s49, s34, 1")
        A("s_and_b32 s49, s49, s44")
        A("s_cselect_b32 s45, s43, s45")
        A(f"v_add_u32 v28, s45, {VL16}")
        A("s_mov_b32 s36, s35")
        A(f"s_add_u32 s43, s35, {STEP}")
        A(f"s_add_u32 s44, s35, {STEP+4096}")
        A("s_add_u32 s45, s35, 16384")
        A("s_add_u32 s38, s45, s64")
        A("s_add_u32 s39, s45, s65")
        A("s_cmp_gt_u32 s7, 1")
        A("s_cselect_b32 s43, s43, s38")
        A("s_cselect_b32 s44, s44, s39")
        A("s_waitcnt lgkmcnt(0)")
    seg_head()
    stream(X_items(0, ["s43", "s44"]), [])
    A.label("PC_X0DONE")
    A("s_nop 7"); A("s_nop 3")
    A("s_cmp_ge_u32 s40, s41")
    A("s_cbranch_scc0 PC_NOMASK0")
    mask_code(0)
    A.label("PC_NOMASK0")
    for x in maxq(0, 0) + maxq(0, 1): A(x)
    xhalf(A, "v_max_f32", TM[0], T0)
    xhalf(A, "v_max_f32", TM[1], T1)
    A("s_lshl_b32 s45, s34, 10")
    A(f"v_add_u32 {T1}, s45, {VSTAT}")
    A("s_cmp_lg_u32 s52, 0")
    A("s_cbranch_scc1 PC_NOPUB")
    A("s_lshl_b32 s43, s3, 2")
    A(f"v_add_u32 {T0}, s43, {T1}")
    A(f"v_xor_b32 {T2}, 1024, {T0}")
    A(f"v_mov_b32 v{SB[1]}, {f32bits(-BIG):#x}")
    for q in range(2):
        A(f"ds_write_b32 {T0}, {TM[q]} offset:{q*512}")
        A(f"ds_write_b32 {T2}, v{SB[1]} offset:{q*512}")
    A("s_waitcnt lgkmcnt(0)")
    A("s_barrier")
    A.label("PC_NOPUB")
    for q in range(2):
        A(f"ds_read_b128 {v(SB[1]+q*4,4)}, {T1} offset:{q*512}")
    A("s_waitcnt lgkmcnt(0)")
    for q in range(2):
        b = SB[1] + q*4
        A(f"v_max3_f32 {MR[q]}, v{b}, v{b+1}, v{b+2}")
        A(f"v_max_f32 {MR[q]}, {MR[q]}, v{b+3}")
        A(f"v_add_f32 {THR[q]}, s69, {MR[q]}")
        A(f"v_cmp_gt_f32 vcc, {TM[q]}, {THR[q]}")
        A("s_nop 1")
        A(f"v_cndmask_b32 {MR[q]}, {MR[q]}, {TM[q]}, vcc")
        A(f"v_mul_f32 {MC[q]}, s68, {MR[q]}")
        A(f"v_add_f32 {THR[q]}, s69, {MR[q]}")
    A("s_add_u32 s40, s40, 1")
    for x in expq(0, 0)[:CUT]: A(x)
    A("s_cmp_eq_u32 s7, 1")
    A("s_cbranch_scc1 PC_TAILF")
    def body(p, tag, first=False):
        A(f"s_add_u32 s36, s35, {STEP}")
        A("s_add_u32 s37, s35, 16384")
        A("s_add_u32 s43, s37, s64")
        A("s_add_u32 s44, s37, s65")
        stream(X_items(p ^ 1, ["s43", "s44"]), expq(p, 0)[CUT:] + expq(p, 1))
        A(f"s_add_u32 s43, s35, {2*STEP}")
        A(f"s_add_u32 s44, s35, {2*STEP+4096}")
        A(f"s_add_u32 s45, s35, {STEP+16384}")
        A("s_add_u32 s38, s45, s64")
        A("s_add_u32 s39, s45, s65")
        A("s_cmp_gt_u32 s7, 2")
        A("s_cselect_b32 s43, s43, s38")
        A("s_cselect_b32 s44, s44, s39")
        if WOT:
            A(f"s_cmp_le_u32 s7, {WOT}")
            A("s_cselect_b32 s71, s70, 0x7ff00000")
            A("s_cselect_b32 s45, 4096, 0")
            A("s_add_u32 s70, s70, s45")
            A(f"v_lshlrev_b32 {T0}, 2, {VL16}")
            A(f"buffer_load_dword v{SB[p]+15}, {T0}, s[24:27], s71 offen")
        stream(Y_items(p, ["s43", "s44"], first), P1(p ^ 1, tag), first_gap=2)
        A("s_cmp_lg_u32 s42, 0")
        A(f"s_cbranch_scc1 PC_PEND_{tag}")
        A.label(f"PC_PENDRET_{tag}")
        A(f"s_add_u32 s35, s35, {STEP}")
        A("s_sub_u32 s7, s7, 1")
        A("s_cmp_eq_u32 s7, 1")
    body(0, "BF", first=True)
    A("s_cbranch_scc1 PC_TAIL1")
    A("s_branch PC_LOOPB")
    A.label("PC_LOOP")
    body(0, "B0")
    A("s_cbranch_scc1 PC_TAIL1")
    A.label("PC_LOOPB")
    body(1, "B1")
    A("s_cbranch_scc0 PC_LOOP")
    for (lab, p, first) in (("0", 0, False), ("1", 1, False), ("F", 0, True)):
        A.label(f"PC_TAIL{lab}")
        for x in expq(p, 0)[CUT:] + expq(p, 1): A(x)
        A("s_add_u32 s37, s35, 16384")
        A("s_cmp_lg_u32 s53, 0")
        A(f"s_cselect_b32 s43, s48, {KV_SZ:#x}")
        A("s_add_u32 s44, s43, 4096")
        items = Y_items(p, ["s43", "s44"], first)
        qr = [f"ds_read_b128 {a(QA+4*i,4)}, {VL16} offset:{i*1024}" for i in range(32)]
        stream(items[:12], qr)
        stream(items[12:20], pack_l(0, "v28", 0, 0))
        stream(items[20:], pack_l(1, "v28", 8192, 0))
        if lab != "F": A("s_branch PC_SEGEND")
    A.label("PC_SEGEND")
    ST(9)
    xhalf(A, "v_add_f32", LS[0], T0)
    xhalf(A, "v_add_f32", LS[1], T1)
    def put_stats(slot_sgpr):
        A(f"v_add_u32 {T0}, {slot_sgpr}, {VSTR}")
        for q in range(2):
            A(f"v_mov_b32 v{SB[1]+2*q}, {MR[q]}")
            A(f"v_mov_b32 v{SB[1]+2*q+1}, {LS[q]}")
            A(f"ds_write_b64 {T0}, {v(SB[1]+2*q,2)} offset:{q*2048}")
    A("s_cmp_eq_u32 s49, 0")
    A("s_cbranch_scc1 PC_NODUMP")
    A("s_lshl_b32 s45, s3, 3")
    A("s_add_u32 s45, s45, 16")
    put_stats("s45")
    A(f"v_xor_b32 {T2}, 0x4000, v28")
    A("s_mov_b32 s34, 1")
    A("s_cmp_eq_u32 s53, 0")
    A("s_cbranch_scc1 PC_EMPTIED")
    A("s_mov_b32 s7, s53")
    A("s_mov_b32 s53, 0")
    A("s_mov_b32 s52, 1")
    A("s_mov_b32 s40, 0")
    A("s_mov_b32 s35, s48")
    seg_head()
    stream(X_items(0, ["s43", "s44"]), pack_l(2, T2, 0, SB[1]) + pack_l(3, T2, 8192, SB[1]))
    A("s_branch PC_X0DONE")
    A.label("PC_EMPTIED")
    for x in pack_l(2, T2, 0, SB[0]) + pack_l(3, T2, 8192, SB[0]): A(x)
    for x in zeroO()[128:]: A(x)
    for q in range(2):
        A(f"v_mov_b32 {MR[q]}, {f32bits(-BIG):#x}"); A(f"v_mov_b32 {LS[q]}, 0")
    A.label("PC_NODUMP")
    A("s_lshl_b32 s45, s3, 3")
    put_stats("s45")
    A.label("PC_SENT")
    A("s_waitcnt lgkmcnt(0)")
    A("s_barrier")
    A("s_lshr_b32 s45, s3, 1")
    A("s_lshl_b32 s45, s45, 4")
    A(f"v_add_u32 {T0}, s45, {VSTR}")
    for q in range(2):
        A(f"ds_read_b128 {v(SB[0]+q*8,4)}, {T0} offset:{q*2048}")
        A(f"ds_read_b128 {v(SB[0]+q*8+4,4)}, {T0} offset:{q*2048+32}")
    A("s_cmp_ge_u32 s56, 50"); A("s_cselect_b32 s57, 1, 0")
    A("s_cmp_eq_u32 s3, 3"); A("s_cselect_b32 s58, s57, 0")
    A("s_cmp_eq_u32 s3, 2"); A("s_cselect_b32 s57, s57, 0")
    A("s_cmp_gt_u32 s56, 34"); A("s_cselect_b32 s59, 1, 0")
    A("s_cmp_gt_u32 s56, 50"); A("s_cselect_b32 s60, 1, 0")
    A("s_cmp_lt_u32 s3, 2"); A("s_cselect_b32 s59, s59, 0"); A("s_cselect_b32 s60, s60, 0")
    A("s_and_b32 s45, s3, 1")
    A("s_cmp_eq_u32 s45, 1")
    A("s_cselect_b64 s[62:63], -1, 0")
    A("s_waitcnt lgkmcnt(0)")
    for q in range(2):
        b = SB[0] + q*8
        A(f"v_max3_f32 {T0}, v{b}, v{b+2}, v{b+4}")
        A(f"v_max_f32 {T0}, {T0}, v{b+6}")
        for e in range(4):
            A(f"v_sub_f32 v{b+2*e}, v{b+2*e}, {T0}")
            A(f"v_mul_f32 v{b+2*e}, s68, v{b+2*e}")
            A(f"v_exp_f32 v{b+2*e}, v{b+2*e}")
        A("s_nop 0")
        A(f"v_mul_f32 {LS[q]}, v{b}, v{b+1}")
        for e in range(1, 4):
            A(f"v_fmac_f32 {LS[q]}, v{b+2*e}, v{b+2*e+1}")
        A(f"v_rcp_f32 {LS[q]}, {LS[q]}")
        A(f"v_cndmask_b32 {FAC[q]}, v{b}, v{b+2}, s[62:63]")
        A(f"v_cndmask_b32 {TM[q]}, v{b+2}, v{b}, s[62:63]")
    own = allO[8:]
    def store_addrs():
        A("s_sub_u32 s6, 31, s5")
        A("s_cmp_lt_u32 s3, 2")
        A("s_cselect_b32 s6, s6, s5")
        A("s_lshl_b32 s45, s6, 19")
        A("s_lshl_b32 s43, s4, 14")
        A("s_add_u32 s45, s45, s43")
        A("s_and_b32 s43, s3, 1")
        A("s_lshl_b32 s43, s43, 13")
        A("s_add_u32 s45, s45, s43")
        A("s_add_u32 s44, s45, 262144")
        A("s_add_u32 s46, s45, 4096")
        A("s_add_u32 s47, s44, 4096")
    def final_l(n_, tmp):
        gq, d, q = own[n_]
        f, b = Oreg(gq, d, q)
        t = tmp + (n_ % 2) * 16
        out = []
        if f == "a":
            out += [f"v_accvgpr_read_b32 v{t+r}, a{b+r}" for r in range(16)]
            b = t
        out += [f"v_pk_mul_f32 {v(t+r,2)}, {v(b+r,2)}, v[12:13] op_sel:[0,{q}] op_sel_hi:[1,{q}]" for r in range(0, 16, 2)]
        out += [f"v_cvt_pk_bf16_f32 v{t+r}, v{t+2*r}, v{t+2*r+1}" for r in range(8)]
        out += [f"buffer_store_dwordx4 {v(t+4*s_,4)}, {VL16}, s[20:23], s{[45,44,46,47][(gq-2)*2+q]} offen offset:{(2*d+s_)*1024}{SC}" for s_ in range(2)]
        return out
    def neq(dst, f2, absent_if, absent_val):
        A(f"v_cmp_neq_f32 vcc, 1.0, {f2[0]}")
        A(f"v_cmp_neq_f32 s[50:51], 1.0, {f2[1]}")
        A("s_or_b64 s[50:51], vcc, s[50:51]")
        A("s_cselect_b32 s43, 1, 0")
        A(f"s_cmp_eq_u32 {absent_if}, {absent_val}")
        A("s_cselect_b32 s43, 0, s43")
        A(f"s_or_b32 {dst}, {dst}, s43")
    FD = [[f"v{SB[0]+q*8+4+2*k}" for q in range(2)] for k in range(2)]
    A("s_mov_b32 s42, 0")
    neq("s42", FAC, "s57", 1); neq("s42", TM, "s58", 1); neq("s42", FD[0], "s59", 0); neq("s42", FD[1], "s60", 0)
    A("s_cmp_lg_u32 s42, 0")
    A("s_cbranch_scc1 PC_SLOW")
    A("s_xor_b32 s44, s3, 1")
    xaddr("s45", "s44")
    A("s_cmp_eq_u32 s58, 0"); A("s_cselect_b32 s45, s45, 0"); A("s_cselect_b32 s36, -1, 0")
    A(f"v_add_u32 {T0}, s45, {VL16}")
    A("s_lshl_b32 s45, s3, 14"); A("s_add_u32 s45, s45, 65536"); A("s_add_u32 s44, s45, 32768")
    A("s_cmp_lg_u32 s59, 0"); A("s_cselect_b32 s45, s45, 0"); A("s_cselect_b32 s37, -1, 0")
    A(f"v_add_u32 {T1}, s45, {VL16}")
    A("s_cmp_lg_u32 s60, 0"); A("s_cselect_b32 s44, s44, 0"); A("s_cselect_b32 s38, -1, 0")
    A(f"v_add_u32 {T2}, s44, {VL16}")
    SRC = [T0, T1, T2]
    FRB = 128
    def frd(n_): return [f"ds_read_b128 {v(FRB+(n_%4)*24+(k*2+s_)*4,4)}, {SRC[k]} offset:{(n_*2+s_)*1024}" for k in range(3) for s_ in range(2)]
    for n_ in range(3): emit(g, frd(n_))
    SELX = 32
    for k in range(3):
        for r in range(8): A(f"v_and_b32 v{SELX+k*8+r}, s{36+k}, v{SEL[0]+r}")
    store_addrs()
    pend = []
    for n_ in range(8):
        A(f"s_waitcnt lgkmcnt({6*min(2, 7-n_)})")
        acc = OR(*own[n_])
        items = [([], f"v_mfma_f32_32x32x16_bf16 {acc}, {v(SELX+k*8+4*s_,4)}, {v(FRB+(n_%4)*24+(k*2+s_)*4,4)}, {acc}", []) for k in range(3) for s_ in range(2)]
        stream(items, (frd(n_ + 3) if n_ + 3 < 8 else []) + pend)
        pend = final_l(n_ - 1, SB[1]) if n_ >= 1 else []
    for x in pend: A(x)
    for x in final_l(7, SB[1]): A(x)
    A("s_branch PC_DONE")
    A.label("PC_SLOW")
    A("s_cmp_lg_u32 s57, 0")
    A("s_cbranch_scc1 PC_NORESC")
    A(f"v_cmp_neq_f32 vcc, 1.0, {FAC[0]}")
    A(f"v_cmp_neq_f32 s[50:51], 1.0, {FAC[1]}")
    A("s_or_b64 s[50:51], vcc, s[50:51]")
    A("s_cbranch_scc0 PC_NORESC")
    rescaleO(own)
    A.label("PC_NORESC")
    RB = 128
    def receive(tag, fq):
        for i in range(16):
            A(f"ds_read_b128 {v(RB+4*i,4)}, {T1} offset:{i*1024}")
        A(f"v_cmp_neq_f32 vcc, 1.0, {fq[0]}")
        A(f"v_cmp_neq_f32 s[50:51], 1.0, {fq[1]}")
        A("s_or_b64 s[50:51], vcc, s[50:51]")
        A(f"s_cbranch_scc0 PC_RX_{tag}")
        A("s_waitcnt lgkmcnt(0)")
        for i in range(16):
            q = (i >> 1) & 1
            for r in range(4):
                x = f"v{RB+4*i+r}"
                A(f"v_lshlrev_b32 {T0}, 16, {x}")
                A(f"v_and_b32 {x}, 0xffff0000, {x}")
                A(f"v_mul_f32 {T0}, {T0}, {fq[q]}")
                A(f"v_mul_f32 {x}, {x}, {fq[q]}")
                A(f"v_cvt_pk_bf16_f32 {x}, {T0}, {x}")
        A("s_nop 1")
        A.label(f"PC_RX_{tag}")
        for i in range(16):
            gq, d, q, s_ = 2 + (i >> 3), (i >> 2) & 1, (i >> 1) & 1, i & 1
            A(f"s_waitcnt lgkmcnt({15-i})")
            acc = OR(gq, d, q)
            A(f"v_mfma_f32_32x32x16_bf16 {acc}, {v(SEL[s_],4)}, {v(RB+4*i,4)}, {acc}")
    A("s_cmp_lg_u32 s58, 0")
    A("s_cbranch_scc1 PC_NOP")
    A("s_xor_b32 s44, s3, 1")
    xaddr("s45", "s44")
    A(f"v_add_u32 {T1}, s45, {VL16}")
    receive("P", TM)
    A.label("PC_NOP")
    for k, fl in ((0, "s59"), (1, "s60")):
        A(f"s_cmp_eq_u32 {fl}, 0")
        A(f"s_cbranch_scc1 PC_NOD{k}")
        A("s_lshl_b32 s45, s3, 14")
        A(f"s_add_u32 s45, s45, {65536 + k*32768}")
        A(f"v_add_u32 {T1}, s45, {VL16}")
        receive(f"D{k}", [f"v{SB[0]+q*8+4+2*k}" for q in range(2)])
        A.label(f"PC_NOD{k}")
    store_addrs()
    A("s_nop 7")
    for n_ in range(8):
        for x in final_l(n_, SB[1]): A(x)
    A("s_branch PC_DONE")
    for (p, tag) in rare_blocks:
        A.label(f"PC_MASK_{tag}")
        mask_code(p)
        A(f"s_branch PC_MASKRET_{tag}")
        A.label(f"PC_RARE_{tag}")
        for q in range(2):
            xhalf(A, "v_max_f32", TM[q], T0)
            A(f"v_max_f32 {TM[q]}, {TM[q]}, {MR[q]}")
            A(f"v_sub_f32 {T1}, {MR[q]}, {TM[q]}")
            A(f"v_mul_f32 {T1}, s68, {T1}")
            A(f"v_exp_f32 {FAC[q]}, {T1}")
            A(f"v_mov_b32 {MR[q]}, {TM[q]}")
            A(f"v_mul_f32 {MC[q]}, s68, {MR[q]}")
            A(f"v_add_f32 {THR[q]}, s69, {MR[q]}")
            A(f"v_mul_f32 {LS[q]}, {LS[q]}, {FAC[q]}")
        A("s_mov_b32 s42, 1")
        A(f"s_branch PC_RARERET_{tag}")
        A.label(f"PC_PEND_{tag}")
        rescaleO()
        A("s_mov_b32 s42, 0")
        A(f"s_branch PC_PENDRET_{tag}")
    A.label("PC_DONE")
    ST(10)

def reduce4(ACC):
    o = ["v_add_u32 v4, s86, v5", "s_nop 7", "s_nop 2"]
    for b in range(4):
        for r in range(4):
            o.append(f"ds_write_b128 v4, {v(ACC+b*16+4*r,4)} offset:{b*4096 + r*1024}")
    o += ["s_waitcnt lgkmcnt(0)", "s_barrier", "s_lshl_b32 s45, s3, 12", "v_add_u32 v4, s45, v5", "v_add_u32 v28, 81920, v4"]
    for src in range(4):
        for r in range(4):
            o.append(f"ds_read_b128 {v(ACC+src*16+4*r,4)}, {'v4' if src < 2 else 'v28'} offset:{(src%2)*40960 + r*1024}")
    o.append("s_waitcnt lgkmcnt(0)")
    for r in range(0, 16, 2):
        o.append(f"v_pk_add_f32 {v(ACC+r,2)}, {v(ACC+r,2)}, {v(ACC+16+r,2)}")
        o.append(f"v_pk_add_f32 {v(ACC+32+r,2)}, {v(ACC+32+r,2)}, {v(ACC+48+r,2)}")
    for r in range(0, 16, 2):
        o.append(f"v_pk_add_f32 {v(ACC+r,2)}, {v(ACC+r,2)}, {v(ACC+32+r,2)}")
    return o

def add_resid(ACC, RES, OUT):
    o = []
    for r in range(8):
        o.append(f"v_cvt_pk_bf16_f32 v{ACC+16+r}, v{ACC+2*r}, v{ACC+2*r+1}")
    for r in range(8):
        o += [f"v_lshlrev_b32 v{ACC+2*r}, 16, v{ACC+16+r}", f"v_and_b32 v{ACC+2*r+1}, 0xffff0000, v{ACC+16+r}",
              f"v_lshlrev_b32 v{ACC+32+2*r}, 16, v{RES+r}", f"v_and_b32 v{ACC+32+2*r+1}, 0xffff0000, v{RES+r}"]
    for r in range(0, 16, 2):
        o.append(f"v_pk_add_f32 {v(ACC+r,2)}, {v(ACC+r,2)}, {v(ACC+32+r,2)}")
    for r in range(8):
        o.append(f"v_cvt_pk_bf16_f32 v{OUT+r}, v{ACC+2*r}, v{ACC+2*r+1}")
    return o

def xhalf_l(op, x, t):
    return [f"v_mov_b32 {t}, {x}", "s_nop 1", f"v_permlane32_swap_b32 {x}, {t}", f"{op} {x}, {x}, {t}"]

def mix(g, main, side, every):
    k = 0
    for i, x in enumerate(main):
        emit(g, [x])
        if (i + 1) % every == 0 and k < len(side) and not (isinstance(x, str) and x.startswith("s_nop")):
            emit(g, side[k]); k += 1
    return side[k:]

def phaseDEF(g):
    A, ST, vm = g.A, g.ST, g.vm
    vm.ops = []
    ACC = 32
    A("s_load_dwordx2 s[36:37], s[0:1], 0")
    A("s_load_dwordx2 s[38:39], s[0:1], 72")
    A("s_load_dwordx2 s[56:57], s[0:1], 40")
    A("s_load_dwordx4 s[60:63], s[0:1], 56")
    A("s_lshr_b32 s40, s2, 3")
    A("s_mul_i32 s6, s40, 9363")
    A("s_lshr_b32 s6, s6, 16")
    A("s_mul_i32 s7, s6, 7")
    A("s_sub_u32 s7, s40, s7")
    A("s_and_b32 s41, s2, 7")
    A("s_lshl_b32 s41, s41, 2")
    A("s_add_u32 s6, s6, s41")
    A("s_mul_i32 s86, s3, 40960")
    A(f"s_mul_i32 s42, s3, {1024*896}")
    A("s_lshl_b32 s44, s7, 7")
    A("s_add_u32 s42, s42, s44")
    A(f"s_mul_i32 s43, s6, {2*256*1024}")
    A("s_lshl_b32 s44, s3, 16")
    A("s_add_u32 s43, s43, s44")
    A(f"v_add_u32 v6, {256*1024}, v5")
    W = 20
    CW = int(os.environ.get("CW", "8"))
    NR = 16 + (256 - 8*CW) // 8
    wo = Stager(g, "s[32:35]", 896, "s42", "s86", [2048*i for i in range(W)], "v0", "v1", "v3", "v28", "a")
    wo.setup(("v32", "v33")); wo.setup_tr(("v32", "v33"))
    A("s_mov_b32 s58, s42"); A("s_mov_b32 s59, s43"); A("s_and_b32 s53, s2, 7")
    wo_dma0 = wo.dma
    def wo_dma(ks):
        pre = []
        if ROT and ks % 8 == 0:
            pre = [f"s_add_u32 s42, s53, {ks//8}", "s_and_b32 s42, s42, 7", f"s_mul_i32 s42, s42, {8*16*896}", "s_add_u32 s42, s42, s58"]
        return pre + wo_dma0(ks)
    wo.dma = wo_dma
    A("s_waitcnt vmcnt(0) lgkmcnt(0)")
    A("s_barrier")
    ST(23)
    srd(A, 32, 56, 4096*448*2); srd(A, 76, 60, 448*1792*2); srd(A, 80, 62, 448*1792*2)
    A("s_lshl_b32 s45, s5, 6"); A("s_lshl_b32 s44, s4, 2"); A("s_add_u32 s45, s45, s44")
    A(f"s_add_u32 s45, s45, {F_CTX*4}")
    set_flag(g, "s45")
    A("s_sub_u32 s45, 31, s5"); A("s_lshl_b32 s45, s45, 6"); A("s_add_u32 s45, s45, s44")
    A(f"s_add_u32 s45, s45, {F_CTX*4}")
    set_flag(g, "s45")
    A("s_cmp_lt_u32 s40, 28")
    A("s_cbranch_scc0 MEGA_FIN")
    for ks in range(W): emit(g, wo.dma(ks))
    ws_srd(A, 16, 54, H_OFF, H_SZ)
    srd(A, 24, 36, 2048*448*2)
    srd(A, 28, 38, 2048*448*2)
    ws_srd(A, 8, 54, HS_OFF, HS_SZ)
    A("s_lshr_b32 s46, s3, 1"); A("s_lshl_b32 s45, s7, 1"); A("s_add_u32 s46, s46, s45")
    A("s_and_b32 s47, s3, 1"); A("s_lshl_b32 s45, s6, 1"); A("s_add_u32 s47, s47, s45")
    A("v_and_b32 v7, 31, v2")
    A("v_lshrrev_b32 v8, 5, v2")
    A("s_lshl_b32 s45, s47, 5")
    A("v_add_u32 v7, s45, v7")
    A("v_mul_u32_u24 v9, 896, v7")
    A("v_lshl_add_u32 v9, v8, 3, v9")
    A("s_lshl_b32 s48, s46, 6")
    A("s_mul_i32 s49, s47, 28672")
    A("s_lshl_b32 s45, s46, 11")
    A("s_add_u32 s49, s49, s45")
    for gq in range(4):
        A(f"buffer_load_dwordx2 {v(12+2*gq,2)}, v9, s[24:27], s48 offen offset:{16*gq}")
    vm.issue(("x", 0), 4)
    def wreg(ks): return (v, 128 + 8*ks) if ks < 16 else (a, 8*CW + 8*(ks-16))
    for ks in range(NR + 2):
        if ks < NR:
            A(f"s_waitcnt vmcnt({vm.newer(lambda t: t == ('a', ks))})")
            rf, b = wreg(ks)
            emit(g, wo.tr(ks, b, b + 4, rf=rf))
        k2 = ks - 2
        if k2 >= 0:
            A(f"s_waitcnt lgkmcnt({4*min(2, NR-1-k2)})")
            if k2 + W < 64: emit(g, wo.dma(k2 + W))
    A("v_and_b32 v10, 15, v2")
    A("v_lshlrev_b32 v10, 2, v10")
    A("s_lshl_b32 s45, s6, 6")
    A(f"s_add_u32 s45, s45, {F_CTX*4}")
    ST(22)
    poll(g, 11, "v10", "s45")
    ST(11)
    def ldB(ks):
        o = (ks % 4) * 1024; sl = ks % CW
        pre = []
        if ROT and ks % 8 == 0:
            pre = [f"s_add_u32 s43, s53, {ks//8}", "s_and_b32 s43, s43, 7", "s_lshl_b32 s43, s43, 13", "s_add_u32 s43, s43, s59"]
        out = pre + [(f"buffer_load_dwordx4 {a(sl*8,4)}, v5, s[20:23], s43 offen offset:{o}{SC}", ("b", ks)),
               (f"buffer_load_dwordx4 {a(sl*8+4,4)}, v6, s[20:23], s43 offen offset:{o}{SC}", ("b", ks))]
        if ks % 4 == 3: out.append("s_add_u32 s43, s43, 4096")
        return out
    for ks in range(CW): emit(g, ldB(ks))
    WF = [96, 104, 112, 120]
    for ks in range(64):
        nxt = ks + 2
        n = vm.newer(lambda t: t == ("b", ks))
        if NR <= nxt < 64:
            n = min(n, vm.newer(lambda t: t == ("a", nxt)))
            A(f"s_waitcnt vmcnt({n})")
            emit(g, wo.tr(nxt, WF[nxt % 4], WF[nxt % 4] + 4))
        else:
            A(f"s_waitcnt vmcnt({n})")
        if ks >= NR:
            A(f"s_waitcnt lgkmcnt({4*min(2, 63-ks)})")
            rf, b = v, WF[ks % 4]
        else: rf, b = wreg(ks)
        for i in range(2):
            for q in range(2):
                acc = v(ACC + (i*2+q)*16, 16)
                A(f"v_mfma_f32_32x32x16_bf16 {acc}, {rf(b+4*i,4)}, {a((ks%CW)*8+4*q,4)}, {'0' if ks == 0 else acc}")
        if NR <= ks and ks + W < 64: emit(g, wo.dma(ks + W))
        if ks + CW < 64: emit(g, ldB(ks + CW))
    ST(12)
    HP = 20
    A("s_lshl_b32 s42, s7, 9"); A("s_lshl_b32 s45, s3, 7"); A("s_add_u32 s42, s42, s45")
    A("s_lshl_b32 s51, s7, 3"); A("s_lshl_b32 s45, s3, 1"); A("s_add_u32 s51, s51, s45")
    RS12 = [16384 + 2048*i for i in range(12)]
    w1 = Stager(g, "s[76:79]", 3584, "s42", "s86", RS12, "v0", "v1", "v3", "v8", "w1")
    w1.setup(("v96", "v97"))
    A("v_xor_b32 v8, 64, v3")
    vm.ops = []
    ep = reduce4(ACC) + add_resid(ACC, 12, HP)
    for s_ in range(2):
        ep.append((f"buffer_store_dwordx4 {v(HP+4*s_,4)}, v5, s[16:19], s49 offen offset:{1024*s_}{SC}", ("hs", 0)))
    for r in range(8):
        ep += [f"v_lshlrev_b32 v{ACC+2*r}, 16, v{HP+r}", f"v_and_b32 v{ACC+2*r+1}, 0xffff0000, v{HP+r}"]
    ep += [f"v_add_f32 v10, v{ACC}, v{ACC+1}"] + [f"v_add_f32 v10, v10, v{ACC+r}" for r in range(2, 16)]
    ep += xhalf_l("v_add_f32", "v10", "v12") + ["v_mul_f32 v13, 0x3d000000, v10", "v_mov_b32 v11, 0"]
    for r in range(16):
        ep += [f"v_sub_f32 v12, v{ACC+r}, v13", "v_fmac_f32 v11, v12, v12"]
    ep += xhalf_l("v_add_f32", "v11", "v12") + ["v_and_b32 v12, 31, v2", "v_lshlrev_b32 v12, 3, v12", "s_mul_i32 s45, s47, 3584", "s_lshl_b32 s44, s46, 8", "s_add_u32 s45, s45, s44"]
    ep.append((f"buffer_store_dwordx2 v[10:11], v12, s[8:11], s45 offen{SC}", ("hs", 0)))
    mix(g, ep, [w1.dma(ks) for ks in range(12)], 8)
    A(f"s_waitcnt vmcnt({vm.newer(lambda t: t[0] == 'hs')})")
    A("s_barrier")
    A("s_lshl_b32 s45, s6, 5"); A("s_lshl_b32 s44, s7, 2"); A("s_add_u32 s45, s45, s44")
    A(f"s_add_u32 s52, s45, {F_H1*4}")
    A(f"s_add_u32 s45, s45, {F_H*4}")
    set_flag(g, "s45")
    ST(13)
    for r in range(4): A(f"v_mov_b32 v{12+r}, 0x3f803f80")
    CS = 96
    def drain(stg, fn=None):
        for ks in range(28 + 2):
            if ks < 28:
                A(f"s_waitcnt vmcnt({vm.newer(lambda t: t == (stg.tag, ks))})")
                emit(g, stg.tr(ks, 4*ks, 4*(28+ks), rf=a))
            k2 = ks - 2
            if k2 >= 0:
                A(f"s_waitcnt lgkmcnt({4*min(2, 27-k2)})")
                if fn: fn(k2)
                if k2 + 12 < 28: emit(g, stg.dma(k2 + 12))
    def cs_mfma(ks):
        for i in range(2):
            acc = v(CS + i*16, 16)
            A(f"v_mfma_f32_32x32x16_bf16 {acc}, {a(4*(i*28+ks),4)}, v[12:15], {'0' if ks == 0 else acc}")
    drain(w1, cs_mfma)
    A("v_and_b32 v10, 7, v2")
    A("v_min_u32 v10, 6, v10")
    A("v_lshlrev_b32 v10, 2, v10")
    A("s_lshl_b32 s45, s6, 5")
    A(f"s_add_u32 s45, s45, {F_H*4}")
    poll(g, 11, "v10", "s45")
    ST(14)
    A("s_mul_i32 s42, s6, 57344")
    A("s_mul_i32 s43, s3, 14336")
    A("s_add_u32 s42, s42, s43")
    for i in range(14):
        if i % 4 == 0:
            A(f"s_add_u32 m0, s86, {i*1024}")
            A(f"s_add_u32 s44, s42, {i*1024}")
        A(f"buffer_load_dwordx4 v5, s[16:19], s44 offen offset:{(i%4)*1024}{SC} lds")
    A("v_and_b32 v10, 31, v2")
    A("v_lshlrev_b32 v10, 3, v10")
    A("s_mul_i32 s45, s6, 7168")
    A("s_add_u32 s44, s45, 3584")
    STB = [128, 156]
    for q in range(2):
        for i in range(14):
            A(f"buffer_load_dwordx2 {v(STB[q]+2*i,2)}, v10, s[8:11], {'s44' if q else 's45'} offen offset:{256*i}{SC}")
    A(f"s_mul_i32 s42, s3, {448*896}")
    A("s_lshl_b32 s44, s7, 7")
    A("s_add_u32 s42, s42, s44")
    w2 = Stager(g, "s[80:83]", 896, "s42", "s86", RS12, "v0", "v1", "v3", "v8", "w2")
    w2.setup(("v192", "v193"))
    A("v_add_u32 v6, 81920, v5")
    vm.ops = [("st", 0)] * 28
    A("s_waitcnt vmcnt(28)")
    A("s_barrier")
    MB_ = ["v16", "v17"]; RS = ["v18", "v19"]
    stats = [lambda: A(f"s_waitcnt vmcnt({vm.newer(lambda t: t[0] == 'st')})")]
    for q in range(2):
        b = STB[q]
        stats += [f"v_add_f32 v10, v{b}, v{b+2}"] + [f"v_add_f32 v10, v10, v{b+2*i}" for i in range(2, 14)]
        stats += ["v_mul_f32 v10, 0x3b124925, v10", f"v_add_f32 v11, v{b+1}, v{b+3}"] + [f"v_add_f32 v11, v11, v{b+2*i+1}" for i in range(2, 14)]
        stats += ["v_mov_b32 v4, 0"]
        for i in range(14):
            stats += [f"v_mul_f32 v{b+2*i}, 0x3d000000, v{b+2*i}", f"v_sub_f32 v{b+2*i}, v{b+2*i}, v10", f"v_fmac_f32 v4, v{b+2*i}, v{b+2*i}"]
        stats += ["v_mul_f32 v4, 0x42000000, v4", "v_add_f32 v11, v11, v4", "v_mul_f32 v11, 0x3b124925, v11"]
        stats += bf16_round_l(MB_[q], "v10") + bf16_round_l("v11", "v11") + ["v_add_f32 v11, 0x3727c5ac, v11"] + bf16_round_l("v11", "v11")
        stats += ["v_sqrt_f32 v11, v11", "s_nop 0"] + bf16_round_l("v11", "v11") + [f"v_rcp_f32 {RS[q]}, v11", "s_nop 0", f"v_mul_f32 {MB_[q]}, {MB_[q]}, {RS[q]}"]
    XF = [192, 200, 208, 216]
    def xr(ks):
        out = []
        for q in range(2):
            f = q*28 + ks; src = f // 14
            out.append(f"ds_read_b128 {v(XF[ks%4]+4*q,4)}, {'v5' if src < 2 else 'v6'} offset:{(src%2)*40960 + (f%14)*1024}")
        return out
    for ks in range(3): emit(g, xr(ks))
    for ks in range(28):
        sched = {}
        if ks + 3 < 28: spread(sched, xr(ks + 3), 0, 1)
        if ks < 12: sched.setdefault(2, []).extend(w2.dma(ks))
        A(f"s_waitcnt lgkmcnt({2*min(2, 27-ks)})")
        ms = []
        for i in range(2):
            for q in range(2):
                acc = v(ACC + (i*2+q)*16, 16)
                ms.append(f"v_mfma_f32_32x32x16_bf16 {acc}, {a(4*(i*28+ks),4)}, {v(XF[ks%4]+4*q,4)}, {'0' if ks == 0 else acc}")
        run_sched(A, ms, sched, stats if ks >= 4 else [], 4, vm)
    assert not stats
    ST(15)
    ws_srd(A, 20, 54, H1_OFF, H1_SZ)
    A(f"s_mul_i32 s44, s6, {2*112*1024}")
    A("s_lshl_b32 s45, s51, 11")
    A("s_add_u32 s44, s44, s45")
    A(f"s_add_u32 s45, s44, {112*1024}")
    A(f"s_mov_b32 s50, {f32bits(-1.4426950408889634):#x}")
    A("s_mov_b32 s51, s50")
    A("v_mov_b32 v10, 1.0"); A("v_mov_b32 v11, 1.0")
    T = 128
    ep = []
    for i in range(2):
        for q in range(2):
            b = ACC + (i*2+q)*16; cs = CS + i*16
            mbp = "v[16:17]"; rsp = "v[18:19]"; sel = f"op_sel:[0,{q}] op_sel_hi:[1,{q}]"
            for r in range(0, 16, 2): ep.append(f"v_pk_mul_f32 {v(T+r,2)}, {v(cs+r,2)}, {mbp} {sel}")
            for r in range(0, 16, 2): ep.append(f"v_pk_fma_f32 {v(b+r,2)}, {v(b+r,2)}, {rsp}, {v(T+r,2)} op_sel:[0,{q},0] op_sel_hi:[1,{q},1] neg_lo:[0,0,1] neg_hi:[0,0,1]")
            for r in range(0, 16, 2): ep.append(f"v_pk_mul_f32 {v(T+r,2)}, {v(b+r,2)}, s[50:51]")
            for r in range(16): ep.append(f"v_exp_f32 v{T+r}, v{T+r}")
            for r in range(0, 16, 2): ep.append(f"v_pk_add_f32 {v(T+r,2)}, {v(T+r,2)}, v[10:11]")
            for r in range(16): ep.append(f"v_rcp_f32 v{T+r}, v{T+r}")
            for r in range(0, 16, 2): ep.append(f"v_pk_mul_f32 {v(b+r,2)}, {v(b+r,2)}, {v(T+r,2)}")
            for r in range(8): ep.append(f"v_cvt_pk_bf16_f32 v{b+r}, v{b+2*r}, v{b+2*r+1}")
            for s_ in range(2):
                ep.append((f"buffer_store_dwordx4 {v(b+4*s_,4)}, v5, s[20:23], {'s45' if q else 's44'} offen offset:{(2*i+s_)*1024}{SC}", ("h1s", 0)))
    grp = []
    for ks in range(28 + 2):
        it = []
        if ks < 28:
            it.append(lambda ks=ks: A(f"s_waitcnt vmcnt({vm.newer(lambda t: t == ('w2', ks))})"))
            it += w2.tr(ks, 4*ks, 4*(28+ks), rf=a)
        k2 = ks - 2
        if k2 >= 0 and k2 + 12 < 28:
            it.append(f"s_waitcnt lgkmcnt({4*min(2, 27-k2)})")
            it += w2.dma(k2 + 12)
        grp.append(it)
    grp = mix(g, ep, grp, W2EV)
    A(f"s_waitcnt vmcnt({vm.newer(lambda t: t[0] == 'h1s')})")
    A("s_barrier")
    set_flag(g, "s52")
    ST(16)
    for it in grp: emit(g, it)
    A("v_and_b32 v10, 7, v2")
    A("v_min_u32 v10, 6, v10")
    A("v_lshlrev_b32 v10, 2, v10")
    A("s_lshl_b32 s45, s6, 5")
    A(f"s_add_u32 s45, s45, {F_H1*4}")
    poll(g, 11, "v10", "s45")
    ST(17)
    A(f"s_mul_i32 s42, s6, {2*112*1024}")
    A("s_mul_i32 s43, s3, 28672")
    A("s_add_u32 s42, s42, s43")
    A(f"v_add_u32 v6, {112*1024}, v5")
    def ldH(ks):
        sl = ks % 14
        out = [(f"buffer_load_dwordx4 {v(96+sl*8,4)}, v5, s[20:23], s42 offen offset:{(ks%4)*1024}{SC}", ("h", ks)),
               (f"buffer_load_dwordx4 {v(96+sl*8+4,4)}, v6, s[20:23], s42 offen offset:{(ks%4)*1024}{SC}", ("h", ks))]
        if ks % 4 == 3: out.append("s_add_u32 s42, s42, 4096")
        return out
    for ks in range(14): emit(g, ldH(ks))
    A("s_waitcnt lgkmcnt(0)")
    for ks in range(28):
        A(f"s_waitcnt vmcnt({vm.newer(lambda t: t == ('h', ks))})")
        for i in range(2):
            for q in range(2):
                acc = v(ACC + (i*2+q)*16, 16)
                A(f"v_mfma_f32_32x32x16_bf16 {acc}, {a(4*(i*28+ks),4)}, {v(96+(ks%14)*8+4*q,4)}, {'0' if ks == 0 else acc}")
        if ks + 14 < 28: emit(g, ldH(ks + 14))
    ST(18)
    emit(g, reduce4(ACC) + add_resid(ACC, HP, 12))
    for gq in range(4):
        A(f"buffer_store_dwordx2 {v(12+2*gq,2)}, v9, s[28:31], s48 offen offset:{16*gq}{os.environ.get('OUTSC', '')}")

def gen_mega(stamps=False):
    g = G()
    g.A = A = Asm()
    name = "mega_kernel"
    kernel_begin(A, name)
    A("s_cmp_ge_u32 s2, 256")
    A("s_cbranch_scc0 MEGA_GO")
    A("s_endpgm")
    A.label("MEGA_GO")
    if os.environ.get("PERM"):
        A(f"s_mul_i32 s2, s2, {os.environ['PERM']}")
        A("s_add_u32 s2, s2, 11")
        A("s_and_b32 s2, s2, 255")
    g.ST = Stamps(A, stamps)
    g.ST.tmp = "s[100:101]"
    g.vm = VM()
    g.ST2 = Stamps(A, True, "v63") if (stamps and os.environ.get("STG")) else None
    if stamps:
        A("v_mov_b32 v31, 0")
        g.ST(0); g.ST(20, real=True)
    phaseA(g)
    phaseC(g)
    phaseDEF(g)
    A.label("MEGA_FIN")
    if stamps:
        A("s_waitcnt vmcnt(0)")
        g.ST(19); g.ST(21, real=True)
        if os.environ.get("DBGOUT"):
            A("s_cmp_lg_u32 s2, 9"); A("s_cbranch_scc1 NODBG"); A("s_cmp_lg_u32 s3, 0"); A("s_cbranch_scc1 NODBG")
            A("v_readlane_b32 s45, v31, 0")
            A("s_nop 1")
            A("v_subrev_u32 v31, s45, v31")
            A("v_subrev_u32 v1, 5, v2")
            A("v_cmp_gt_u32 vcc, 15, v1")
            A("v_lshlrev_b32 v1, 2, v1")
            A("s_and_saveexec_b64 s[94:95], vcc")
            A("global_store_dword v1, v31, s[92:93] offset:4")
            A("s_mov_b64 exec, s[94:95]")
            A.label("NODBG")
        else:
            g.ST.flush(54, "s3", "v2")
    A.label("MEGA_END")
    A("s_endpgm")
    return name, A.text(), kernel_desc(name, 512, 102, 256), (256, 256, 163840)
```

```python
def v(n, c=1):
    return f"v{n}" if c == 1 else f"v[{n}:{n+c-1}]"
def a(n, c=1):
    return f"a{n}" if c == 1 else f"a[{n}:{n+c-1}]"
def s(n, c=1):
    return f"s{n}" if c == 1 else f"s[{n}:{n+c-1}]"

class Asm:
    def __init__(self):
        self.lines = []
        self._lbl = 0
    _bg = None
    def inject(self, items, every):
        self._bg, self._ev, self._cnt = items, every, 0
    def inject_end(self):
        bg, self._bg = self._bg, None
        for x in bg: self(x)
        del bg[:]
    def __call__(self, text):
        for ln in text.split("\n"):
            ln = ln.strip()
            if ln:
                self.lines.append("    " + ln if not ln.endswith(":") else ln)
                if self._bg:
                    self._cnt += 1
                    if self._cnt >= self._ev and ln.startswith(("v_", "ds_", "buffer_")) and not ln.startswith("v_cmp") and self._scc_free:
                        self._cnt = 0
                        self.lines.append("    " + self._bg.pop(0))
                        while self._bg and self._bg[0].startswith("s_add"):
                            self.lines.append("    " + self._bg.pop(0))
                if ln.startswith("s_cmp") or ln.startswith("s_or_b64"): self._scc_free = False
                elif ln.startswith(("s_cbranch",)): self._scc_free = True
                elif ln.startswith(("v_mfma", "ds_read", "s_waitcnt")): self._scc_free = True
    _scc_free = True
    def label(self, name):
        self.lines.append(name + ":")
    def newlabel(self, base="L"):
        self._lbl += 1
        return f"{base}_{self._lbl}"
    def comment(self, t):
        self.lines.append("    ; " + t)
    def raw(self, t):
        self.lines.append(t)
    def text(self):
        return "\n".join(self.lines) + "\n"

def kernel_begin(A, name):
    A.raw(".text")
    A.raw(f".globl {name}")
    A.raw(".p2align 8")
    A.raw(f".type {name},@function")
    A.raw(f"{name}:")

def kernel_desc(name, vgpr, sgpr=102, accum=None, wgy=False):
    if accum is None:
        accum = (vgpr + 3) // 4 * 4
    t = ['.section .rodata,"a"', ".p2align 6", f".amdhsa_kernel {name}",
         f"  .amdhsa_next_free_vgpr {vgpr}",
         f"  .amdhsa_next_free_sgpr {sgpr}",
         f"  .amdhsa_accum_offset {accum}",
         "  .amdhsa_group_segment_fixed_size 0",
         "  .amdhsa_kernarg_size 96",
         "  .amdhsa_user_sgpr_count 2",
         "  .amdhsa_user_sgpr_kernarg_segment_ptr 1",
         "  .amdhsa_system_sgpr_workgroup_id_x 1"]
    if wgy:
        t.append("  .amdhsa_system_sgpr_workgroup_id_y 1")
    t.append(".end_amdhsa_kernel")
    return "\n".join(t) + "\n"

def srd(A, d, base, nbytes):
    A(f"s_mov_b32 s{d}, s{base}")
    A(f"s_and_b32 s{d+1}, s{base+1}, 0xffff")
    A(f"s_mov_b32 s{d+2}, {nbytes:#x}")
    A(f"s_mov_b32 s{d+3}, 0x00020000")
```

```python
from common import *
from k1b import rl_setup, rl_reads
import os
CSC = math.log2(math.e) / 16.0
TTHR = 8.0
BIG = 2.0 ** 100
SC = " sc1"
SPIN = 1 << 16
G0 = int(os.environ.get('G0', '12'))
ROT = int(os.environ.get('ROT', '1'))
WOT = int(os.environ.get('WOT', '0'))
TQ = int(os.environ.get('TQ', '2'))
TD = int(os.environ.get('TD', '1'))
NOSIDE = int(os.environ.get('NOSIDE', '0'))
TR1 = int(os.environ.get('TR1', '1'))
TR2 = int(os.environ.get('TR2', '8'))
FSA = int(os.environ.get('FSA', '16'))
LNS = int(os.environ.get('LNS', '5'))
CUT = int(os.environ.get('CUT', '46'))
W1EV = int(os.environ.get('W1EV', '6'))
W2EV = int(os.environ.get('W2EV', '40'))
TW = eval(os.environ.get('TW', '(0, 3, 6, 9, 13, 17)'))
TA = int(os.environ.get('TA', '7'))
TOUCH = int(os.environ.get('TOUCH', '1'))

class G:
    pass

def emit(g, items):
    for x in items:
        if isinstance(x, tuple): g.A(x[0]); g.vm.issue(x[1])
        elif callable(x): x()
        else: g.A(x)

def poll(g, vdst, voff, soff, n4=False, name=None):
    A = g.A
    L = A.newlabel("POLL")
    A(f"s_mov_b32 s87, 0")
    A.label(L)
    if n4:
        A(f"buffer_load_dwordx4 {v(vdst,4)}, {voff}, s[88:91], {soff} offen sc1")
        A("s_waitcnt vmcnt(0)")
        A(f"v_and_b32 v{vdst}, v{vdst}, v{vdst+1}")
        A(f"v_and_b32 v{vdst+2}, v{vdst+2}, v{vdst+3}")
        A(f"v_and_b32 v{vdst}, v{vdst}, v{vdst+2}")
    else:
        A(f"buffer_load_dword v{vdst}, {voff}, s[88:91], {soff} offen sc1")
        A("s_waitcnt vmcnt(0)")
    A(f"v_cmp_ne_u32 vcc, 1, v{vdst}")
    A(f"s_cbranch_vccz {L}_OK")
    A("s_sleep 1")
    A("s_add_u32 s87, s87, 1")
    A(f"s_cmp_lt_u32 s87, {SPIN}")
    A(f"s_cbranch_scc1 {L}")
    A.label(L + "_OK")
    g.vm.ops = []

def set_flag(g, soff_bytes):
    A = g.A
    L = A.newlabel("SETF")
    A("s_cmp_lg_u32 s3, 0")
    A(f"s_cbranch_scc1 {L}")
    A("s_mov_b64 exec, 1")
    A(f"buffer_store_dword v30, v29, s[88:91], {soff_bytes} offen sc1")
    A("s_mov_b64 exec, -1")
    A.label(L)


class Stager:
    def __init__(self, g, srd, stride, s_off, s_ring, slots, vA, vB, vT0, vT1, tag):
        self.__dict__.update(locals())
    def setup(self, tmp=("v60", "v61")):
        A = self.g.A; t0, t1 = tmp
        A(f"v_lshrrev_b32 {t0}, 3, v2")
        A(f"v_mul_u32_u24 {self.vA}, {self.stride}, {t0}")
        A(f"v_bfe_u32 {t0}, v2, 4, 1")
        A(f"v_lshlrev_b32 {t0}, 2, {t0}")
        A(f"v_and_b32 {t1}, 7, v2")
        A(f"v_xor_b32 {t0}, {t0}, {t1}")
        A(f"v_lshl_add_u32 {self.vA}, {t0}, 4, {self.vA}")
        A(f"v_add_u32 {self.vB}, {8*self.stride - 1024}, {self.vA}")
    def setup_tr(self, tmp=("v60", "v61")):
        A = self.g.A; t0, t1 = tmp
        A(f"v_lshrrev_b32 {t0}, 5, v2")
        A(f"v_bfe_u32 {t1}, v2, 2, 2")
        A(f"v_lshl_add_u32 {t0}, {t0}, 2, {t1}")
        A(f"v_lshlrev_b32 {t0}, 7, {t0}")
        A(f"v_bfe_u32 {t1}, v2, 3, 1")
        A(f"v_lshl_add_u32 {t0}, {t1}, 6, {t0}")
        A(f"v_bfe_u32 {t1}, v2, 4, 1")
        A(f"v_lshl_add_u32 {t0}, {t1}, 5, {t0}")
        A(f"v_and_b32 {t1}, 3, v2")
        A(f"v_lshl_add_u32 {t0}, {t1}, 3, {t0}")
        A(f"v_add_u32 {self.vT0}, {self.s_ring}, {t0}")
        A(f"v_xor_b32 {self.vT1}, 64, {self.vT0}")
    def dma(self, ks):
        o = self.slots[ks % len(self.slots)]
        return [f"s_add_u32 m0, {self.s_ring}, {o}", "s_nop 0",
                (f"buffer_load_dwordx4 {self.vA}, {self.srd}, {self.s_off} offen lds", (self.tag, ks)),
                (f"buffer_load_dwordx4 {self.vB}, {self.srd}, {self.s_off} offen offset:1024 lds", (self.tag, ks)),
                f"s_add_u32 {self.s_off}, {self.s_off}, {16*self.stride}"]
    def tr(self, ks, d0, d1, rf=v):
        o = self.slots[ks % len(self.slots)]
        return [f"ds_read_b64_tr_b16 {rf(d0,2)}, {self.vT0} offset:{o}", f"ds_read_b64_tr_b16 {rf(d0+2,2)}, {self.vT0} offset:{o+1024}",
                f"ds_read_b64_tr_b16 {rf(d1,2)}, {self.vT1} offset:{o}", f"ds_read_b64_tr_b16 {rf(d1+2,2)}, {self.vT1} offset:{o+1024}"]

def phaseA(g):
    A, ST, vm = g.A, g.ST, g.vm
    A("s_load_dwordx16 s[36:51], s[0:1], 0")
    A("s_load_dwordx2 s[52:53], s[0:1], 64")
    A("s_load_dwordx4 s[92:95], s[0:1], 80")
    A("v_lshrrev_b32 v1, 6, v0")
    A("v_and_b32 v2, 63, v0")
    A("v_readfirstlane_b32 s3, v1")
    A("s_and_b32 s4, s2, 7")
    A("s_lshr_b32 s5, s2, 3")
    A("s_and_b32 s6, s5, 7")
    A("s_lshr_b32 s5, s5, 3")
    A("s_lshr_b32 s7, s5, 1")
    A("s_and_b32 s5, s5, 1")
    A("s_lshl_b32 s4, s4, 1")
    A("s_add_u32 s4, s4, s5")
    A("v_lshrrev_b32 v3, 3, v2")
    A("v_lshlrev_b32 v3, 11, v3")
    A("v_and_b32 v4, 7, v2")
    A("v_bfe_u32 v8, v2, 4, 2")
    A("v_xor_b32 v4, v4, v8")
    A("v_lshl_add_u32 v3, v4, 4, v3")
    A("s_lshl_b32 s56, s6, 19")
    A("s_lshl_b32 s57, s3, 17")
    A("s_add_u32 s56, s56, s57")
    A("v_add_u32 v8, s56, v3")
    A("v_xor_b32 v9, 64, v8")
    A("v_lshrrev_b32 v3, 5, v2")
    A("v_and_b32 v4, 31, v2")
    A("s_and_b32 s57, s3, 1")
    A("v_xor_b32 v4, s57, v4")
    A("v_lshlrev_b32 v5, 2, v3")
    A("v_xor_b32 v4, v4, v5")
    A("v_lshlrev_b32 v4, 4, v4")
    A("v_lshl_add_u32 v4, v3, 13, v4")
    A("s_lshl_b32 s56, s4, 9")
    A("s_lshl_b32 s57, s3, 16")
    A("s_add_u32 s56, s56, s57")
    A("v_add_u32 v12, s56, v4")
    A("v_xor_b32 v13, 128, v12")
    A(f"v_add_u32 v13, {16384-1024}, v13")
    A(f"v_add_u32 v14, {2*(16384-1024)}, v12")
    A(f"v_add_u32 v15, {2*(16384-1024)}, v13")
    A("s_lshl_b32 s64, s3, 12")
    A("s_mov_b32 s65, 0")
    A("s_mov_b32 s66, 0")
    A("s_waitcnt lgkmcnt(0)")
    A("s_mov_b32 s54, s94"); A("s_mov_b32 s55, s95")
    srd(A, 8, 38, 2048*1024*2)
    A("s_cmp_eq_u32 s7, 0")
    A("s_cselect_b32 s12, s42, s44")
    A("s_cselect_b32 s13, s43, s45")
    A("s_and_b32 s13, s13, 0xffff")
    A(f"s_mov_b32 s14, {1024*4096*2:#x}")
    A("s_mov_b32 s15, 0x00020000")
    def dmaA(P):
        out = []
        for i in range(8):
            if i % 4 == 0: out.append(f"s_add_u32 m0, s63, {(P%2)*32768 + i*1024}")
            out.append(f"s_add_u32 s62, s65, {i*16384 - (i%4)*1024}")
            out.append((f"buffer_load_dwordx4 v{8+((i>>1)&1)}, s[8:11], s62 offen offset:{1024*(i%4)} lds", ("A", P)))
        out.append("s_add_u32 s65, s65, 128")
        return out
    def dma(stage):
        slot = stage % 4
        out = [f"s_add_u32 m0, s64, {65536+slot*16384}", "s_nop 0"]
        for i in range(4):
            out.append((f"buffer_load_dwordx4 v{12+i}, s[12:15], s66 offen offset:{1024*i} lds", ("d", stage)))
        out.append("s_add_u32 s66, s66, 262144")
        return out
    A("s_lshl_b32 s63, s3, 13")
    emit(g, dma(0) + dmaA(0) + dma(1))
    ST(1)
    A("v_bfe_u32 v240, v2, 3, 1")
    A("v_lshlrev_b32 v240, 11, v240")
    A("v_and_b32 v241, 7, v2")
    A("v_lshl_add_u32 v240, v241, 7, v240")
    A("s_lshl_b32 s56, s2, 14")
    A("s_lshl_b32 s57, s3, 12")
    A("s_add_u32 s56, s56, s57")
    A("v_add_u32 v241, s56, v240")
    A("s_cmp_lt_u32 s2, 128")
    A("s_cselect_b32 s98, s42, s44")
    A("s_cselect_b32 s99, s43, s45")
    A("s_and_b32 s56, s2, 127")
    A("s_lshl_b32 s56, s56, 13")
    A("s_lshl_b32 s57, s3, 11")
    A("s_add_u32 s56, s56, s57")
    A("v_and_b32 v242, 15, v2")
    A("v_lshlrev_b32 v242, 7, v242")
    A("v_add_u32 v242, s56, v242")
    def touchA(i): return [(f"buffer_load_dword v244, v241, s[8:11], 0 offen offset:{1024*i}", "t")]
    def touchW(): return ["v_add_u32 v242, 0x100000, v242", ("global_load_dword v245, v242, s[98:99]", "t")]
    if TOUCH:
        emit(g, touchA(0) + touchW())
        A("s_getpc_b64 s[56:57]")
        A.label("PCREF")
        A("s_lshr_b32 s58, s2, 3")
        A("s_lshl_b32 s58, s58, 2")
        A("s_add_u32 s58, s58, s3")
        A("s_mul_i32 s58, s58, 1280")
        A("v_min_u32 v249, 9, v2")
        A("v_lshlrev_b32 v249, 7, v249")
        A("v_add_u32 v249, s58, v249")
        A("v_min_u32 v249, (MEGA_END - PCREF), v249")
        emit(g, [("global_load_dword v250, v249, s[56:57]", "t")])
    ws_srd(A, 88, 54, FLAG_OFF, FLAG_SZ)
    A("v_mov_b32 v29, 0")
    A("v_mov_b32 v30, 1")
    A("s_cmp_lg_u32 s2, 0")
    A("s_cbranch_scc1 NOZERO")
    A("v_lshlrev_b32 v3, 5, v0")
    for r in range(4): A(f"v_mov_b32 v{32+r}, 0")
    A("buffer_store_dwordx4 v[32:35], v3, s[88:91], 0 offen sc1")
    A("buffer_store_dwordx4 v[32:35], v3, s[88:91], 0 offen offset:16 sc1")
    A.label("NOZERO")
    ws_srd(A, 16, 54, KV_OFF, KV_SZ)
    srd(A, 20, 36, 2048*448*2)
    ws_srd(A, 24, 54, XN_OFF, XN_SZ)
    A("v_and_b32 v3, 31, v2")
    A("v_lshrrev_b32 v4, 5, v2")
    A("s_lshl_b32 s56, s2, 3")
    A("s_lshl_b32 s57, s3, 1")
    A("s_add_u32 s56, s56, s57")
    A("v_add_u32 v4, s56, v4")
    A("v_mul_u32_u24 v25, 896, v4")
    A("v_lshl_add_u32 v25, v3, 5, v25")
    A("v_and_b32 v5, 7, v4")
    A("v_lshlrev_b32 v26, 8, v3")
    A("v_lshl_add_u32 v26, v5, 4, v26")
    A("v_add_u32 v26, 0x24000, v26")
    A("s_mul_i32 s56, s3, 112")
    A("v_add_u32 v251, s56, v2")
    A("v_lshlrev_b32 v252, 4, v251")
    A("v_add_u32 v252, 0x24000, v252")
    A("v_lshrrev_b32 v253, 3, v251")
    A("v_lshlrev_b32 v253, 9, v253")
    A("v_and_b32 v251, 7, v251")
    A("v_lshl_add_u32 v253, v251, 4, v253")
    A("s_lshr_b32 s56, s2, 2")
    A("s_mul_i32 s56, s56, 28672")
    A("s_and_b32 s57, s2, 3")
    A("s_lshl_b32 s57, s57, 7")
    A("s_add_u32 s56, s56, s57")
    A("v_add_u32 v253, s56, v253")
    A("v_mov_b32 v5, 0x7ffffff0")
    A("v_cmp_gt_u32 vcc, 56, v2")
    A("s_nop 1")
    A("v_cndmask_b32 v253, v5, v253, vcc")
    A("v_cmp_gt_u32 vcc, 28, v3")
    A("v_mov_b32 v5, 0x7ffffff0")
    A("s_nop 0")
    A("v_cndmask_b32 v25, v5, v25, vcc")
    A("v_cndmask_b32 v7, 0, 1.0, vcc")
    A("s_and_b32 s67, s3, 1")
    A("s_lshr_b32 s68, s3, 1")
    A("v_and_b32 v3, 15, v2")
    A("v_lshrrev_b32 v4, 4, v2")
    A("v_lshrrev_b32 v5, 3, v3")
    A("v_and_b32 v6, 7, v3")
    A("v_lshl_add_u32 v6, v5, 4, v6")
    A("v_lshlrev_b32 v5, 2, v5")
    A("v_bfe_u32 v16, v3, 1, 2")
    A("v_or_b32 v5, v5, v16")
    A("v_xor_b32 v5, v4, v5")
    A("v_lshlrev_b32 v16, 7, v6")
    A("v_lshl_add_u32 v16, v5, 4, v16")
    A("s_lshl_b32 s56, s67, 14")
    A("v_add_u32 v16, s56, v16")
    A("v_xor_b32 v10, 64, v16")
    A("v_lshlrev_b32 v6, 4, v6")
    A("v_lshrrev_b32 v5, 1, v4")
    A("v_lshl_add_u32 v6, v5, 10, v6")
    A("v_and_b32 v5, 1, v4")
    A("v_lshl_add_u32 v6, v5, 9, v6")
    A("v_lshrrev_b32 v60, 2, v3")
    A("v_lshl_add_u32 v61, v4, 3, v60")
    A("v_lshlrev_b32 v61, 9, v61")
    A("v_and_b32 v62, 1, v3")
    A("v_lshl_add_u32 v61, v62, 3, v61")
    A("s_lshl_b32 s56, s68, 8")
    A("s_add_u32 s56, s56, 65536")
    A("v_add_u32 v61, s56, v61")
    A("v_lshl_or_b32 v60, v60, 2, v5")
    A("v_and_b32 v62, 2, v3")
    A("v_xor_b32 v60, v60, v62")
    for j in range(8):
        A(f"v_xor_b32 v62, {4*(j>>1)+(j&1)}, v60")
        A(f"v_lshl_add_u32 v{17+j}, v62, 4, v61")
    A("v_lshlrev_b32 v5, 4, v2")
    A("s_and_b32 s56, s2, 7"); A("s_lshr_b32 s57, s2, 7"); A("s_lshl_b32 s56, s56, 1"); A("s_add_u32 s85, s56, s57")
    A("s_lshl_b32 s60, s85, 9"); A("s_lshl_b32 s56, s3, 7"); A("s_add_u32 s60, s60, s56")
    A("s_lshl_b32 s86, s3, 12")
    A("s_add_u32 s86, s86, 114688")
    srd(A, 28, 40, 448*4096*2)
    g.wq = Stager(g, "s[28:31]", 8192, "s60", "s86", [16384, 18432, 32768, 34816, 0, 2048], "v27", "v28", "v3", "v4", "w")
    g.wq.setup(); g.wq.setup_tr()
    A("s_lshl_b32 s69, s2, 2")
    A("s_add_u32 s69, s69, s3")
    A("s_lshl_b32 s70, s69, 12")
    A("v_and_b32 v246, 15, v2")
    A("v_lshlrev_b32 v246, 7, v246")
    A("v_add_u32 v247, s70, v246")
    A("s_lshl_b32 s70, s69, 11")
    A("v_add_u32 v246, s70, v246")
    srd(A, 32, 46, 4096*448*2); srd(A, 76, 50, 448*1792*2); srd(A, 80, 52, 448*1792*2)
    TWT = {TQ: ("v247", 28, 0), TQ + 2: ("v247", 28, 2048), 19: ("v247", 32, 0), 21: ("v247", 32, 2048), 23: ("v246", 76, 0), 25: ("v246", 80, 0)}
    ln = [lambda: A(f"s_waitcnt vmcnt({vm.newer(lambda t: t == 'ln')})")]
    for i in range(8):
        ln += [f"v_lshlrev_b32 v{40+2*i}, 16, v{32+i}", f"v_and_b32 v{41+2*i}, 0xffff0000, v{32+i}"]
    ln += ["v_add_f32 v56, v40, v41"] + [f"v_add_f32 v56, v56, v{40+i}" for i in range(2, 16)]
    ln += half_sum_l("v56", "v57") + ["v_mul_f32 v56, 0x3b124925, v56", "v_mov_b32 v58, 0"]
    for i in range(16):
        ln += [f"v_sub_f32 v57, v{40+i}, v56", "v_fmac_f32 v58, v57, v57"]
    ln += ["v_mul_f32 v58, v58, v7"] + half_sum_l("v58", "v57") + ["v_mul_f32 v58, 0x3b124925, v58"]
    ln += bf16_round_l("v56", "v56") + bf16_round_l("v58", "v58") + ["v_add_f32 v58, 0x3727c5ac, v58"] + bf16_round_l("v58", "v58")
    ln += ["v_sqrt_f32 v58, v58", "s_nop 0"] + bf16_round_l("v58", "v58") + ["v_rcp_f32 v58, v58"]
    ln += [f"v_sub_f32 v{40+i}, v{40+i}, v56" for i in range(16)]
    ln += [f"v_cvt_pk_bf16_f32 v{32+i}, v{40+2*i}, v{41+2*i}" for i in range(8)]
    for i in range(8):
        ln += [f"v_lshlrev_b32 v{40+2*i}, 16, v{32+i}", f"v_and_b32 v{41+2*i}, 0xffff0000, v{32+i}"]
    ln += [f"v_mul_f32 v{40+i}, v{40+i}, v58" for i in range(16)]
    ln += [f"v_cvt_pk_bf16_f32 v{32+[0,1,4,5,2,3,6,7][i]}, v{40+2*i}, v{41+2*i}" for i in range(8)]
    ln += ["ds_write_b128 v26, v[32:35]", "ds_write_b128 v26, v[36:39] offset:128"]
    ln2 = ["ds_read_b128 v[32:35], v252", "ds_read_b128 v[36:39], v252 offset:896"]
    ln3 = [(f"buffer_store_dwordx4 v[32:35], v253, s[24:27], 0 offen{SC}", "sA"), (f"buffer_store_dwordx4 v[36:39], v253, s[24:27], 0 offen offset:3584{SC}", "sA")]
    SETS = [64, 128]
    def reads(stage, st_):
        slot = stage % 4
        b = SETS[st_]
        ra = [f"ds_read_b128 {v(b+4*i,4)}, {'v10' if stage & 1 else 'v16'} offset:{((stage>>1)&1)*32768 + (32*(i>>1)+8*(i&1))*128}" for i in range(8)]
        rw = [[f"ds_read_b64_tr_b16 {v(b+32+4*j+2*t,2)}, v{17+j} offset:{slot*16384 + 2048*t}" for t in range(2)] for j in range(8)]
        out = []
        for i in range(8): out += [ra[i]] + rw[i]
        return out
    def mf(typ, i, j, st_, first=False):
        b = SETS[st_]
        acc = a((i*8+j)*4, 4)
        c = "0" if first else acc
        ca, w_ = v(b+4*i, 4), v(b+32+4*j, 4)
        return f"v_mfma_f32_16x16x32_bf16 {acc}, {w_}, {ca}, {c}" if typ == 0 else f"v_mfma_f32_16x16x32_bf16 {acc}, {ca}, {w_}, {c}"
    A("s_lshr_b32 s56, s2, 3")
    A("s_and_b32 s5, s56, 15")
    A("s_lshl_b32 s57, s5, 1")
    A("s_add_u32 s58, s57, s3")
    A("s_sub_u32 s59, 60, s57")
    A("s_add_u32 s59, s59, s3")
    A("s_cmp_lt_u32 s3, 2")
    A("s_cselect_b32 s58, s58, s59")
    A("s_mul_i32 s69, s58, 28672")
    XCH = [65536, 81920, 0, 16384, 98304, 32768, 49152]
    g.XCH = XCH
    def xdma(c):
        out = [f"s_add_u32 m0, s64, {XCH[c]}", f"s_add_u32 s56, s69, {c*4096}"]
        out += [(f"buffer_load_dwordx4 v5, s[24:27], s56 offen offset:{1024*i}{SC} lds", ("x", c)) for i in range(4)]
        return out
    vm0 = list(vm.ops)
    A("s_cmp_eq_u32 s7, 1")
    A("s_cbranch_scc1 PA_V")
    for typ in (0, 1):
        if typ: A.label("PA_V")
        vm.ops = list(vm0)
        A(f"s_waitcnt vmcnt({vm.newer(lambda t: t == ('A', 0))})")
        A("s_barrier")
        ST(2)
        emit(g, reads(0, 0))
        A("s_waitcnt lgkmcnt(0)")
        carry = []
        for s_ in range(32):
            sched = {}
            g0 = 0
            if s_ == 0:
                spread(sched, dma(2) + dmaA(1) + dma(3), 0, G0 - 1); g0 = G0
            def w(s_=s_):
                n = min(vm.newer(lambda t: t == ("d", s_ + 1)), vm.newer(lambda t: t == ("A", (s_ + 1) // 2)))
                if s_ == FSA: n = min(n, vm.newer(lambda t: t == "sA"))
                A(f"s_waitcnt vmcnt({n})")
            if s_ < 31:
                sched.setdefault(g0, []).extend([w, "s_barrier"])
                spread(sched, reads(s_ + 1, (s_ + 1) % 2), g0 + 1, 54)
            if s_ == 31: sched.setdefault(0, []).append("s_barrier")
            dl = []
            if s_ % 2 == 1 and (s_ + 3) // 2 < 16: dl += dmaA((s_ + 3) // 2)
            if s_ + 4 < 32: dl += dma(s_ + 4)
            if dl: spread(sched, dl, g0 + 2, 48)
            if s_ == FSA: sched[g0].append(lambda: (A("s_lshl_b32 s56, s2, 2"), set_flag(g, "s56")))
            if TOUCH and s_ in TWT:
                tv, ts, to = TWT[s_]
                sched.setdefault(52, []).append((f"buffer_load_dword v248, {tv}, s[{ts}:{ts+3}], 0 offen offset:{to}", "t"))
            if s_ == LNS - 3 and not NOSIDE: sched.setdefault(51, []).extend([("buffer_load_dwordx4 v[32:35], v25, s[20:23], 0 offen", "ln"), ("buffer_load_dwordx4 v[36:39], v25, s[20:23], 0 offen offset:16", "ln")])
            if s_ == LNS and not NOSIDE: carry += ln
            if s_ == LNS + 4:
                assert not carry
                sched.setdefault(20, []).extend(ln2)
            if s_ == LNS + 5: sched.setdefault(20, []).extend(ln3)
            if s_ == 5:
                def raise_dbg():
                    L = A.newlabel("RDBG")
                    A("s_or_b32 s56, s2, s3")
                    A(f"s_cbranch_scc1 {L}")
                    A("s_mov_b64 exec, 1")
                    A("global_store_dword v29, v30, s[92:93] sc1")
                    A("s_mov_b64 exec, -1")
                    A.label(L)
                sched[g0].append(raise_dbg)
            if TOUCH and s_ in TW: sched.setdefault(50, []).extend(touchW())
            if TOUCH and s_ == TA: sched.setdefault(50, []).extend(touchA(1))
            if s_ == FSA - 4:
                sched.setdefault(50, []).append(("global_load_dword v59, v29, s[92:93] sc1", "dbg"))
            if s_ == FSA - 1:
                def chk_dbg():
                    L = A.newlabel("DBG")
                    A(f"s_waitcnt vmcnt({vm.newer(lambda t: t == 'dbg')})")
                    A("s_mov_b32 s87, 0")
                    A.label(L)
                    A("v_cmp_ne_u32 vcc, 1, v59")
                    A(f"s_cbranch_vccz {L}_OK")
                    A("s_sleep 1")
                    A("global_load_dword v59, v29, s[92:93] sc1")
                    A("s_waitcnt vmcnt(0)")
                    A("s_add_u32 s87, s87, 1")
                    A(f"s_cmp_lt_u32 s87, {SPIN}")
                    A(f"s_cbranch_scc1 {L}")
                    A.label(L + "_OK")
                sched.setdefault(50, []).append(chk_dbg)
            if s_ == 24:
                sched.setdefault(50, []).append((f"buffer_load_dwordx4 v[56:59], v5, s[88:91], 0 offen offset:{F_SA*4} sc1", "pf"))
            if s_ == 26:
                def chk_sa():
                    L = A.newlabel("PSA")
                    A(f"s_waitcnt vmcnt({vm.newer(lambda t: t == 'pf')})")
                    A("s_mov_b32 s87, 0")
                    A.label(L)
                    A("v_and_b32 v56, v56, v57"); A("v_and_b32 v58, v58, v59"); A("v_and_b32 v56, v56, v58")
                    A("v_cmp_ne_u32 vcc, 1, v56")
                    A(f"s_cbranch_vccz {L}_OK")
                    A("s_sleep 1")
                    A(f"buffer_load_dwordx4 v[56:59], v5, s[88:91], 0 offen offset:{F_SA*4} sc1")
                    A("s_waitcnt vmcnt(0)")
                    A("s_add_u32 s87, s87, 1")
                    A(f"s_cmp_lt_u32 s87, {SPIN}")
                    A(f"s_cbranch_scc1 {L}")
                    A.label(L + "_OK")
                sched.setdefault(50, []).append(chk_sa)
            xc = {28: [0], 29: [1, 2, 3], 30: [4], 31: [5, 6]}.get(s_, [])
            if xc:
                items = []
                for c in xc: items += xdma(c)
                spread(sched, items, 2, 30)
            wk = {28: [0, 1], 29: [2, 3], 31: [4, 5]}.get(s_, [])
            if wk:
                items = []
                for ks in wk: items += g.wq.dma(ks)
                spread(sched, items, 34, 60)
            ms = [mf(typ, i, j, s_ % 2, first=(s_ == 0)) for i in range(8) for j in range(8)]
            run_sched(A, ms, sched, carry, 2, vm)
            if s_ < 31: A("s_waitcnt lgkmcnt(0)")
            if s_ in (7, 15, 23): ST(3 + s_ // 8)
            if g.ST2: g.ST2(s_)
        assert not carry
        ST(6)
        if g.ST2:
            ws_srd(A, 24, 54, STAMP_OFF + (1 << 20), 1 << 20)
            A("s_lshl_b32 s56, s2, 2"); A("s_add_u32 s56, s56, s3"); A("s_lshl_b32 s56, s56, 8")
            A("v_lshlrev_b32 v62, 2, v2")
            A("buffer_store_dword v63, v62, s[24:27], s56 offen")
        phaseB(g, typ)
        if typ == 0: A("s_branch PB_JOIN")
    A.label("PB_JOIN")

def phaseB(g, typ):
    A, ST, vm = g.A, g.ST, g.vm
    A("s_lshl_b32 s70, s4, 21")
    A("s_lshl_b32 s71, s6, 18")
    A("s_add_u32 s70, s70, s71")
    A("s_lshl_b32 s71, s67, 17")
    A("s_add_u32 s70, s70, s71")
    A("s_lshl_b32 s71, s68, 13")
    A("s_add_u32 s70, s70, s71")
    if typ: A("s_add_u32 s70, s70, 16384")
    for kb in range(4):
        A(f"s_add_u32 s{72+2*kb}, s70, {kb*32768}")
        A(f"s_add_u32 s{73+2*kb}, s70, {kb*32768+4096}")
    epi = []
    cnt = 0
    for u in range(8):
        for pp in range(4):
            if typ == 0: i, j0 = u, 2*pp; t0, t1 = (i*8+j0)*4, (i*8+j0+1)*4; kb, odd, db = i >> 1, i & 1, pp
            else: j, i0 = u, 2*pp; t0, t1 = (i0*8+j)*4, ((i0+1)*8+j)*4; kb, odd, db = pp, j & 1, j >> 1
            t = 32 + (cnt % 2) * 16; cnt += 1
            epi += [f"v_accvgpr_read_b32 v{t+r}, a{t0+r}" for r in range(4)]
            epi += [f"v_accvgpr_read_b32 v{t+4+r}, a{t1+r}" for r in range(4)]
            epi += [f"v_cvt_pk_bf16_f32 v{t+8+r}, v{t+2*r}, v{t+2*r+1}" for r in range(4)]
            epi.append((f"buffer_store_dwordx4 {v(t+8,4)}, v6, s[16:19], s{72+2*kb+(db>>1)} offen offset:{(db&1)*2048 + odd*128}{SC}", "kv"))
    QACC = 96
    XF = [64, 80]
    A("v_add_u32 v7, 0x10000, v5"); A("v_add_u32 v8, 0x20000, v5")
    def xreads(ks):
        b = XF[ks % 2]
        out = []
        for q in range(4):
            o = g.XCH[ks // 4] + q * 4096 + (ks % 4) * 1024
            out.append(f"ds_read_b128 {v(b+4*q,4)}, {['v5','v7','v8'][o >> 16]} offset:{o & 0xffff}")
        return out
    WF = [224, 232]
    A(f"s_waitcnt vmcnt({min(vm.newer(lambda t: t == ('x', 3)), vm.newer(lambda t: t == ('w', 0)))})")
    A("s_barrier")
    emit(g, xreads(0) + g.wq.tr(0, WF[0], WF[0] + 4))
    EPB = int(os.environ.get("EPB", "8")) if typ == 0 else int(os.environ.get("EPBV", "5"))
    FLAGKS = int(os.environ.get("FLAGKS", "11")) if typ == 0 else 28
    EPS = 0 if typ == 0 else int(os.environ.get("EPS", "10"))
    def kvflag():
        assert not epi
        A(f"s_waitcnt vmcnt({vm.newer(lambda t: t == 'kv')})")
        A("s_barrier")
        A("s_lshl_b32 s56, s4, 6"); A("s_lshl_b32 s57, s7, 5"); A("s_add_u32 s56, s56, s57"); A("s_lshl_b32 s57, s6, 2"); A("s_add_u32 s56, s56, s57")
        A(f"s_add_u32 s56, s56, {F_KV*4}")
        set_flag(g, "s56")
    for ks in range(28):
        sched = {}
        A("s_waitcnt lgkmcnt(0)")
        if ks == FLAGKS: kvflag()
        if ks + 1 < 28:
            def w(ks=ks):
                n = vm.newer(lambda t: t == ('w', ks + 1))
                if ks == 15: n = min(n, vm.newer(lambda t: t == ('x', 6)))
                A(f"s_waitcnt vmcnt({n})")
                if ks == 15: A("s_barrier")
            items = [w] + g.wq.tr(ks + 1, WF[(ks+1) % 2], WF[(ks+1) % 2] + 4) + xreads(ks + 1)
            if ks + 6 < 28: items += g.wq.dma(ks + 6)
            spread(sched, items, 0, 6)
        ms = []
        for q in range(4):
            for d in range(2):
                acc = v(QACC + (d*4+q)*16, 16)
                c = "0" if ks == 0 else acc
                ms.append(f"v_mfma_f32_32x32x16_bf16 {acc}, {v(WF[ks%2]+4*d,4)}, {v(XF[ks%2]+4*q,4)}, {c}")
        run_sched(A, ms, sched, epi if ks >= EPS else [], EPB + 1, vm)
    assert not epi, len(epi)
    ST(7)
    if FLAGKS >= 28: kvflag()
    else: A("s_barrier")

def phaseC(g):
    A, ST, vm = g.A, g.ST, g.vm
    VL16 = "v5"
    MC = ["v8", "v9"]; THR = ["v10", "v11"]; LS = ["v12", "v13"]; FAC = ["v14", "v15"]; TM = ["v16", "v17"]; MR = ["v18", "v19"]
    T0, T1, T2 = "v4", "v6", "v7"
    SEL = [20, 24]
    VQROW, VSTAT, VSTR = "v0", "v1", "v3"
    SB = [32, 64]
    WIN = 128
    QA = 0
    KV = "s[16:19]"
    def Oreg(gq, dbl, qb):
        b = (gq * 2 + dbl) * 2 + qb
        if b < 8: return ("v", 128 + b * 16)
        if b < 10: return ("v", 96 + (b - 8) * 16)
        return ("a", 160 + (b - 10) * 16)
    def OR(gq, dbl, qb):
        f, b = Oreg(gq, dbl, qb)
        return (a if f == "a" else v)(b, 16)
    allO = [(gq, d, q) for gq in range(4) for d in range(2) for q in range(2)]
    QACC = 96
    A("s_mov_b32 s4, s85")
    A("s_lshl_b32 s45, s3, 12")
    A(f"v_add_u32 {T0}, s45, {VL16}")
    for q in range(4):
        for d in range(2):
            b = QACC + (d*4+q)*16
            for r in range(8):
                A(f"v_cvt_pk_bf16_f32 v{b+r}, v{b+2*r}, v{b+2*r+1}")
            for s_ in range(2):
                A(f"ds_write_b128 {T0}, {v(b+4*s_,4)} offset:{q*16384 + (2*d+s_)*1024}")
    ws_srd(A, 20, 54, CTX_OFF, CTX_SZ)
    A("s_and_b32 s45, s3, 1")
    A("s_lshl_b32 s45, s45, 1")
    for gq in range(4):
        A(f"s_add_u32 s{64+gq}, s45, {gq+2}")
        A(f"s_and_b32 s{64+gq}, s{64+gq}, 3")
        A(f"s_lshl_b32 s{64+gq}, s{64+gq}, 12")
    A("s_lshl_b32 s45, s5, 1")
    A("s_sub_u32 s56, 64, s45")
    A("s_mul_i32 s57, s3, 17")
    A("s_min_u32 s57, s57, 50")
    A("s_add_u32 s58, s57, 17")
    A("s_cmp_ge_u32 s3, 2")
    A("s_cselect_b32 s45, 1, 0")
    A("s_sub_u32 s58, s58, s45")
    A("s_min_u32 s59, s58, s56")
    A("s_sub_i32 s59, s59, s57")
    A("s_max_i32 s59, s59, 0")
    A("s_max_u32 s60, s57, s56")
    A("s_sub_i32 s53, s58, s60")
    A("s_max_i32 s53, s53, 0")
    A("s_sub_u32 s60, s60, s56")
    A("s_cmp_gt_u32 s59, 0")
    A("s_cselect_b32 s34, 0, 1")
    A("s_cselect_b32 s40, s57, s60")
    A("s_cselect_b32 s7, s59, s53")
    A("s_cselect_b32 s53, s53, 0")
    A("s_mov_b32 s52, 0")
    A("s_cmp_gt_u32 s56, 50")
    A("s_cselect_b32 s61, 0x8000, 0")
    A("s_add_u32 s61, s61, 98304")
    A("v_and_b32 v32, 31, v2")
    A("v_lshrrev_b32 v33, 5, v2")
    A(f"v_lshlrev_b32 {VSTR}, 6, v32")
    A(f"v_add_u32 {VSTR}, s61, {VSTR}")
    A(f"v_lshlrev_b32 {VSTAT}, 4, v32")
    A(f"v_add_u32 {VSTAT}, s61, {VSTAT}")
    A(f"v_add_u32 {VSTAT}, 4096, {VSTAT}")
    A("v_lshlrev_b32 v34, 2, v33")
    A("v_sub_u32 v34, v32, v34")
    A(f"v_cvt_f32_i32 {VQROW}, v34")
    A(f"v_add_f32 {VQROW}, 0.5, {VQROW}")
    A("v_mov_b32 v35, 0x3f80")
    A("v_mov_b32 v36, 0x3f800000")
    for s_ in range(2):
        for p in range(4):
            e0 = 2*p
            c0 = 16*s_ + 8*(e0 >> 2) + (e0 & 3)
            A(f"v_cmp_eq_u32 vcc, {c0}, v34")
            A(f"v_cmp_eq_u32 s[50:51], {c0+1}, v34")
            A("s_nop 1")
            A(f"v_cndmask_b32 v{SEL[s_]+p}, 0, v35, vcc")
            A(f"v_cndmask_b32 v{SEL[s_]+p}, v{SEL[s_]+p}, v36, s[50:51]")
    if WOT:
        A("s_load_dwordx2 s[72:73], s[0:1], 40")
        A("s_lshr_b32 s45, s2, 3"); A("s_lshl_b32 s45, s45, 2"); A("s_add_u32 s45, s45, s3")
        A("s_mul_i32 s70, s45, 28672")
        A("v_and_b32 v37, 31, v2")
        A("v_lshlrev_b32 v37, 7, v37")
        A("v_accvgpr_write_b32 a255, v37") if False else None
        A("s_waitcnt lgkmcnt(0)")
        srd(A, 24, 72, 4096*448*2)
    A(f"s_mov_b32 s68, {f32bits(CSC):#x}")
    A(f"s_mov_b32 s69, {f32bits(TTHR/CSC):#x}")
    A("v_and_b32 v32, 7, v2")
    A("v_lshlrev_b32 v32, 2, v32")
    A("s_lshl_b32 s45, s4, 6")
    A(f"s_add_u32 s45, s45, {F_KV*4}")
    poll(g, 36, "v32", "s45")
    ST(8)
    A("s_lshl_b32 s48, s4, 21")
    A("s_lshl_b32 s35, s40, 15")
    A("s_add_u32 s35, s35, s48")
    for f in range(8):
        if f % 4 == 0: A(f"s_add_u32 s45, s35, {(f//4)*4096}")
        A(f"buffer_load_dwordx4 {a(WIN+4*f,4)}, {VL16}, {KV}, s45 offen offset:{(f%4)*1024}{SC}")
    A("s_waitcnt lgkmcnt(0)")
    A("s_barrier")
    A(f"v_mov_b32 v32, {f32bits(-BIG):#x}"); A("v_mov_b32 v33, 0"); A("v_mov_b32 v34, v32"); A("v_mov_b32 v35, 0")
    for q in range(2):
        A(f"ds_write_b128 {VSTR}, v[32:35] offset:{q*2048+32}")
        A(f"ds_write_b128 {VSTR}, v[32:35] offset:{q*2048+48}")
    A("s_cmp_eq_u32 s34, 0")
    A("s_cselect_b32 s45, 0x8000, 0")
    A(f"v_add_u32 {T0}, s45, {VL16}")
    for i in range(32):
        A(f"ds_read_b128 {a(QA+4*i,4)}, {T0} offset:{i*1024}")
    def zeroO():
        out = []
        for (gq, d, q) in allO:
            f, b = Oreg(gq, d, q)
            for r in range(16):
                out.append(f"v_mov_b32 v{b+r}, 0" if f == "v" else f"v_accvgpr_write_b32 a{b+r}, 0")
        return out
    def stream(items, fillers, budget=None, first_gap=0):
        cst = [3 if callable(x) else cost(x) for x in fillers]
        tot = sum(cst); ng = len(items) - first_gap
        fi = 0; done = 0
        for gi, (pre, m, post) in enumerate(items):
            for x in pre: A(x)
            A(m)
            for x in post: A(x)
            if gi >= first_gap:
                target = tot * (gi - first_gap + 1) / ng
                while fi < len(fillers) and done + cst[fi] / 2 <= target:
                    x = fillers[fi]
                    if callable(x): x()
                    else: A(x)
                    done += cst[fi]; fi += 1
        while fi < len(fillers):
            x = fillers[fi]; fi += 1
            if callable(x): x()
            else: A(x)
    def ld(sl, soff, f): return f"buffer_load_dwordx4 {a(sl,4)}, {VL16}, {KV}, {soff} offen offset:{(f%4)*1024}{SC}"
    def X_items(p, loads2):
        items = []
        for f in range(16):
            sl = WIN + 4 * (f % 8)
            for q in range(2):
                acc = v(SB[p] + q*16, 16)
                c = "0" if f == 0 else acc
                pre = ["s_waitcnt vmcnt(7)"] if q == 0 else []
                post = []
                if q == 1:
                    if f < 8:
                        if f % 4 == 0: post.append(f"s_add_u32 s45, s36, {(2+f//4)*4096}")
                        post.append(ld(sl, "s45", f))
                    else: post.append(ld(sl, loads2[(f-8)//4], f))
                items.append((pre, f"v_mfma_f32_32x32x16_bf16 {acc}, {a(sl,4)}, {a(QA+(q*16+f)*4,4)}, {c}", post))
        return items
    def Y_items(p, loads2, first=False):
        items = []
        for f in range(16):
            sl = WIN + 4 * (f % 8)
            gq, d, s_ = f // 4, (f // 2) % 2, f % 2
            for q in range(2):
                acc = OR(gq, d, q)
                pre = ["s_waitcnt vmcnt(7)"] if q == 0 else []
                post = []
                if q == 1:
                    if f < 8:
                        if f % 4 == 0: post.append(f"s_add_u32 s45, s37, s{64+2+f//4}")
                        post.append(ld(sl, "s45", f))
                    else: post.append(ld(sl, loads2[(f-8)//4], f))
                items.append((pre, f"v_mfma_f32_32x32x16_bf16 {acc}, {a(sl,4)}, {v(SB[p]+q*16+4*s_,4)}, {'0' if (first and s_ == 0) else acc}", post))
        return items
    def expq(p, q):
        b = SB[p] + q*16
        out = []
        def post(k):
            return [f"v_add_f32 {LS[q]}, {LS[q]}, v{b+2*k}", f"v_add_f32 {LS[q]}, {LS[q]}, v{b+2*k+1}",
                    f"v_cvt_pk_bf16_f32 v{b+k}, v{b+2*k}, v{b+2*k+1}"]
        for k in range(8):
            out.append(f"v_fma_f32 v{b+2*k}, v{b+2*k}, s68, -{MC[q]}")
            out.append(f"v_fma_f32 v{b+2*k+1}, v{b+2*k+1}, s68, -{MC[q]}")
            out.append(f"v_exp_f32 v{b+2*k}, v{b+2*k}")
            out.append(f"v_exp_f32 v{b+2*k+1}, v{b+2*k+1}")
            if k > 0: out += post(k-1)
        out.append("s_nop 0")
        out += post(7)
        return out
    def maxq(p, q):
        b = SB[p] + q*16
        out = [f"v_max3_f32 {TM[q]}, v{b}, v{b+1}, v{b+2}"]
        for r in range(3, 15, 2):
            out.append(f"v_max3_f32 {TM[q]}, {TM[q]}, v{b+r}, v{b+r+1}")
        out.append(f"v_max_f32 {TM[q]}, {TM[q]}, v{b+15}")
        return out
    def mask_code(p):
        A("s_lshl_b32 s63, s6, 1")
        A("s_sub_u32 s63, s63, s40")
        A("s_lshl_b32 s63, s63, 5")
        A(f"v_cvt_f32_i32 {T0}, s63")
        A(f"v_add_f32 {T0}, {T0}, {VQROW}")
        for q in range(2):
            A(f"v_mov_b32 {T1}, {T0}" if q == 0 else f"v_add_f32 {T1}, 0x42000000, {T0}")
            A(f"v_mul_f32 {T1}, {f32bits(BIG):#x}, {T1}")
            b = SB[p] + q*16
            for r in range(16):
                cr = 8*(r >> 2) + (r & 3)
                A(f"v_add_f32 {T2}, {f32bits(-cr*BIG):#x}, {T1}" if cr else f"v_mov_b32 {T2}, {T1}")
                A(f"v_min_f32 v{b+r}, v{b+r}, {T2}")
    def rescaleO(blocks=None):
        A("s_nop 7"); A("s_nop 7")
        for (gq, d, q) in (blocks or allO):
            f, b = Oreg(gq, d, q)
            for r in range(16):
                if f == "v":
                    A(f"v_mul_f32 v{b+r}, v{b+r}, {FAC[q]}")
                else:
                    A(f"v_accvgpr_read_b32 {T0}, a{b+r}")
                    A(f"v_mul_f32 {T0}, {T0}, {FAC[q]}")
                    A(f"v_accvgpr_write_b32 a{b+r}, {T0}")
        A("s_nop 1")
    rare_blocks = []
    def P1(p, tag):
        def maskbr():
            A("s_cmp_ge_u32 s40, s41")
            A(f"s_cbranch_scc1 PC_MASK_{tag}")
            A.label(f"PC_MASKRET_{tag}")
        def chk():
            A(f"v_cmp_gt_f32 vcc, {TM[0]}, {THR[0]}")
            A(f"v_cmp_gt_f32 s[50:51], {TM[1]}, {THR[1]}")
            A("s_or_b64 s[50:51], vcc, s[50:51]")
            A(f"s_cbranch_scc1 PC_RARE_{tag}")
            A.label(f"PC_RARERET_{tag}")
        rare_blocks.append((p, tag))
        return [maskbr] + maxq(p, 0) + maxq(p, 1) + [chk, "s_add_u32 s40, s40, 1"] + expq(p, 0)[:CUT]
    STEP = 32768
    def pack_l(gq, addr, off, tmp):
        out = []
        for d in range(2):
            for q in range(2):
                f, b = Oreg(gq, d, q)
                if f == "a":
                    t = tmp + ((d*2+q) % 2) * 16
                    out += [f"v_accvgpr_read_b32 v{t+r}, a{b+r}" for r in range(16)]
                    b = t
                out += [f"v_cvt_pk_bf16_f32 v{b+r}, v{b+2*r}, v{b+2*r+1}" for r in range(8)]
                out += [f"ds_write_b128 {addr}, {v(b+4*s_,4)} offset:{off + ((d*2+q)*2+s_)*1024}" for s_ in range(2)]
        return out
    def xaddr(dst, wreg):
        A(f"s_lshr_b32 s43, {wreg}, 1")
        A("s_mul_i32 s43, s43, 98304")
        A(f"s_and_b32 {dst}, {wreg}, 1")
        A(f"s_lshl_b32 {dst}, {dst}, 14")
        A(f"s_add_u32 {dst}, {dst}, s43")
        A(f"s_add_u32 {dst}, {dst}, 32768")
    def seg_head():
        A("s_sub_u32 s6, 31, s5")
        A("s_cmp_eq_u32 s34, 0")
        A("s_cselect_b32 s6, s6, s5")
        A("s_lshl_b32 s41, s6, 1")
        A("s_mov_b32 s42, 0")
        A(f"v_mov_b32 {LS[0]}, 0"); A(f"v_mov_b32 {LS[1]}, 0")
        xaddr("s45", "s3")
        A("s_lshl_b32 s43, s3, 15")
        A("s_lshl_b32 s44, s64, 1")
        A("s_add_u32 s43, s43, s44")
        A("s_lshr_b32 s44, s3, 1")
        A("s_xor_b32 s49, s34, 1")
        A("s_and_b32 s49, s49, s44")
        A("s_cselect_b32 s45, s43, s45")
        A(f"v_add_u32 v28, s45, {VL16}")
        A("s_mov_b32 s36, s35")
        A(f"s_add_u32 s43, s35, {STEP}")
        A(f"s_add_u32 s44, s35, {STEP+4096}")
        A("s_add_u32 s45, s35, 16384")
        A("s_add_u32 s38, s45, s64")
        A("s_add_u32 s39, s45, s65")
        A("s_cmp_gt_u32 s7, 1")
        A("s_cselect_b32 s43, s43, s38")
        A("s_cselect_b32 s44, s44, s39")
        A("s_waitcnt lgkmcnt(0)")
    seg_head()
    stream(X_items(0, ["s43", "s44"]), [])
    A.label("PC_X0DONE")
    A("s_nop 7"); A("s_nop 3")
    A("s_cmp_ge_u32 s40, s41")
    A("s_cbranch_scc0 PC_NOMASK0")
    mask_code(0)
    A.label("PC_NOMASK0")
    for x in maxq(0, 0) + maxq(0, 1): A(x)
    xhalf(A, "v_max_f32", TM[0], T0)
    xhalf(A, "v_max_f32", TM[1], T1)
    A("s_lshl_b32 s45, s34, 10")
    A(f"v_add_u32 {T1}, s45, {VSTAT}")
    A("s_cmp_lg_u32 s52, 0")
    A("s_cbranch_scc1 PC_NOPUB")
    A("s_lshl_b32 s43, s3, 2")
    A(f"v_add_u32 {T0}, s43, {T1}")
    A(f"v_xor_b32 {T2}, 1024, {T0}")
    A(f"v_mov_b32 v{SB[1]}, {f32bits(-BIG):#x}")
    for q in range(2):
        A(f"ds_write_b32 {T0}, {TM[q]} offset:{q*512}")
        A(f"ds_write_b32 {T2}, v{SB[1]} offset:{q*512}")
    A(f"v_and_b32 v{SB[1]+2}, 7, v2")
    A(f"v_lshlrev_b32 v{SB[1]+2}, 2, v{SB[1]+2}")
    A("s_lshl_b32 s45, s4, 6")
    A(f"s_add_u32 s45, s45, {F_KV*4+32}")
    poll(g, SB[1] + 3, f"v{SB[1]+2}", "s45")
    A("s_waitcnt lgkmcnt(0)")
    A("s_barrier")
    A.label("PC_NOPUB")
    for q in range(2):
        A(f"ds_read_b128 {v(SB[1]+q*4,4)}, {T1} offset:{q*512}")
    A("s_waitcnt lgkmcnt(0)")
    for q in range(2):
        b = SB[1] + q*4
        A(f"v_max3_f32 {MR[q]}, v{b}, v{b+1}, v{b+2}")
        A(f"v_max_f32 {MR[q]}, {MR[q]}, v{b+3}")
        A(f"v_add_f32 {THR[q]}, s69, {MR[q]}")
        A(f"v_cmp_gt_f32 vcc, {TM[q]}, {THR[q]}")
        A("s_nop 1")
        A(f"v_cndmask_b32 {MR[q]}, {MR[q]}, {TM[q]}, vcc")
        A(f"v_mul_f32 {MC[q]}, s68, {MR[q]}")
        A(f"v_add_f32 {THR[q]}, s69, {MR[q]}")
    A("s_add_u32 s40, s40, 1")
    for x in expq(0, 0)[:CUT]: A(x)
    A("s_cmp_eq_u32 s7, 1")
    A("s_cbranch_scc1 PC_TAILF")
    def body(p, tag, first=False):
        A(f"s_add_u32 s36, s35, {STEP}")
        A("s_add_u32 s37, s35, 16384")
        A("s_add_u32 s43, s37, s64")
        A("s_add_u32 s44, s37, s65")
        stream(X_items(p ^ 1, ["s43", "s44"]), expq(p, 0)[CUT:] + expq(p, 1))
        A(f"s_add_u32 s43, s35, {2*STEP}")
        A(f"s_add_u32 s44, s35, {2*STEP+4096}")
        A(f"s_add_u32 s45, s35, {STEP+16384}")
        A("s_add_u32 s38, s45, s64")
        A("s_add_u32 s39, s45, s65")
        A("s_cmp_gt_u32 s7, 2")
        A("s_cselect_b32 s43, s43, s38")
        A("s_cselect_b32 s44, s44, s39")
        if WOT:
            A(f"s_cmp_le_u32 s7, {WOT}")
            A("s_cselect_b32 s71, s70, 0x7ff00000")
            A("s_cselect_b32 s45, 4096, 0")
            A("s_add_u32 s70, s70, s45")
            A(f"v_lshlrev_b32 {T0}, 2, {VL16}")
            A(f"buffer_load_dword v{SB[p]+15}, {T0}, s[24:27], s71 offen")
        stream(Y_items(p, ["s43", "s44"], first), P1(p ^ 1, tag), first_gap=2)
        A("s_cmp_lg_u32 s42, 0")
        A(f"s_cbranch_scc1 PC_PEND_{tag}")
        A.label(f"PC_PENDRET_{tag}")
        A(f"s_add_u32 s35, s35, {STEP}")
        A("s_sub_u32 s7, s7, 1")
        A("s_cmp_eq_u32 s7, 1")
    body(0, "BF", first=True)
    A("s_cbranch_scc1 PC_TAIL1")
    A("s_branch PC_LOOPB")
    A.label("PC_LOOP")
    body(0, "B0")
    A("s_cbranch_scc1 PC_TAIL1")
    A.label("PC_LOOPB")
    body(1, "B1")
    A("s_cbranch_scc0 PC_LOOP")
    for (lab, p, first) in (("0", 0, False), ("1", 1, False), ("F", 0, True)):
        A.label(f"PC_TAIL{lab}")
        for x in expq(p, 0)[CUT:] + expq(p, 1): A(x)
        A("s_add_u32 s37, s35, 16384")
        A("s_cmp_lg_u32 s53, 0")
        A(f"s_cselect_b32 s43, s48, {KV_SZ:#x}")
        A("s_add_u32 s44, s43, 4096")
        items = Y_items(p, ["s43", "s44"], first)
        qr = [f"ds_read_b128 {a(QA+4*i,4)}, {VL16} offset:{i*1024}" for i in range(32)]
        stream(items[:12], qr)
        stream(items[12:20], pack_l(0, "v28", 0, 0))
        stream(items[20:], pack_l(1, "v28", 8192, 0))
        if lab != "F": A("s_branch PC_SEGEND")
    A.label("PC_SEGEND")
    ST(9)
    xhalf(A, "v_add_f32", LS[0], T0)
    xhalf(A, "v_add_f32", LS[1], T1)
    def put_stats(slot_sgpr):
        A(f"v_add_u32 {T0}, {slot_sgpr}, {VSTR}")
        for q in range(2):
            A(f"v_mov_b32 v{SB[1]+2*q}, {MR[q]}")
            A(f"v_mov_b32 v{SB[1]+2*q+1}, {LS[q]}")
            A(f"ds_write_b64 {T0}, {v(SB[1]+2*q,2)} offset:{q*2048}")
    A("s_cmp_eq_u32 s49, 0")
    A("s_cbranch_scc1 PC_NODUMP")
    A("s_lshl_b32 s45, s3, 3")
    A("s_add_u32 s45, s45, 16")
    put_stats("s45")
    A(f"v_xor_b32 {T2}, 0x4000, v28")
    A("s_mov_b32 s34, 1")
    A("s_cmp_eq_u32 s53, 0")
    A("s_cbranch_scc1 PC_EMPTIED")
    A("s_mov_b32 s7, s53")
    A("s_mov_b32 s53, 0")
    A("s_mov_b32 s52, 1")
    A("s_mov_b32 s40, 0")
    A("s_mov_b32 s35, s48")
    seg_head()
    stream(X_items(0, ["s43", "s44"]), pack_l(2, T2, 0, SB[1]) + pack_l(3, T2, 8192, SB[1]))
    A("s_branch PC_X0DONE")
    A.label("PC_EMPTIED")
    for x in pack_l(2, T2, 0, SB[0]) + pack_l(3, T2, 8192, SB[0]): A(x)
    for x in zeroO()[128:]: A(x)
    for q in range(2):
        A(f"v_mov_b32 {MR[q]}, {f32bits(-BIG):#x}"); A(f"v_mov_b32 {LS[q]}, 0")
    A.label("PC_NODUMP")
    A("s_lshl_b32 s45, s3, 3")
    put_stats("s45")
    A.label("PC_SENT")
    A("s_waitcnt lgkmcnt(0)")
    A("s_barrier")
    A("s_lshr_b32 s45, s3, 1")
    A("s_lshl_b32 s45, s45, 4")
    A(f"v_add_u32 {T0}, s45, {VSTR}")
    for q in range(2):
        A(f"ds_read_b128 {v(SB[0]+q*8,4)}, {T0} offset:{q*2048}")
        A(f"ds_read_b128 {v(SB[0]+q*8+4,4)}, {T0} offset:{q*2048+32}")
    A("s_cmp_ge_u32 s56, 50"); A("s_cselect_b32 s57, 1, 0")
    A("s_cmp_eq_u32 s3, 3"); A("s_cselect_b32 s58, s57, 0")
    A("s_cmp_eq_u32 s3, 2"); A("s_cselect_b32 s57, s57, 0")
    A("s_cmp_gt_u32 s56, 34"); A("s_cselect_b32 s59, 1, 0")
    A("s_cmp_gt_u32 s56, 50"); A("s_cselect_b32 s60, 1, 0")
    A("s_cmp_lt_u32 s3, 2"); A("s_cselect_b32 s59, s59, 0"); A("s_cselect_b32 s60, s60, 0")
    A("s_and_b32 s45, s3, 1")
    A("s_cmp_eq_u32 s45, 1")
    A("s_cselect_b64 s[62:63], -1, 0")
    A("s_waitcnt lgkmcnt(0)")
    for q in range(2):
        b = SB[0] + q*8
        A(f"v_max3_f32 {T0}, v{b}, v{b+2}, v{b+4}")
        A(f"v_max_f32 {T0}, {T0}, v{b+6}")
        for e in range(4):
            A(f"v_sub_f32 v{b+2*e}, v{b+2*e}, {T0}")
            A(f"v_mul_f32 v{b+2*e}, s68, v{b+2*e}")
            A(f"v_exp_f32 v{b+2*e}, v{b+2*e}")
        A("s_nop 0")
        A(f"v_mul_f32 {LS[q]}, v{b}, v{b+1}")
        for e in range(1, 4):
            A(f"v_fmac_f32 {LS[q]}, v{b+2*e}, v{b+2*e+1}")
        A(f"v_rcp_f32 {LS[q]}, {LS[q]}")
        A(f"v_cndmask_b32 {FAC[q]}, v{b}, v{b+2}, s[62:63]")
        A(f"v_cndmask_b32 {TM[q]}, v{b+2}, v{b}, s[62:63]")
    own = allO[8:]
    def store_addrs():
        A("s_sub_u32 s6, 31, s5")
        A("s_cmp_lt_u32 s3, 2")
        A("s_cselect_b32 s6, s6, s5")
        A("s_lshl_b32 s45, s6, 19")
        A("s_lshl_b32 s43, s4, 14")
        A("s_add_u32 s45, s45, s43")
        A("s_and_b32 s43, s3, 1")
        A("s_lshl_b32 s43, s43, 13")
        A("s_add_u32 s45, s45, s43")
        A("s_add_u32 s44, s45, 262144")
        A("s_add_u32 s46, s45, 4096")
        A("s_add_u32 s47, s44, 4096")
    def final_l(n_, tmp):
        gq, d, q = own[n_]
        f, b = Oreg(gq, d, q)
        t = tmp + (n_ % 2) * 16
        out = []
        if f == "a":
            out += [f"v_accvgpr_read_b32 v{t+r}, a{b+r}" for r in range(16)]
            b = t
        out += [f"v_pk_mul_f32 {v(t+r,2)}, {v(b+r,2)}, v[12:13] op_sel:[0,{q}] op_sel_hi:[1,{q}]" for r in range(0, 16, 2)]
        out += [f"v_cvt_pk_bf16_f32 v{t+r}, v{t+2*r}, v{t+2*r+1}" for r in range(8)]
        out += [f"buffer_store_dwordx4 {v(t+4*s_,4)}, {VL16}, s[20:23], s{[45,44,46,47][(gq-2)*2+q]} offen offset:{(2*d+s_)*1024}{SC}" for s_ in range(2)]
        return out
    def neq(dst, f2, absent_if, absent_val):
        A(f"v_cmp_neq_f32 vcc, 1.0, {f2[0]}")
        A(f"v_cmp_neq_f32 s[50:51], 1.0, {f2[1]}")
        A("s_or_b64 s[50:51], vcc, s[50:51]")
        A("s_cselect_b32 s43, 1, 0")
        A(f"s_cmp_eq_u32 {absent_if}, {absent_val}")
        A("s_cselect_b32 s43, 0, s43")
        A(f"s_or_b32 {dst}, {dst}, s43")
    FD = [[f"v{SB[0]+q*8+4+2*k}" for q in range(2)] for k in range(2)]
    A("s_mov_b32 s42, 0")
    neq("s42", FAC, "s57", 1); neq("s42", TM, "s58", 1); neq("s42", FD[0], "s59", 0); neq("s42", FD[1], "s60", 0)
    A("s_cmp_lg_u32 s42, 0")
    A("s_cbranch_scc1 PC_SLOW")
    A("s_xor_b32 s44, s3, 1")
    xaddr("s45", "s44")
    A("s_cmp_eq_u32 s58, 0"); A("s_cselect_b32 s45, s45, 0"); A("s_cselect_b32 s36, -1, 0")
    A(f"v_add_u32 {T0}, s45, {VL16}")
    A("s_lshl_b32 s45, s3, 14"); A("s_add_u32 s45, s45, 65536"); A("s_add_u32 s44, s45, 32768")
    A("s_cmp_lg_u32 s59, 0"); A("s_cselect_b32 s45, s45, 0"); A("s_cselect_b32 s37, -1, 0")
    A(f"v_add_u32 {T1}, s45, {VL16}")
    A("s_cmp_lg_u32 s60, 0"); A("s_cselect_b32 s44, s44, 0"); A("s_cselect_b32 s38, -1, 0")
    A(f"v_add_u32 {T2}, s44, {VL16}")
    SRC = [T0, T1, T2]
    FRB = 128
    def frd(n_): return [f"ds_read_b128 {v(FRB+(n_%4)*24+(k*2+s_)*4,4)}, {SRC[k]} offset:{(n_*2+s_)*1024}" for k in range(3) for s_ in range(2)]
    for n_ in range(3): emit(g, frd(n_))
    SELX = 32
    for k in range(3):
        for r in range(8): A(f"v_and_b32 v{SELX+k*8+r}, s{36+k}, v{SEL[0]+r}")
    store_addrs()
    pend = []
    for n_ in range(8):
        A(f"s_waitcnt lgkmcnt({6*min(2, 7-n_)})")
        acc = OR(*own[n_])
        items = [([], f"v_mfma_f32_32x32x16_bf16 {acc}, {v(SELX+k*8+4*s_,4)}, {v(FRB+(n_%4)*24+(k*2+s_)*4,4)}, {acc}", []) for k in range(3) for s_ in range(2)]
        stream(items, (frd(n_ + 3) if n_ + 3 < 8 else []) + pend)
        pend = final_l(n_ - 1, SB[1]) if n_ >= 1 else []
    for x in pend: A(x)
    for x in final_l(7, SB[1]): A(x)
    A("s_branch PC_DONE")
    A.label("PC_SLOW")
    A("s_cmp_lg_u32 s57, 0")
    A("s_cbranch_scc1 PC_NORESC")
    A(f"v_cmp_neq_f32 vcc, 1.0, {FAC[0]}")
    A(f"v_cmp_neq_f32 s[50:51], 1.0, {FAC[1]}")
    A("s_or_b64 s[50:51], vcc, s[50:51]")
    A("s_cbranch_scc0 PC_NORESC")
    rescaleO(own)
    A.label("PC_NORESC")
    RB = 128
    def receive(tag, fq):
        for i in range(16):
            A(f"ds_read_b128 {v(RB+4*i,4)}, {T1} offset:{i*1024}")
        A(f"v_cmp_neq_f32 vcc, 1.0, {fq[0]}")
        A(f"v_cmp_neq_f32 s[50:51], 1.0, {fq[1]}")
        A("s_or_b64 s[50:51], vcc, s[50:51]")
        A(f"s_cbranch_scc0 PC_RX_{tag}")
        A("s_waitcnt lgkmcnt(0)")
        for i in range(16):
            q = (i >> 1) & 1
            for r in range(4):
                x = f"v{RB+4*i+r}"
                A(f"v_lshlrev_b32 {T0}, 16, {x}")
                A(f"v_and_b32 {x}, 0xffff0000, {x}")
                A(f"v_mul_f32 {T0}, {T0}, {fq[q]}")
                A(f"v_mul_f32 {x}, {x}, {fq[q]}")
                A(f"v_cvt_pk_bf16_f32 {x}, {T0}, {x}")
        A("s_nop 1")
        A.label(f"PC_RX_{tag}")
        for i in range(16):
            gq, d, q, s_ = 2 + (i >> 3), (i >> 2) & 1, (i >> 1) & 1, i & 1
            A(f"s_waitcnt lgkmcnt({15-i})")
            acc = OR(gq, d, q)
            A(f"v_mfma_f32_32x32x16_bf16 {acc}, {v(SEL[s_],4)}, {v(RB+4*i,4)}, {acc}")
    A("s_cmp_lg_u32 s58, 0")
    A("s_cbranch_scc1 PC_NOP")
    A("s_xor_b32 s44, s3, 1")
    xaddr("s45", "s44")
    A(f"v_add_u32 {T1}, s45, {VL16}")
    receive("P", TM)
    A.label("PC_NOP")
    for k, fl in ((0, "s59"), (1, "s60")):
        A(f"s_cmp_eq_u32 {fl}, 0")
        A(f"s_cbranch_scc1 PC_NOD{k}")
        A("s_lshl_b32 s45, s3, 14")
        A(f"s_add_u32 s45, s45, {65536 + k*32768}")
        A(f"v_add_u32 {T1}, s45, {VL16}")
        receive(f"D{k}", [f"v{SB[0]+q*8+4+2*k}" for q in range(2)])
        A.label(f"PC_NOD{k}")
    store_addrs()
    A("s_nop 7")
    for n_ in range(8):
        for x in final_l(n_, SB[1]): A(x)
    A("s_branch PC_DONE")
    for (p, tag) in rare_blocks:
        A.label(f"PC_MASK_{tag}")
        mask_code(p)
        A(f"s_branch PC_MASKRET_{tag}")
        A.label(f"PC_RARE_{tag}")
        for q in range(2):
            xhalf(A, "v_max_f32", TM[q], T0)
            A(f"v_max_f32 {TM[q]}, {TM[q]}, {MR[q]}")
            A(f"v_sub_f32 {T1}, {MR[q]}, {TM[q]}")
            A(f"v_mul_f32 {T1}, s68, {T1}")
            A(f"v_exp_f32 {FAC[q]}, {T1}")
            A(f"v_mov_b32 {MR[q]}, {TM[q]}")
            A(f"v_mul_f32 {MC[q]}, s68, {MR[q]}")
            A(f"v_add_f32 {THR[q]}, s69, {MR[q]}")
            A(f"v_mul_f32 {LS[q]}, {LS[q]}, {FAC[q]}")
        A("s_mov_b32 s42, 1")
        A(f"s_branch PC_RARERET_{tag}")
        A.label(f"PC_PEND_{tag}")
        rescaleO()
        A("s_mov_b32 s42, 0")
        A(f"s_branch PC_PENDRET_{tag}")
    A.label("PC_DONE")
    ST(10)

def reduce4(ACC):
    o = ["v_add_u32 v4, s86, v5", "s_nop 7", "s_nop 2"]
    for b in range(4):
        for r in range(4):
            o.append(f"ds_write_b128 v4, {v(ACC+b*16+4*r,4)} offset:{b*4096 + r*1024}")
    o += ["s_waitcnt lgkmcnt(0)", "s_barrier", "s_lshl_b32 s45, s3, 12", "v_add_u32 v4, s45, v5", "v_add_u32 v28, 81920, v4"]
    for src in range(4):
        for r in range(4):
            o.append(f"ds_read_b128 {v(ACC+src*16+4*r,4)}, {'v4' if src < 2 else 'v28'} offset:{(src%2)*40960 + r*1024}")
    o.append("s_waitcnt lgkmcnt(0)")
    for r in range(0, 16, 2):
        o.append(f"v_pk_add_f32 {v(ACC+r,2)}, {v(ACC+r,2)}, {v(ACC+16+r,2)}")
        o.append(f"v_pk_add_f32 {v(ACC+32+r,2)}, {v(ACC+32+r,2)}, {v(ACC+48+r,2)}")
    for r in range(0, 16, 2):
        o.append(f"v_pk_add_f32 {v(ACC+r,2)}, {v(ACC+r,2)}, {v(ACC+32+r,2)}")
    return o

def add_resid(ACC, RES, OUT):
    o = []
    for r in range(8):
        o.append(f"v_cvt_pk_bf16_f32 v{ACC+16+r}, v{ACC+2*r}, v{ACC+2*r+1}")
    for r in range(8):
        o += [f"v_lshlrev_b32 v{ACC+2*r}, 16, v{ACC+16+r}", f"v_and_b32 v{ACC+2*r+1}, 0xffff0000, v{ACC+16+r}",
              f"v_lshlrev_b32 v{ACC+32+2*r}, 16, v{RES+r}", f"v_and_b32 v{ACC+32+2*r+1}, 0xffff0000, v{RES+r}"]
    for r in range(0, 16, 2):
        o.append(f"v_pk_add_f32 {v(ACC+r,2)}, {v(ACC+r,2)}, {v(ACC+32+r,2)}")
    for r in range(8):
        o.append(f"v_cvt_pk_bf16_f32 v{OUT+r}, v{ACC+2*r}, v{ACC+2*r+1}")
    return o

def xhalf_l(op, x, t):
    return [f"v_mov_b32 {t}, {x}", "s_nop 1", f"v_permlane32_swap_b32 {x}, {t}", f"{op} {x}, {x}, {t}"]

def mix(g, main, side, every):
    k = 0
    for i, x in enumerate(main):
        emit(g, [x])
        if (i + 1) % every == 0 and k < len(side) and not (isinstance(x, str) and x.startswith("s_nop")):
            emit(g, side[k]); k += 1
    return side[k:]

def phaseDEF(g):
    A, ST, vm = g.A, g.ST, g.vm
    vm.ops = []
    ACC = 32
    A("s_load_dwordx2 s[36:37], s[0:1], 0")
    A("s_load_dwordx2 s[38:39], s[0:1], 72")
    A("s_load_dwordx2 s[56:57], s[0:1], 40")
    A("s_load_dwordx4 s[60:63], s[0:1], 56")
    A("s_lshr_b32 s40, s2, 3")
    A("s_mul_i32 s6, s40, 9363")
    A("s_lshr_b32 s6, s6, 16")
    A("s_mul_i32 s7, s6, 7")
    A("s_sub_u32 s7, s40, s7")
    A("s_and_b32 s41, s2, 7")
    A("s_lshl_b32 s41, s41, 2")
    A("s_add_u32 s6, s6, s41")
    A("s_mul_i32 s86, s3, 40960")
    A(f"s_mul_i32 s42, s3, {1024*896}")
    A("s_lshl_b32 s44, s7, 7")
    A("s_add_u32 s42, s42, s44")
    A(f"s_mul_i32 s43, s6, {2*256*1024}")
    A("s_lshl_b32 s44, s3, 16")
    A("s_add_u32 s43, s43, s44")
    A(f"v_add_u32 v6, {256*1024}, v5")
    W = 20
    CW = int(os.environ.get("CW", "8"))
    NR = 16 + (256 - 8*CW) // 8
    wo = Stager(g, "s[32:35]", 896, "s42", "s86", [2048*i for i in range(W)], "v0", "v1", "v3", "v28", "a")
    wo.setup(("v32", "v33")); wo.setup_tr(("v32", "v33"))
    A("s_mov_b32 s58, s42"); A("s_mov_b32 s59, s43"); A("s_and_b32 s53, s2, 7")
    wo_dma0 = wo.dma
    def wo_dma(ks):
        pre = []
        if ROT and ks % 8 == 0:
            pre = [f"s_add_u32 s42, s53, {ks//8}", "s_and_b32 s42, s42, 7", f"s_mul_i32 s42, s42, {8*16*896}", "s_add_u32 s42, s42, s58"]
        return pre + wo_dma0(ks)
    wo.dma = wo_dma
    A("s_waitcnt vmcnt(0) lgkmcnt(0)")
    A("s_barrier")
    ST(23)
    srd(A, 32, 56, 4096*448*2); srd(A, 76, 60, 448*1792*2); srd(A, 80, 62, 448*1792*2)
    A("s_lshl_b32 s45, s5, 6"); A("s_lshl_b32 s44, s4, 2"); A("s_add_u32 s45, s45, s44")
    A(f"s_add_u32 s45, s45, {F_CTX*4}")
    set_flag(g, "s45")
    A("s_sub_u32 s45, 31, s5"); A("s_lshl_b32 s45, s45, 6"); A("s_add_u32 s45, s45, s44")
    A(f"s_add_u32 s45, s45, {F_CTX*4}")
    set_flag(g, "s45")
    A("s_cmp_lt_u32 s40, 28")
    A("s_cbranch_scc0 MEGA_FIN")
    for ks in range(W): emit(g, wo.dma(ks))
    ws_srd(A, 16, 54, H_OFF, H_SZ)
    srd(A, 24, 36, 2048*448*2)
    srd(A, 28, 38, 2048*448*2)
    ws_srd(A, 8, 54, HS_OFF, HS_SZ)
    A("s_lshr_b32 s46, s3, 1"); A("s_lshl_b32 s45, s7, 1"); A("s_add_u32 s46, s46, s45")
    A("s_and_b32 s47, s3, 1"); A("s_lshl_b32 s45, s6, 1"); A("s_add_u32 s47, s47, s45")
    A("v_and_b32 v7, 31, v2")
    A("v_lshrrev_b32 v8, 5, v2")
    A("s_lshl_b32 s45, s47, 5")
    A("v_add_u32 v7, s45, v7")
    A("v_mul_u32_u24 v9, 896, v7")
    A("v_lshl_add_u32 v9, v8, 3, v9")
    A("s_lshl_b32 s48, s46, 6")
    A("s_mul_i32 s49, s47, 28672")
    A("s_lshl_b32 s45, s46, 11")
    A("s_add_u32 s49, s49, s45")
    for gq in range(4):
        A(f"buffer_load_dwordx2 {v(12+2*gq,2)}, v9, s[24:27], s48 offen offset:{16*gq}")
    vm.issue(("x", 0), 4)
    def wreg(ks): return (v, 128 + 8*ks) if ks < 16 else (a, 8*CW + 8*(ks-16))
    for ks in range(NR + 2):
        if ks < NR:
            A(f"s_waitcnt vmcnt({vm.newer(lambda t: t == ('a', ks))})")
            rf, b = wreg(ks)
            emit(g, wo.tr(ks, b, b + 4, rf=rf))
        k2 = ks - 2
        if k2 >= 0:
            A(f"s_waitcnt lgkmcnt({4*min(2, NR-1-k2)})")
            if k2 + W < 64: emit(g, wo.dma(k2 + W))
    A("v_and_b32 v10, 15, v2")
    A("v_lshlrev_b32 v10, 2, v10")
    A("s_lshl_b32 s45, s6, 6")
    A(f"s_add_u32 s45, s45, {F_CTX*4}")
    ST(22)
    poll(g, 11, "v10", "s45")
    ST(11)
    def ldB(ks):
        o = (ks % 4) * 1024; sl = ks % CW
        pre = []
        if ROT and ks % 8 == 0:
            pre = [f"s_add_u32 s43, s53, {ks//8}", "s_and_b32 s43, s43, 7", "s_lshl_b32 s43, s43, 13", "s_add_u32 s43, s43, s59"]
        out = pre + [(f"buffer_load_dwordx4 {a(sl*8,4)}, v5, s[20:23], s43 offen offset:{o}{SC}", ("b", ks)),
               (f"buffer_load_dwordx4 {a(sl*8+4,4)}, v6, s[20:23], s43 offen offset:{o}{SC}", ("b", ks))]
        if ks % 4 == 3: out.append("s_add_u32 s43, s43, 4096")
        return out
    for ks in range(CW): emit(g, ldB(ks))
    WF = [96, 104, 112, 120]
    for ks in range(64):
        nxt = ks + 2
        n = vm.newer(lambda t: t == ("b", ks))
        if NR <= nxt < 64:
            n = min(n, vm.newer(lambda t: t == ("a", nxt)))
            A(f"s_waitcnt vmcnt({n})")
            emit(g, wo.tr(nxt, WF[nxt % 4], WF[nxt % 4] + 4))
        else:
            A(f"s_waitcnt vmcnt({n})")
        if ks >= NR:
            A(f"s_waitcnt lgkmcnt({4*min(2, 63-ks)})")
            rf, b = v, WF[ks % 4]
        else: rf, b = wreg(ks)
        for i in range(2):
            for q in range(2):
                acc = v(ACC + (i*2+q)*16, 16)
                A(f"v_mfma_f32_32x32x16_bf16 {acc}, {rf(b+4*i,4)}, {a((ks%CW)*8+4*q,4)}, {'0' if ks == 0 else acc}")
        if NR <= ks and ks + W < 64: emit(g, wo.dma(ks + W))
        if ks + CW < 64: emit(g, ldB(ks + CW))
    ST(12)
    HP = 20
    A("s_lshl_b32 s42, s7, 9"); A("s_lshl_b32 s45, s3, 7"); A("s_add_u32 s42, s42, s45")
    A("s_lshl_b32 s51, s7, 3"); A("s_lshl_b32 s45, s3, 1"); A("s_add_u32 s51, s51, s45")
    RS12 = [16384 + 2048*i for i in range(12)]
    w1 = Stager(g, "s[76:79]", 3584, "s42", "s86", RS12, "v0", "v1", "v3", "v8", "w1")
    w1.setup(("v96", "v97"))
    A("v_xor_b32 v8, 64, v3")
    vm.ops = []
    ep = reduce4(ACC) + add_resid(ACC, 12, HP)
    for s_ in range(2):
        ep.append((f"buffer_store_dwordx4 {v(HP+4*s_,4)}, v5, s[16:19], s49 offen offset:{1024*s_}{SC}", ("hs", 0)))
    for r in range(8):
        ep += [f"v_lshlrev_b32 v{ACC+2*r}, 16, v{HP+r}", f"v_and_b32 v{ACC+2*r+1}, 0xffff0000, v{HP+r}"]
    ep += [f"v_add_f32 v10, v{ACC}, v{ACC+1}"] + [f"v_add_f32 v10, v10, v{ACC+r}" for r in range(2, 16)]
    ep += xhalf_l("v_add_f32", "v10", "v12") + ["v_mul_f32 v13, 0x3d000000, v10", "v_mov_b32 v11, 0"]
    for r in range(16):
        ep += [f"v_sub_f32 v12, v{ACC+r}, v13", "v_fmac_f32 v11, v12, v12"]
    ep += xhalf_l("v_add_f32", "v11", "v12") + ["v_and_b32 v12, 31, v2", "v_lshlrev_b32 v12, 3, v12", "s_mul_i32 s45, s47, 3584", "s_lshl_b32 s44, s46, 8", "s_add_u32 s45, s45, s44"]
    ep.append((f"buffer_store_dwordx2 v[10:11], v12, s[8:11], s45 offen{SC}", ("hs", 0)))
    mix(g, ep, [w1.dma(ks) for ks in range(12)], 8)
    A(f"s_waitcnt vmcnt({vm.newer(lambda t: t[0] == 'hs')})")
    A("s_barrier")
    A("s_lshl_b32 s45, s6, 5"); A("s_lshl_b32 s44, s7, 2"); A("s_add_u32 s45, s45, s44")
    A(f"s_add_u32 s52, s45, {F_H1*4}")
    A(f"s_add_u32 s45, s45, {F_H*4}")
    set_flag(g, "s45")
    ST(13)
    for r in range(4): A(f"v_mov_b32 v{12+r}, 0x3f803f80")
    CS = 96
    def drain(stg, fn=None):
        for ks in range(28 + 2):
            if ks < 28:
                A(f"s_waitcnt vmcnt({vm.newer(lambda t: t == (stg.tag, ks))})")
                emit(g, stg.tr(ks, 4*ks, 4*(28+ks), rf=a))
            k2 = ks - 2
            if k2 >= 0:
                A(f"s_waitcnt lgkmcnt({4*min(2, 27-k2)})")
                if fn: fn(k2)
                if k2 + 12 < 28: emit(g, stg.dma(k2 + 12))
    def cs_mfma(ks):
        for i in range(2):
            acc = v(CS + i*16, 16)
            A(f"v_mfma_f32_32x32x16_bf16 {acc}, {a(4*(i*28+ks),4)}, v[12:15], {'0' if ks == 0 else acc}")
    drain(w1, cs_mfma)
    A("v_and_b32 v10, 7, v2")
    A("v_min_u32 v10, 6, v10")
    A("v_lshlrev_b32 v10, 2, v10")
    A("s_lshl_b32 s45, s6, 5")
    A(f"s_add_u32 s45, s45, {F_H*4}")
    poll(g, 11, "v10", "s45")
    ST(14)
    A("s_mul_i32 s42, s6, 57344")
    A("s_mul_i32 s43, s3, 14336")
    A("s_add_u32 s42, s42, s43")
    for i in range(14):
        if i % 4 == 0:
            A(f"s_add_u32 m0, s86, {i*1024}")
            A(f"s_add_u32 s44, s42, {i*1024}")
        A(f"buffer_load_dwordx4 v5, s[16:19], s44 offen offset:{(i%4)*1024}{SC} lds")
    A("v_and_b32 v10, 31, v2")
    A("v_lshlrev_b32 v10, 3, v10")
    A("s_mul_i32 s45, s6, 7168")
    A("s_add_u32 s44, s45, 3584")
    STB = [128, 156]
    for q in range(2):
        for i in range(14):
            A(f"buffer_load_dwordx2 {v(STB[q]+2*i,2)}, v10, s[8:11], {'s44' if q else 's45'} offen offset:{256*i}{SC}")
    A(f"s_mul_i32 s42, s3, {448*896}")
    A("s_lshl_b32 s44, s7, 7")
    A("s_add_u32 s42, s42, s44")
    w2 = Stager(g, "s[80:83]", 896, "s42", "s86", RS12, "v0", "v1", "v3", "v8", "w2")
    w2.setup(("v192", "v193"))
    A("v_add_u32 v6, 81920, v5")
    vm.ops = [("st", 0)] * 28
    A("s_waitcnt vmcnt(28)")
    A("s_barrier")
    MB_ = ["v16", "v17"]; RS = ["v18", "v19"]
    stats = [lambda: A(f"s_waitcnt vmcnt({vm.newer(lambda t: t[0] == 'st')})")]
    for q in range(2):
        b = STB[q]
        stats += [f"v_add_f32 v10, v{b}, v{b+2}"] + [f"v_add_f32 v10, v10, v{b+2*i}" for i in range(2, 14)]
        stats += ["v_mul_f32 v10, 0x3b124925, v10", f"v_add_f32 v11, v{b+1}, v{b+3}"] + [f"v_add_f32 v11, v11, v{b+2*i+1}" for i in range(2, 14)]
        stats += ["v_mov_b32 v4, 0"]
        for i in range(14):
            stats += [f"v_mul_f32 v{b+2*i}, 0x3d000000, v{b+2*i}", f"v_sub_f32 v{b+2*i}, v{b+2*i}, v10", f"v_fmac_f32 v4, v{b+2*i}, v{b+2*i}"]
        stats += ["v_mul_f32 v4, 0x42000000, v4", "v_add_f32 v11, v11, v4", "v_mul_f32 v11, 0x3b124925, v11"]
        stats += bf16_round_l(MB_[q], "v10") + bf16_round_l("v11", "v11") + ["v_add_f32 v11, 0x3727c5ac, v11"] + bf16_round_l("v11", "v11")
        stats += ["v_sqrt_f32 v11, v11", "s_nop 0"] + bf16_round_l("v11", "v11") + [f"v_rcp_f32 {RS[q]}, v11", "s_nop 0", f"v_mul_f32 {MB_[q]}, {MB_[q]}, {RS[q]}"]
    XF = [192, 200, 208, 216]
    def xr(ks):
        out = []
        for q in range(2):
            f = q*28 + ks; src = f // 14
            out.append(f"ds_read_b128 {v(XF[ks%4]+4*q,4)}, {'v5' if src < 2 else 'v6'} offset:{(src%2)*40960 + (f%14)*1024}")
        return out
    for ks in range(3): emit(g, xr(ks))
    for ks in range(28):
        sched = {}
        if ks + 3 < 28: spread(sched, xr(ks + 3), 0, 1)
        if ks < 12: sched.setdefault(2, []).extend(w2.dma(ks))
        A(f"s_waitcnt lgkmcnt({2*min(2, 27-ks)})")
        ms = []
        for i in range(2):
            for q in range(2):
                acc = v(ACC + (i*2+q)*16, 16)
                ms.append(f"v_mfma_f32_32x32x16_bf16 {acc}, {a(4*(i*28+ks),4)}, {v(XF[ks%4]+4*q,4)}, {'0' if ks == 0 else acc}")
        run_sched(A, ms, sched, stats if ks >= 4 else [], 4, vm)
    assert not stats
    ST(15)
    ws_srd(A, 20, 54, H1_OFF, H1_SZ)
    A(f"s_mul_i32 s44, s6, {2*112*1024}")
    A("s_lshl_b32 s45, s51, 11")
    A("s_add_u32 s44, s44, s45")
    A(f"s_add_u32 s45, s44, {112*1024}")
    A(f"s_mov_b32 s50, {f32bits(-1.4426950408889634):#x}")
    A("s_mov_b32 s51, s50")
    A("v_mov_b32 v10, 1.0"); A("v_mov_b32 v11, 1.0")
    T = 128
    ep = []
    for i in range(2):
        for q in range(2):
            b = ACC + (i*2+q)*16; cs = CS + i*16
            mbp = "v[16:17]"; rsp = "v[18:19]"; sel = f"op_sel:[0,{q}] op_sel_hi:[1,{q}]"
            for r in range(0, 16, 2): ep.append(f"v_pk_mul_f32 {v(T+r,2)}, {v(cs+r,2)}, {mbp} {sel}")
            for r in range(0, 16, 2): ep.append(f"v_pk_fma_f32 {v(b+r,2)}, {v(b+r,2)}, {rsp}, {v(T+r,2)} op_sel:[0,{q},0] op_sel_hi:[1,{q},1] neg_lo:[0,0,1] neg_hi:[0,0,1]")
            for r in range(0, 16, 2): ep.append(f"v_pk_mul_f32 {v(T+r,2)}, {v(b+r,2)}, s[50:51]")
            for r in range(16): ep.append(f"v_exp_f32 v{T+r}, v{T+r}")
            for r in range(0, 16, 2): ep.append(f"v_pk_add_f32 {v(T+r,2)}, {v(T+r,2)}, v[10:11]")
            for r in range(16): ep.append(f"v_rcp_f32 v{T+r}, v{T+r}")
            for r in range(0, 16, 2): ep.append(f"v_pk_mul_f32 {v(b+r,2)}, {v(b+r,2)}, {v(T+r,2)}")
            for r in range(8): ep.append(f"v_cvt_pk_bf16_f32 v{b+r}, v{b+2*r}, v{b+2*r+1}")
            for s_ in range(2):
                ep.append((f"buffer_store_dwordx4 {v(b+4*s_,4)}, v5, s[20:23], {'s45' if q else 's44'} offen offset:{(2*i+s_)*1024}{SC}", ("h1s", 0)))
    grp = []
    for ks in range(28 + 2):
        it = []
        if ks < 28:
            it.append(lambda ks=ks: A(f"s_waitcnt vmcnt({vm.newer(lambda t: t == ('w2', ks))})"))
            it += w2.tr(ks, 4*ks, 4*(28+ks), rf=a)
        k2 = ks - 2
        if k2 >= 0 and k2 + 12 < 28:
            it.append(f"s_waitcnt lgkmcnt({4*min(2, 27-k2)})")
            it += w2.dma(k2 + 12)
        grp.append(it)
    grp = mix(g, ep, grp, W2EV)
    A(f"s_waitcnt vmcnt({vm.newer(lambda t: t[0] == 'h1s')})")
    A("s_barrier")
    set_flag(g, "s52")
    ST(16)
    for it in grp: emit(g, it)
    A("v_and_b32 v10, 7, v2")
    A("v_min_u32 v10, 6, v10")
    A("v_lshlrev_b32 v10, 2, v10")
    A("s_lshl_b32 s45, s6, 5")
    A(f"s_add_u32 s45, s45, {F_H1*4}")
    poll(g, 11, "v10", "s45")
    ST(17)
    A(f"s_mul_i32 s42, s6, {2*112*1024}")
    A("s_mul_i32 s43, s3, 28672")
    A("s_add_u32 s42, s42, s43")
    A(f"v_add_u32 v6, {112*1024}, v5")
    def ldH(ks):
        sl = ks % 14
        out = [(f"buffer_load_dwordx4 {v(96+sl*8,4)}, v5, s[20:23], s42 offen offset:{(ks%4)*1024}{SC}", ("h", ks)),
               (f"buffer_load_dwordx4 {v(96+sl*8+4,4)}, v6, s[20:23], s42 offen offset:{(ks%4)*1024}{SC}", ("h", ks))]
        if ks % 4 == 3: out.append("s_add_u32 s42, s42, 4096")
        return out
    for ks in range(14): emit(g, ldH(ks))
    A("s_waitcnt lgkmcnt(0)")
    for ks in range(28):
        A(f"s_waitcnt vmcnt({vm.newer(lambda t: t == ('h', ks))})")
        for i in range(2):
            for q in range(2):
                acc = v(ACC + (i*2+q)*16, 16)
                A(f"v_mfma_f32_32x32x16_bf16 {acc}, {a(4*(i*28+ks),4)}, {v(96+(ks%14)*8+4*q,4)}, {'0' if ks == 0 else acc}")
        if ks + 14 < 28: emit(g, ldH(ks + 14))
    ST(18)
    emit(g, reduce4(ACC) + add_resid(ACC, HP, 12))
    for gq in range(4):
        A(f"buffer_store_dwordx2 {v(12+2*gq,2)}, v9, s[28:31], s48 offen offset:{16*gq}{os.environ.get('OUTSC', '')}")

def gen_mega(stamps=False):
    g = G()
    g.A = A = Asm()
    name = "mega_kernel"
    kernel_begin(A, name)
    A("s_cmp_ge_u32 s2, 256")
    A("s_cbranch_scc0 MEGA_GO")
    A("s_endpgm")
    A.label("MEGA_GO")
    if os.environ.get("PERM"):
        A(f"s_mul_i32 s2, s2, {os.environ['PERM']}")
        A("s_add_u32 s2, s2, 11")
        A("s_and_b32 s2, s2, 255")
    g.ST = Stamps(A, stamps)
    g.ST.tmp = "s[100:101]"
    g.vm = VM()
    g.ST2 = Stamps(A, True, "v63") if (stamps and os.environ.get("STG")) else None
    if stamps:
        A("v_mov_b32 v31, 0")
        g.ST(0); g.ST(20, real=True)
    phaseA(g)
    phaseC(g)
    phaseDEF(g)
    A.label("MEGA_FIN")
    if stamps:
        A("s_waitcnt vmcnt(0)")
        g.ST(19); g.ST(21, real=True)
        if os.environ.get("DBGOUT"):
            A("s_cmp_lg_u32 s2, 9"); A("s_cbranch_scc1 NODBG"); A("s_cmp_lg_u32 s3, 0"); A("s_cbranch_scc1 NODBG")
            A("v_readlane_b32 s45, v31, 0")
            A("s_nop 1")
            A("v_subrev_u32 v31, s45, v31")
            A("v_subrev_u32 v1, 5, v2")
            A("v_cmp_gt_u32 vcc, 15, v1")
            A("v_lshlrev_b32 v1, 2, v1")
            A("s_and_saveexec_b64 s[94:95], vcc")
            A("global_store_dword v1, v31, s[92:93] offset:4")
            A("s_mov_b64 exec, s[94:95]")
            A.label("NODBG")
        else:
            g.ST.flush(54, "s3", "v2")
    A.label("MEGA_END")
    A("s_endpgm")
    return name, A.text(), kernel_desc(name, 512, 102, 256), (256, 256, 163840)
```

```python
from common import *
from k1b import rl_setup, rl_reads
import os
CSC = math.log2(math.e) / 16.0
TTHR = 8.0
BIG = 2.0 ** 100
SC = " sc1"
SPIN = 1 << 16
P1W = int(os.environ.get('P1W', '0'))
SLP = int(os.environ.get('SLP', '1'))
W2F = int(os.environ.get('W2F', '0'))
G0 = int(os.environ.get('G0', '12'))
ROT = int(os.environ.get('ROT', '1'))
WOT = int(os.environ.get('WOT', '0'))
TQ = int(os.environ.get('TQ', '2'))
TD = int(os.environ.get('TD', '1'))
NOSIDE = int(os.environ.get('NOSIDE', '0'))
TR1 = int(os.environ.get('TR1', '1'))
TR2 = int(os.environ.get('TR2', '8'))
FSA = int(os.environ.get('FSA', '16'))
LNS = int(os.environ.get('LNS', '5'))
CUT = int(os.environ.get('CUT', '46'))
W1EV = int(os.environ.get('W1EV', '6'))
W2EV = int(os.environ.get('W2EV', '40'))
TW = eval(os.environ.get('TW', '(0, 3, 6, 9, 13, 17)'))
TA = int(os.environ.get('TA', '7'))
TOUCH = int(os.environ.get('TOUCH', '1'))

class G:
    pass

def emit(g, items):
    for x in items:
        if isinstance(x, tuple): g.A(x[0]); g.vm.issue(x[1])
        elif callable(x): x()
        else: g.A(x)

def poll(g, vdst, voff, soff, n4=False, name=None):
    A = g.A
    L = A.newlabel("POLL")
    one = P1W and name == "one"
    if one:
        A("s_cmp_lg_u32 s3, 0")
        A(f"s_cbranch_scc1 {L}_OK")
    A(f"s_mov_b32 s87, 0")
    A.label(L)
    if n4:
        A(f"buffer_load_dwordx4 {v(vdst,4)}, {voff}, s[88:91], {soff} offen sc1")
        A("s_waitcnt vmcnt(0)")
        A(f"v_and_b32 v{vdst}, v{vdst}, v{vdst+1}")
        A(f"v_and_b32 v{vdst+2}, v{vdst+2}, v{vdst+3}")
        A(f"v_and_b32 v{vdst}, v{vdst}, v{vdst+2}")
    else:
        A(f"buffer_load_dword v{vdst}, {voff}, s[88:91], {soff} offen sc1")
        A("s_waitcnt vmcnt(0)")
    A(f"v_cmp_ne_u32 vcc, 1, v{vdst}")
    A(f"s_cbranch_vccz {L}_OK")
    A(f"s_sleep {SLP}")
    A("s_add_u32 s87, s87, 1")
    A(f"s_cmp_lt_u32 s87, {SPIN}")
    A(f"s_cbranch_scc1 {L}")
    A.label(L + "_OK")
    if one:
        A("s_waitcnt vmcnt(0)")
        A("s_barrier")
    g.vm.ops = []

def set_flag(g, soff_bytes):
    A = g.A
    L = A.newlabel("SETF")
    A("s_cmp_lg_u32 s3, 0")
    A(f"s_cbranch_scc1 {L}")
    A("s_mov_b64 exec, 1")
    A(f"buffer_store_dword v30, v29, s[88:91], {soff_bytes} offen sc1")
    A("s_mov_b64 exec, -1")
    A.label(L)


class Stager:
    def __init__(self, g, srd, stride, s_off, s_ring, slots, vA, vB, vT0, vT1, tag):
        self.__dict__.update(locals())
    def setup(self, tmp=("v60", "v61")):
        A = self.g.A; t0, t1 = tmp
        A(f"v_lshrrev_b32 {t0}, 3, v2")
        A(f"v_mul_u32_u24 {self.vA}, {self.stride}, {t0}")
        A(f"v_bfe_u32 {t0}, v2, 4, 1")
        A(f"v_lshlrev_b32 {t0}, 2, {t0}")
        A(f"v_and_b32 {t1}, 7, v2")
        A(f"v_xor_b32 {t0}, {t0}, {t1}")
        A(f"v_lshl_add_u32 {self.vA}, {t0}, 4, {self.vA}")
        A(f"v_add_u32 {self.vB}, {8*self.stride - 1024}, {self.vA}")
    def setup_tr(self, tmp=("v60", "v61")):
        A = self.g.A; t0, t1 = tmp
        A(f"v_lshrrev_b32 {t0}, 5, v2")
        A(f"v_bfe_u32 {t1}, v2, 2, 2")
        A(f"v_lshl_add_u32 {t0}, {t0}, 2, {t1}")
        A(f"v_lshlrev_b32 {t0}, 7, {t0}")
        A(f"v_bfe_u32 {t1}, v2, 3, 1")
        A(f"v_lshl_add_u32 {t0}, {t1}, 6, {t0}")
        A(f"v_bfe_u32 {t1}, v2, 4, 1")
        A(f"v_lshl_add_u32 {t0}, {t1}, 5, {t0}")
        A(f"v_and_b32 {t1}, 3, v2")
        A(f"v_lshl_add_u32 {t0}, {t1}, 3, {t0}")
        A(f"v_add_u32 {self.vT0}, {self.s_ring}, {t0}")
        A(f"v_xor_b32 {self.vT1}, 64, {self.vT0}")
    def dma(self, ks):
        o = self.slots[ks % len(self.slots)]
        return [f"s_add_u32 m0, {self.s_ring}, {o}", "s_nop 0",
                (f"buffer_load_dwordx4 {self.vA}, {self.srd}, {self.s_off} offen lds", (self.tag, ks)),
                (f"buffer_load_dwordx4 {self.vB}, {self.srd}, {self.s_off} offen offset:1024 lds", (self.tag, ks)),
                f"s_add_u32 {self.s_off}, {self.s_off}, {16*self.stride}"]
    def tr(self, ks, d0, d1, rf=v):
        o = self.slots[ks % len(self.slots)]
        return [f"ds_read_b64_tr_b16 {rf(d0,2)}, {self.vT0} offset:{o}", f"ds_read_b64_tr_b16 {rf(d0+2,2)}, {self.vT0} offset:{o+1024}",
                f"ds_read_b64_tr_b16 {rf(d1,2)}, {self.vT1} offset:{o}", f"ds_read_b64_tr_b16 {rf(d1+2,2)}, {self.vT1} offset:{o+1024}"]

def phaseA(g):
    A, ST, vm = g.A, g.ST, g.vm
    A("s_load_dwordx16 s[36:51], s[0:1], 0")
    A("s_load_dwordx2 s[52:53], s[0:1], 64")
    A("s_load_dwordx4 s[92:95], s[0:1], 80")
    A("v_lshrrev_b32 v1, 6, v0")
    A("v_and_b32 v2, 63, v0")
    A("v_readfirstlane_b32 s3, v1")
    A("s_and_b32 s4, s2, 7")
    A("s_lshr_b32 s5, s2, 3")
    A("s_and_b32 s6, s5, 7")
    A("s_lshr_b32 s5, s5, 3")
    A("s_lshr_b32 s7, s5, 1")
    A("s_and_b32 s5, s5, 1")
    A("s_lshl_b32 s4, s4, 1")
    A("s_add_u32 s4, s4, s5")
    A("v_lshrrev_b32 v3, 3, v2")
    A("v_lshlrev_b32 v3, 11, v3")
    A("v_and_b32 v4, 7, v2")
    A("v_bfe_u32 v8, v2, 4, 2")
    A("v_xor_b32 v4, v4, v8")
    A("v_lshl_add_u32 v3, v4, 4, v3")
    A("s_lshl_b32 s56, s6, 19")
    A("s_lshl_b32 s57, s3, 17")
    A("s_add_u32 s56, s56, s57")
    A("v_add_u32 v8, s56, v3")
    A("v_xor_b32 v9, 64, v8")
    A("v_lshrrev_b32 v3, 5, v2")
    A("v_and_b32 v4, 31, v2")
    A("s_and_b32 s57, s3, 1")
    A("v_xor_b32 v4, s57, v4")
    A("v_lshlrev_b32 v5, 2, v3")
    A("v_xor_b32 v4, v4, v5")
    A("v_lshlrev_b32 v4, 4, v4")
    A("v_lshl_add_u32 v4, v3, 13, v4")
    A("s_lshl_b32 s56, s4, 9")
    A("s_lshl_b32 s57, s3, 16")
    A("s_add_u32 s56, s56, s57")
    A("v_add_u32 v12, s56, v4")
    A("v_xor_b32 v13, 128, v12")
    A(f"v_add_u32 v13, {16384-1024}, v13")
    A(f"v_add_u32 v14, {2*(16384-1024)}, v12")
    A(f"v_add_u32 v15, {2*(16384-1024)}, v13")
    A("s_lshl_b32 s64, s3, 12")
    A("s_mov_b32 s65, 0")
    A("s_mov_b32 s66, 0")
    A("s_waitcnt lgkmcnt(0)")
    A("s_mov_b32 s54, s94"); A("s_mov_b32 s55, s95")
    srd(A, 8, 38, 2048*1024*2)
    A("s_cmp_eq_u32 s7, 0")
    A("s_cselect_b32 s12, s42, s44")
    A("s_cselect_b32 s13, s43, s45")
    A("s_and_b32 s13, s13, 0xffff")
    A(f"s_mov_b32 s14, {1024*4096*2:#x}")
    A("s_mov_b32 s15, 0x00020000")
    def dmaA(P):
        out = []
        for i in range(8):
            if i % 4 == 0: out.append(f"s_add_u32 m0, s63, {(P%2)*32768 + i*1024}")
            out.append(f"s_add_u32 s62, s65, {i*16384 - (i%4)*1024}")
            out.append((f"buffer_load_dwordx4 v{8+((i>>1)&1)}, s[8:11], s62 offen offset:{1024*(i%4)} lds", ("A", P)))
        out.append("s_add_u32 s65, s65, 128")
        return out
    def dma(stage):
        slot = stage % 4
        out = [f"s_add_u32 m0, s64, {65536+slot*16384}", "s_nop 0"]
        for i in range(4):
            out.append((f"buffer_load_dwordx4 v{12+i}, s[12:15], s66 offen offset:{1024*i} lds", ("d", stage)))
        out.append("s_add_u32 s66, s66, 262144")
        return out
    A("s_lshl_b32 s63, s3, 13")
    emit(g, dma(0) + dmaA(0) + dma(1))
    ST(1)
    A("v_bfe_u32 v240, v2, 3, 1")
    A("v_lshlrev_b32 v240, 11, v240")
    A("v_and_b32 v241, 7, v2")
    A("v_lshl_add_u32 v240, v241, 7, v240")
    A("s_lshl_b32 s56, s2, 14")
    A("s_lshl_b32 s57, s3, 12")
    A("s_add_u32 s56, s56, s57")
    A("v_add_u32 v241, s56, v240")
    A("s_cmp_lt_u32 s2, 128")
    A("s_cselect_b32 s98, s42, s44")
    A("s_cselect_b32 s99, s43, s45")
    A("s_and_b32 s56, s2, 127")
    A("s_lshl_b32 s56, s56, 13")
    A("s_lshl_b32 s57, s3, 11")
    A("s_add_u32 s56, s56, s57")
    A("v_and_b32 v242, 15, v2")
    A("v_lshlrev_b32 v242, 7, v242")
    A("v_add_u32 v242, s56, v242")
    def touchA(i): return [(f"buffer_load_dword v244, v241, s[8:11], 0 offen offset:{1024*i}", "t")]
    def touchW(): return ["v_add_u32 v242, 0x100000, v242", ("global_load_dword v245, v242, s[98:99]", "t")]
    if TOUCH:
        emit(g, touchA(0) + touchW())
        A("s_getpc_b64 s[56:57]")
        A.label("PCREF")
        A("s_lshr_b32 s58, s2, 3")
        A("s_lshl_b32 s58, s58, 2")
        A("s_add_u32 s58, s58, s3")
        A("s_mul_i32 s58, s58, 1280")
        A("v_min_u32 v249, 9, v2")
        A("v_lshlrev_b32 v249, 7, v249")
        A("v_add_u32 v249, s58, v249")
        A("v_min_u32 v249, (MEGA_END - PCREF), v249")
        emit(g, [("global_load_dword v250, v249, s[56:57]", "t")])
    ws_srd(A, 88, 54, FLAG_OFF, FLAG_SZ)
    A("v_mov_b32 v29, 0")
    A("v_mov_b32 v30, 1")
    A("s_cmp_lg_u32 s2, 0")
    A("s_cbranch_scc1 NOZERO")
    A("v_lshlrev_b32 v3, 5, v0")
    for r in range(4): A(f"v_mov_b32 v{32+r}, 0")
    A("buffer_store_dwordx4 v[32:35], v3, s[88:91], 0 offen sc1")
    A("buffer_store_dwordx4 v[32:35], v3, s[88:91], 0 offen offset:16 sc1")
    A.label("NOZERO")
    ws_srd(A, 16, 54, KV_OFF, KV_SZ)
    srd(A, 20, 36, 2048*448*2)
    ws_srd(A, 24, 54, XN_OFF, XN_SZ)
    A("v_and_b32 v3, 31, v2")
    A("v_lshrrev_b32 v4, 5, v2")
    A("s_lshl_b32 s56, s2, 3")
    A("s_lshl_b32 s57, s3, 1")
    A("s_add_u32 s56, s56, s57")
    A("v_add_u32 v4, s56, v4")
    A("v_mul_u32_u24 v25, 896, v4")
    A("v_lshl_add_u32 v25, v3, 5, v25")
    A("v_and_b32 v5, 7, v4")
    A("v_lshlrev_b32 v26, 8, v3")
    A("v_lshl_add_u32 v26, v5, 4, v26")
    A("v_add_u32 v26, 0x24000, v26")
    A("s_mul_i32 s56, s3, 112")
    A("v_add_u32 v251, s56, v2")
    A("v_lshlrev_b32 v252, 4, v251")
    A("v_add_u32 v252, 0x24000, v252")
    A("v_lshrrev_b32 v253, 3, v251")
    A("v_lshlrev_b32 v253, 9, v253")
    A("v_and_b32 v251, 7, v251")
    A("v_lshl_add_u32 v253, v251, 4, v253")
    A("s_lshr_b32 s56, s2, 2")
    A("s_mul_i32 s56, s56, 28672")
    A("s_and_b32 s57, s2, 3")
    A("s_lshl_b32 s57, s57, 7")
    A("s_add_u32 s56, s56, s57")
    A("v_add_u32 v253, s56, v253")
    A("v_mov_b32 v5, 0x7ffffff0")
    A("v_cmp_gt_u32 vcc, 56, v2")
    A("s_nop 1")
    A("v_cndmask_b32 v253, v5, v253, vcc")
    A("v_cmp_gt_u32 vcc, 28, v3")
    A("v_mov_b32 v5, 0x7ffffff0")
    A("s_nop 0")
    A("v_cndmask_b32 v25, v5, v25, vcc")
    A("v_cndmask_b32 v7, 0, 1.0, vcc")
    A("s_and_b32 s67, s3, 1")
    A("s_lshr_b32 s68, s3, 1")
    A("v_and_b32 v3, 15, v2")
    A("v_lshrrev_b32 v4, 4, v2")
    A("v_lshrrev_b32 v5, 3, v3")
    A("v_and_b32 v6, 7, v3")
    A("v_lshl_add_u32 v6, v5, 4, v6")
    A("v_lshlrev_b32 v5, 2, v5")
    A("v_bfe_u32 v16, v3, 1, 2")
    A("v_or_b32 v5, v5, v16")
    A("v_xor_b32 v5, v4, v5")
    A("v_lshlrev_b32 v16, 7, v6")
    A("v_lshl_add_u32 v16, v5, 4, v16")
    A("s_lshl_b32 s56, s67, 14")
    A("v_add_u32 v16, s56, v16")
    A("v_xor_b32 v10, 64, v16")
    A("v_lshlrev_b32 v6, 4, v6")
    A("v_lshrrev_b32 v5, 1, v4")
    A("v_lshl_add_u32 v6, v5, 10, v6")
    A("v_and_b32 v5, 1, v4")
    A("v_lshl_add_u32 v6, v5, 9, v6")
    A("v_lshrrev_b32 v60, 2, v3")
    A("v_lshl_add_u32 v61, v4, 3, v60")
    A("v_lshlrev_b32 v61, 9, v61")
    A("v_and_b32 v62, 1, v3")
    A("v_lshl_add_u32 v61, v62, 3, v61")
    A("s_lshl_b32 s56, s68, 8")
    A("s_add_u32 s56, s56, 65536")
    A("v_add_u32 v61, s56, v61")
    A("v_lshl_or_b32 v60, v60, 2, v5")
    A("v_and_b32 v62, 2, v3")
    A("v_xor_b32 v60, v60, v62")
    for j in range(8):
        A(f"v_xor_b32 v62, {4*(j>>1)+(j&1)}, v60")
        A(f"v_lshl_add_u32 v{17+j}, v62, 4, v61")
    A("v_lshlrev_b32 v5, 4, v2")
    A("s_and_b32 s56, s2, 7"); A("s_lshr_b32 s57, s2, 7"); A("s_lshl_b32 s56, s56, 1"); A("s_add_u32 s85, s56, s57")
    A("s_lshl_b32 s60, s85, 9"); A("s_lshl_b32 s56, s3, 7"); A("s_add_u32 s60, s60, s56")
    A("s_lshl_b32 s86, s3, 12")
    A("s_add_u32 s86, s86, 114688")
    srd(A, 28, 40, 448*4096*2)
    g.wq = Stager(g, "s[28:31]", 8192, "s60", "s86", [16384, 18432, 32768, 34816, 0, 2048], "v27", "v28", "v3", "v4", "w")
    g.wq.setup(); g.wq.setup_tr()
    A("s_lshl_b32 s69, s2, 2")
    A("s_add_u32 s69, s69, s3")
    A("s_lshl_b32 s70, s69, 12")
    A("v_and_b32 v246, 15, v2")
    A("v_lshlrev_b32 v246, 7, v246")
    A("v_add_u32 v247, s70, v246")
    A("s_lshl_b32 s70, s69, 11")
    A("v_add_u32 v246, s70, v246")
    srd(A, 32, 46, 4096*448*2); srd(A, 76, 50, 448*1792*2); srd(A, 80, 52, 448*1792*2)
    TWT = {TQ: ("v247", 28, 0), TQ + 2: ("v247", 28, 2048), 19: ("v247", 32, 0), 21: ("v247", 32, 2048), 23: ("v246", 76, 0), 25: ("v246", 80, 0)}
    ln = [lambda: A(f"s_waitcnt vmcnt({vm.newer(lambda t: t == 'ln')})")]
    for i in range(8):
        ln += [f"v_lshlrev_b32 v{40+2*i}, 16, v{32+i}", f"v_and_b32 v{41+2*i}, 0xffff0000, v{32+i}"]
    ln += ["v_add_f32 v56, v40, v41"] + [f"v_add_f32 v56, v56, v{40+i}" for i in range(2, 16)]
    ln += half_sum_l("v56", "v57") + ["v_mul_f32 v56, 0x3b124925, v56", "v_mov_b32 v58, 0"]
    for i in range(16):
        ln += [f"v_sub_f32 v57, v{40+i}, v56", "v_fmac_f32 v58, v57, v57"]
    ln += ["v_mul_f32 v58, v58, v7"] + half_sum_l("v58", "v57") + ["v_mul_f32 v58, 0x3b124925, v58"]
    ln += bf16_round_l("v56", "v56") + bf16_round_l("v58", "v58") + ["v_add_f32 v58, 0x3727c5ac, v58"] + bf16_round_l("v58", "v58")
    ln += ["v_sqrt_f32 v58, v58", "s_nop 0"] + bf16_round_l("v58", "v58") + ["v_rcp_f32 v58, v58"]
    ln += [f"v_sub_f32 v{40+i}, v{40+i}, v56" for i in range(16)]
    ln += [f"v_cvt_pk_bf16_f32 v{32+i}, v{40+2*i}, v{41+2*i}" for i in range(8)]
    for i in range(8):
        ln += [f"v_lshlrev_b32 v{40+2*i}, 16, v{32+i}", f"v_and_b32 v{41+2*i}, 0xffff0000, v{32+i}"]
    ln += [f"v_mul_f32 v{40+i}, v{40+i}, v58" for i in range(16)]
    ln += [f"v_cvt_pk_bf16_f32 v{32+[0,1,4,5,2,3,6,7][i]}, v{40+2*i}, v{41+2*i}" for i in range(8)]
    ln += ["ds_write_b128 v26, v[32:35]", "ds_write_b128 v26, v[36:39] offset:128"]
    ln2 = ["ds_read_b128 v[32:35], v252", "ds_read_b128 v[36:39], v252 offset:896"]
    ln3 = [(f"buffer_store_dwordx4 v[32:35], v253, s[24:27], 0 offen{SC}", "sA"), (f"buffer_store_dwordx4 v[36:39], v253, s[24:27], 0 offen offset:3584{SC}", "sA")]
    SETS = [64, 128]
    def reads(stage, st_):
        slot = stage % 4
        b = SETS[st_]
        ra = [f"ds_read_b128 {v(b+4*i,4)}, {'v10' if stage & 1 else 'v16'} offset:{((stage>>1)&1)*32768 + (32*(i>>1)+8*(i&1))*128}" for i in range(8)]
        rw = [[f"ds_read_b64_tr_b16 {v(b+32+4*j+2*t,2)}, v{17+j} offset:{slot*16384 + 2048*t}" for t in range(2)] for j in range(8)]
        out = []
        for i in range(8): out += [ra[i]] + rw[i]
        return out
    def mf(typ, i, j, st_, first=False):
        b = SETS[st_]
        acc = a((i*8+j)*4, 4)
        c = "0" if first else acc
        ca, w_ = v(b+4*i, 4), v(b+32+4*j, 4)
        return f"v_mfma_f32_16x16x32_bf16 {acc}, {w_}, {ca}, {c}" if typ == 0 else f"v_mfma_f32_16x16x32_bf16 {acc}, {ca}, {w_}, {c}"
    A("s_lshr_b32 s56, s2, 3")
    A("s_and_b32 s5, s56, 15")
    A("s_lshl_b32 s57, s5, 1")
    A("s_add_u32 s58, s57, s3")
    A("s_sub_u32 s59, 60, s57")
    A("s_add_u32 s59, s59, s3")
    A("s_cmp_lt_u32 s3, 2")
    A("s_cselect_b32 s58, s58, s59")
    A("s_mul_i32 s69, s58, 28672")
    XCH = [65536, 81920, 0, 16384, 98304, 32768, 49152]
    g.XCH = XCH
    def xdma(c):
        out = [f"s_add_u32 m0, s64, {XCH[c]}", f"s_add_u32 s56, s69, {c*4096}"]
        out += [(f"buffer_load_dwordx4 v5, s[24:27], s56 offen offset:{1024*i}{SC} lds", ("x", c)) for i in range(4)]
        return out
    vm0 = list(vm.ops)
    A("s_cmp_eq_u32 s7, 1")
    A("s_cbranch_scc1 PA_V")
    for typ in (0, 1):
        if typ: A.label("PA_V")
        vm.ops = list(vm0)
        A(f"s_waitcnt vmcnt({vm.newer(lambda t: t == ('A', 0))})")
        A("s_barrier")
        ST(2)
        emit(g, reads(0, 0))
        A("s_waitcnt lgkmcnt(0)")
        carry = []
        for s_ in range(32):
            sched = {}
            g0 = 0
            if s_ == 0:
                spread(sched, dma(2) + dmaA(1) + dma(3), 0, G0 - 1); g0 = G0
            def w(s_=s_):
                n = min(vm.newer(lambda t: t == ("d", s_ + 1)), vm.newer(lambda t: t == ("A", (s_ + 1) // 2)))
                if s_ == FSA: n = min(n, vm.newer(lambda t: t == "sA"))
                A(f"s_waitcnt vmcnt({n})")
            if s_ < 31:
                sched.setdefault(g0, []).extend([w, "s_barrier"])
                spread(sched, reads(s_ + 1, (s_ + 1) % 2), g0 + 1, 54)
            if s_ == 31: sched.setdefault(0, []).append("s_barrier")
            dl = []
            if s_ % 2 == 1 and (s_ + 3) // 2 < 16: dl += dmaA((s_ + 3) // 2)
            if s_ + 4 < 32: dl += dma(s_ + 4)
            if dl: spread(sched, dl, g0 + 2, 48)
            if s_ == FSA: sched[g0].append(lambda: (A("s_lshl_b32 s56, s2, 2"), set_flag(g, "s56")))
            if TOUCH and s_ in TWT:
                tv, ts, to = TWT[s_]
                sched.setdefault(52, []).append((f"buffer_load_dword v248, {tv}, s[{ts}:{ts+3}], 0 offen offset:{to}", "t"))
            if s_ == LNS - 3 and not NOSIDE: sched.setdefault(51, []).extend([("buffer_load_dwordx4 v[32:35], v25, s[20:23], 0 offen", "ln"), ("buffer_load_dwordx4 v[36:39], v25, s[20:23], 0 offen offset:16", "ln")])
            if s_ == LNS and not NOSIDE: carry += ln
            if s_ == LNS + 4:
                assert not carry
                sched.setdefault(20, []).extend(ln2)
            if s_ == LNS + 5: sched.setdefault(20, []).extend(ln3)
            if s_ == 5:
                def raise_dbg():
                    L = A.newlabel("RDBG")
                    A("s_or_b32 s56, s2, s3")
                    A(f"s_cbranch_scc1 {L}")
                    A("s_mov_b64 exec, 1")
                    A("global_store_dword v29, v30, s[92:93] sc1")
                    A("s_mov_b64 exec, -1")
                    A.label(L)
                sched[g0].append(raise_dbg)
            if TOUCH and s_ in TW: sched.setdefault(50, []).extend(touchW())
            if TOUCH and s_ == TA: sched.setdefault(50, []).extend(touchA(1))
            if s_ == FSA - 4:
                sched.setdefault(50, []).append(("global_load_dword v59, v29, s[92:93] sc1", "dbg"))
            if s_ == FSA - 1:
                def chk_dbg():
                    L = A.newlabel("DBG")
                    A(f"s_waitcnt vmcnt({vm.newer(lambda t: t == 'dbg')})")
                    A("s_mov_b32 s87, 0")
                    A.label(L)
                    A("v_cmp_ne_u32 vcc, 1, v59")
                    A(f"s_cbranch_vccz {L}_OK")
                    A("s_sleep 1")
                    A("global_load_dword v59, v29, s[92:93] sc1")
                    A("s_waitcnt vmcnt(0)")
                    A("s_add_u32 s87, s87, 1")
                    A(f"s_cmp_lt_u32 s87, {SPIN}")
                    A(f"s_cbranch_scc1 {L}")
                    A.label(L + "_OK")
                sched.setdefault(50, []).append(chk_dbg)
            if s_ == 24:
                sched.setdefault(50, []).append((f"buffer_load_dwordx4 v[56:59], v5, s[88:91], 0 offen offset:{F_SA*4} sc1", "pf"))
            if s_ == 26:
                def chk_sa():
                    L = A.newlabel("PSA")
                    A(f"s_waitcnt vmcnt({vm.newer(lambda t: t == 'pf')})")
                    A("s_mov_b32 s87, 0")
                    A.label(L)
                    A("v_and_b32 v56, v56, v57"); A("v_and_b32 v58, v58, v59"); A("v_and_b32 v56, v56, v58")
                    A("v_cmp_ne_u32 vcc, 1, v56")
                    A(f"s_cbranch_vccz {L}_OK")
                    A("s_sleep 1")
                    A(f"buffer_load_dwordx4 v[56:59], v5, s[88:91], 0 offen offset:{F_SA*4} sc1")
                    A("s_waitcnt vmcnt(0)")
                    A("s_add_u32 s87, s87, 1")
                    A(f"s_cmp_lt_u32 s87, {SPIN}")
                    A(f"s_cbranch_scc1 {L}")
                    A.label(L + "_OK")
                sched.setdefault(50, []).append(chk_sa)
            xc = {28: [0], 29: [1, 2, 3], 30: [4], 31: [5, 6]}.get(s_, [])
            if xc:
                items = []
                for c in xc: items += xdma(c)
                spread(sched, items, 2, 30)
            wk = {28: [0, 1], 29: [2, 3], 31: [4, 5]}.get(s_, [])
            if wk:
                items = []
                for ks in wk: items += g.wq.dma(ks)
                spread(sched, items, 34, 60)
            ms = [mf(typ, i, j, s_ % 2, first=(s_ == 0)) for i in range(8) for j in range(8)]
            run_sched(A, ms, sched, carry, 2, vm)
            if s_ < 31: A("s_waitcnt lgkmcnt(0)")
            if s_ in (7, 15, 23): ST(3 + s_ // 8)
            if g.ST2: g.ST2(s_)
        assert not carry
        ST(6)
        if g.ST2:
            ws_srd(A, 24, 54, STAMP_OFF + (1 << 20), 1 << 20)
            A("s_lshl_b32 s56, s2, 2"); A("s_add_u32 s56, s56, s3"); A("s_lshl_b32 s56, s56, 8")
            A("v_lshlrev_b32 v62, 2, v2")
            A("buffer_store_dword v63, v62, s[24:27], s56 offen")
        phaseB(g, typ)
        if typ == 0: A("s_branch PB_JOIN")
    A.label("PB_JOIN")

def phaseB(g, typ):
    A, ST, vm = g.A, g.ST, g.vm
    A("s_lshl_b32 s70, s4, 21")
    A("s_lshl_b32 s71, s6, 18")
    A("s_add_u32 s70, s70, s71")
    A("s_lshl_b32 s71, s67, 17")
    A("s_add_u32 s70, s70, s71")
    A("s_lshl_b32 s71, s68, 13")
    A("s_add_u32 s70, s70, s71")
    if typ: A("s_add_u32 s70, s70, 16384")
    for kb in range(4):
        A(f"s_add_u32 s{72+2*kb}, s70, {kb*32768}")
        A(f"s_add_u32 s{73+2*kb}, s70, {kb*32768+4096}")
    epi = []
    cnt = 0
    for u in range(8):
        for pp in range(4):
            if typ == 0: i, j0 = u, 2*pp; t0, t1 = (i*8+j0)*4, (i*8+j0+1)*4; kb, odd, db = i >> 1, i & 1, pp
            else: j, i0 = u, 2*pp; t0, t1 = (i0*8+j)*4, ((i0+1)*8+j)*4; kb, odd, db = pp, j & 1, j >> 1
            t = 32 + (cnt % 2) * 16; cnt += 1
            epi += [f"v_accvgpr_read_b32 v{t+r}, a{t0+r}" for r in range(4)]
            epi += [f"v_accvgpr_read_b32 v{t+4+r}, a{t1+r}" for r in range(4)]
            epi += [f"v_cvt_pk_bf16_f32 v{t+8+r}, v{t+2*r}, v{t+2*r+1}" for r in range(4)]
            epi.append((f"buffer_store_dwordx4 {v(t+8,4)}, v6, s[16:19], s{72+2*kb+(db>>1)} offen offset:{(db&1)*2048 + odd*128}{SC}", "kv"))
    QACC = 96
    XF = [64, 80]
    A("v_add_u32 v7, 0x10000, v5"); A("v_add_u32 v8, 0x20000, v5")
    def xreads(ks):
        b = XF[ks % 2]
        out = []
        for q in range(4):
            o = g.XCH[ks // 4] + q * 4096 + (ks % 4) * 1024
            out.append(f"ds_read_b128 {v(b+4*q,4)}, {['v5','v7','v8'][o >> 16]} offset:{o & 0xffff}")
        return out
    WF = [224, 232]
    A(f"s_waitcnt vmcnt({min(vm.newer(lambda t: t == ('x', 3)), vm.newer(lambda t: t == ('w', 0)))})")
    A("s_barrier")
    emit(g, xreads(0) + g.wq.tr(0, WF[0], WF[0] + 4))
    EPB = int(os.environ.get("EPB", "8")) if typ == 0 else int(os.environ.get("EPBV", "5"))
    FLAGKS = int(os.environ.get("FLAGKS", "11")) if typ == 0 else 28
    EPS = 0 if typ == 0 else int(os.environ.get("EPS", "10"))
    def kvflag():
        assert not epi
        A(f"s_waitcnt vmcnt({vm.newer(lambda t: t == 'kv')})")
        A("s_barrier")
        A("s_lshl_b32 s56, s4, 6"); A("s_lshl_b32 s57, s7, 5"); A("s_add_u32 s56, s56, s57"); A("s_lshl_b32 s57, s6, 2"); A("s_add_u32 s56, s56, s57")
        A(f"s_add_u32 s56, s56, {F_KV*4}")
        set_flag(g, "s56")
    for ks in range(28):
        sched = {}
        A("s_waitcnt lgkmcnt(0)")
        if ks == FLAGKS: kvflag()
        if ks + 1 < 28:
            def w(ks=ks):
                n = vm.newer(lambda t: t == ('w', ks + 1))
                if ks == 15: n = min(n, vm.newer(lambda t: t == ('x', 6)))
                A(f"s_waitcnt vmcnt({n})")
                if ks == 15: A("s_barrier")
            items = [w] + g.wq.tr(ks + 1, WF[(ks+1) % 2], WF[(ks+1) % 2] + 4) + xreads(ks + 1)
            if ks + 6 < 28: items += g.wq.dma(ks + 6)
            spread(sched, items, 0, 6)
        ms = []
        for q in range(4):
            for d in range(2):
                acc = v(QACC + (d*4+q)*16, 16)
                c = "0" if ks == 0 else acc
                ms.append(f"v_mfma_f32_32x32x16_bf16 {acc}, {v(WF[ks%2]+4*d,4)}, {v(XF[ks%2]+4*q,4)}, {c}")
        run_sched(A, ms, sched, epi if ks >= EPS else [], EPB + 1, vm)
    assert not epi, len(epi)
    ST(7)
    if FLAGKS >= 28: kvflag()
    else: A("s_barrier")

def phaseC(g):
    A, ST, vm = g.A, g.ST, g.vm
    VL16 = "v5"
    MC = ["v8", "v9"]; THR = ["v10", "v11"]; LS = ["v12", "v13"]; FAC = ["v14", "v15"]; TM = ["v16", "v17"]; MR = ["v18", "v19"]
    T0, T1, T2 = "v4", "v6", "v7"
    SEL = [20, 24]
    VQROW, VSTAT, VSTR = "v0", "v1", "v3"
    SB = [32, 64]
    WIN = 128
    QA = 0
    KV = "s[16:19]"
    def Oreg(gq, dbl, qb):
        b = (gq * 2 + dbl) * 2 + qb
        if b < 8: return ("v", 128 + b * 16)
        if b < 10: return ("v", 96 + (b - 8) * 16)
        return ("a", 160 + (b - 10) * 16)
    def OR(gq, dbl, qb):
        f, b = Oreg(gq, dbl, qb)
        return (a if f == "a" else v)(b, 16)
    allO = [(gq, d, q) for gq in range(4) for d in range(2) for q in range(2)]
    QACC = 96
    A("s_mov_b32 s4, s85")
    A("s_lshl_b32 s45, s3, 12")
    A(f"v_add_u32 {T0}, s45, {VL16}")
    for q in range(4):
        for d in range(2):
            b = QACC + (d*4+q)*16
            for r in range(8):
                A(f"v_cvt_pk_bf16_f32 v{b+r}, v{b+2*r}, v{b+2*r+1}")
            for s_ in range(2):
                A(f"ds_write_b128 {T0}, {v(b+4*s_,4)} offset:{q*16384 + (2*d+s_)*1024}")
    ws_srd(A, 20, 54, CTX_OFF, CTX_SZ)
    A("s_and_b32 s45, s3, 1")
    A("s_lshl_b32 s45, s45, 1")
    for gq in range(4):
        A(f"s_add_u32 s{64+gq}, s45, {gq+2}")
        A(f"s_and_b32 s{64+gq}, s{64+gq}, 3")
        A(f"s_lshl_b32 s{64+gq}, s{64+gq}, 12")
    A("s_lshl_b32 s45, s5, 1")
    A("s_sub_u32 s56, 64, s45")
    A("s_mul_i32 s57, s3, 17")
    A("s_min_u32 s57, s57, 50")
    A("s_add_u32 s58, s57, 17")
    A("s_cmp_ge_u32 s3, 2")
    A("s_cselect_b32 s45, 1, 0")
    A("s_sub_u32 s58, s58, s45")
    A("s_min_u32 s59, s58, s56")
    A("s_sub_i32 s59, s59, s57")
    A("s_max_i32 s59, s59, 0")
    A("s_max_u32 s60, s57, s56")
    A("s_sub_i32 s53, s58, s60")
    A("s_max_i32 s53, s53, 0")
    A("s_sub_u32 s60, s60, s56")
    A("s_cmp_gt_u32 s59, 0")
    A("s_cselect_b32 s34, 0, 1")
    A("s_cselect_b32 s40, s57, s60")
    A("s_cselect_b32 s7, s59, s53")
    A("s_cselect_b32 s53, s53, 0")
    A("s_mov_b32 s52, 0")
    A("s_cmp_gt_u32 s56, 50")
    A("s_cselect_b32 s61, 0x8000, 0")
    A("s_add_u32 s61, s61, 98304")
    A("v_and_b32 v32, 31, v2")
    A("v_lshrrev_b32 v33, 5, v2")
    A(f"v_lshlrev_b32 {VSTR}, 6, v32")
    A(f"v_add_u32 {VSTR}, s61, {VSTR}")
    A(f"v_lshlrev_b32 {VSTAT}, 4, v32")
    A(f"v_add_u32 {VSTAT}, s61, {VSTAT}")
    A(f"v_add_u32 {VSTAT}, 4096, {VSTAT}")
    A("v_lshlrev_b32 v34, 2, v33")
    A("v_sub_u32 v34, v32, v34")
    A(f"v_cvt_f32_i32 {VQROW}, v34")
    A(f"v_add_f32 {VQROW}, 0.5, {VQROW}")
    A("v_mov_b32 v35, 0x3f80")
    A("v_mov_b32 v36, 0x3f800000")
    for s_ in range(2):
        for p in range(4):
            e0 = 2*p
            c0 = 16*s_ + 8*(e0 >> 2) + (e0 & 3)
            A(f"v_cmp_eq_u32 vcc, {c0}, v34")
            A(f"v_cmp_eq_u32 s[50:51], {c0+1}, v34")
            A("s_nop 1")
            A(f"v_cndmask_b32 v{SEL[s_]+p}, 0, v35, vcc")
            A(f"v_cndmask_b32 v{SEL[s_]+p}, v{SEL[s_]+p}, v36, s[50:51]")
    if WOT:
        A("s_load_dwordx2 s[72:73], s[0:1], 40")
        A("s_lshr_b32 s45, s2, 3"); A("s_lshl_b32 s45, s45, 2"); A("s_add_u32 s45, s45, s3")
        A("s_mul_i32 s70, s45, 28672")
        A("v_and_b32 v37, 31, v2")
        A("v_lshlrev_b32 v37, 7, v37")
        A("v_accvgpr_write_b32 a255, v37") if False else None
        A("s_waitcnt lgkmcnt(0)")
        srd(A, 24, 72, 4096*448*2)
    A(f"s_mov_b32 s68, {f32bits(CSC):#x}")
    A(f"s_mov_b32 s69, {f32bits(TTHR/CSC):#x}")
    A("v_and_b32 v32, 7, v2")
    A("v_lshlrev_b32 v32, 2, v32")
    A("s_lshl_b32 s45, s4, 6")
    A(f"s_add_u32 s45, s45, {F_KV*4}")
    poll(g, 36, "v32", "s45")
    ST(8)
    A("s_lshl_b32 s48, s4, 21")
    A("s_lshl_b32 s35, s40, 15")
    A("s_add_u32 s35, s35, s48")
    for f in range(8):
        if f % 4 == 0: A(f"s_add_u32 s45, s35, {(f//4)*4096}")
        A(f"buffer_load_dwordx4 {a(WIN+4*f,4)}, {VL16}, {KV}, s45 offen offset:{(f%4)*1024}{SC}")
    A("s_waitcnt lgkmcnt(0)")
    A("s_barrier")
    A(f"v_mov_b32 v32, {f32bits(-BIG):#x}"); A("v_mov_b32 v33, 0"); A("v_mov_b32 v34, v32"); A("v_mov_b32 v35, 0")
    for q in range(2):
        A(f"ds_write_b128 {VSTR}, v[32:35] offset:{q*2048+32}")
        A(f"ds_write_b128 {VSTR}, v[32:35] offset:{q*2048+48}")
    A("s_cmp_eq_u32 s34, 0")
    A("s_cselect_b32 s45, 0x8000, 0")
    A(f"v_add_u32 {T0}, s45, {VL16}")
    for i in range(32):
        A(f"ds_read_b128 {a(QA+4*i,4)}, {T0} offset:{i*1024}")
    def zeroO():
        out = []
        for (gq, d, q) in allO:
            f, b = Oreg(gq, d, q)
            for r in range(16):
                out.append(f"v_mov_b32 v{b+r}, 0" if f == "v" else f"v_accvgpr_write_b32 a{b+r}, 0")
        return out
    def stream(items, fillers, budget=None, first_gap=0):
        cst = [3 if callable(x) else cost(x) for x in fillers]
        tot = sum(cst); ng = len(items) - first_gap
        fi = 0; done = 0
        for gi, (pre, m, post) in enumerate(items):
            for x in pre: A(x)
            A(m)
            for x in post: A(x)
            if gi >= first_gap:
                target = tot * (gi - first_gap + 1) / ng
                while fi < len(fillers) and done + cst[fi] / 2 <= target:
                    x = fillers[fi]
                    if callable(x): x()
                    else: A(x)
                    done += cst[fi]; fi += 1
        while fi < len(fillers):
            x = fillers[fi]; fi += 1
            if callable(x): x()
            else: A(x)
    def ld(sl, soff, f): return f"buffer_load_dwordx4 {a(sl,4)}, {VL16}, {KV}, {soff} offen offset:{(f%4)*1024}{SC}"
    def X_items(p, loads2):
        items = []
        for f in range(16):
            sl = WIN + 4 * (f % 8)
            for q in range(2):
                acc = v(SB[p] + q*16, 16)
                c = "0" if f == 0 else acc
                pre = (["s_waitcnt vmcnt(7)"] if q == 0 else []) if not W2F else (["s_waitcnt vmcnt(6)"] if (q == 0 and f % 2 == 0) else [])
                post = []
                if q == 1:
                    if f < 8:
                        if f % 4 == 0: post.append(f"s_add_u32 s45, s36, {(2+f//4)*4096}")
                        post.append(ld(sl, "s45", f))
                    else: post.append(ld(sl, loads2[(f-8)//4], f))
                items.append((pre, f"v_mfma_f32_32x32x16_bf16 {acc}, {a(sl,4)}, {a(QA+(q*16+f)*4,4)}, {c}", post))
        return items
    def Y_items(p, loads2, first=False):
        items = []
        for f in range(16):
            sl = WIN + 4 * (f % 8)
            gq, d, s_ = f // 4, (f // 2) % 2, f % 2
            for q in range(2):
                acc = OR(gq, d, q)
                pre = (["s_waitcnt vmcnt(7)"] if q == 0 else []) if not W2F else (["s_waitcnt vmcnt(6)"] if (q == 0 and f % 2 == 0) else [])
                post = []
                if q == 1:
                    if f < 8:
                        if f % 4 == 0: post.append(f"s_add_u32 s45, s37, s{64+2+f//4}")
                        post.append(ld(sl, "s45", f))
                    else: post.append(ld(sl, loads2[(f-8)//4], f))
                items.append((pre, f"v_mfma_f32_32x32x16_bf16 {acc}, {a(sl,4)}, {v(SB[p]+q*16+4*s_,4)}, {'0' if (first and s_ == 0) else acc}", post))
        return items
    def expq(p, q):
        b = SB[p] + q*16
        out = []
        def post(k):
            return [f"v_add_f32 {LS[q]}, {LS[q]}, v{b+2*k}", f"v_add_f32 {LS[q]}, {LS[q]}, v{b+2*k+1}",
                    f"v_cvt_pk_bf16_f32 v{b+k}, v{b+2*k}, v{b+2*k+1}"]
        for k in range(8):
            out.append(f"v_fma_f32 v{b+2*k}, v{b+2*k}, s68, -{MC[q]}")
            out.append(f"v_fma_f32 v{b+2*k+1}, v{b+2*k+1}, s68, -{MC[q]}")
            out.append(f"v_exp_f32 v{b+2*k}, v{b+2*k}")
            out.append(f"v_exp_f32 v{b+2*k+1}, v{b+2*k+1}")
            if k > 0: out += post(k-1)
        out.append("s_nop 0")
        out += post(7)
        return out
    def maxq(p, q):
        b = SB[p] + q*16
        out = [f"v_max3_f32 {TM[q]}, v{b}, v{b+1}, v{b+2}"]
        for r in range(3, 15, 2):
            out.append(f"v_max3_f32 {TM[q]}, {TM[q]}, v{b+r}, v{b+r+1}")
        out.append(f"v_max_f32 {TM[q]}, {TM[q]}, v{b+15}")
        return out
    def mask_code(p):
        A("s_lshl_b32 s63, s6, 1")
        A("s_sub_u32 s63, s63, s40")
        A("s_lshl_b32 s63, s63, 5")
        A(f"v_cvt_f32_i32 {T0}, s63")
        A(f"v_add_f32 {T0}, {T0}, {VQROW}")
        for q in range(2):
            A(f"v_mov_b32 {T1}, {T0}" if q == 0 else f"v_add_f32 {T1}, 0x42000000, {T0}")
            A(f"v_mul_f32 {T1}, {f32bits(BIG):#x}, {T1}")
            b = SB[p] + q*16
            for r in range(16):
                cr = 8*(r >> 2) + (r & 3)
                A(f"v_add_f32 {T2}, {f32bits(-cr*BIG):#x}, {T1}" if cr else f"v_mov_b32 {T2}, {T1}")
                A(f"v_min_f32 v{b+r}, v{b+r}, {T2}")
    def rescaleO(blocks=None):
        A("s_nop 7"); A("s_nop 7")
        for (gq, d, q) in (blocks or allO):
            f, b = Oreg(gq, d, q)
            for r in range(16):
                if f == "v":
                    A(f"v_mul_f32 v{b+r}, v{b+r}, {FAC[q]}")
                else:
                    A(f"v_accvgpr_read_b32 {T0}, a{b+r}")
                    A(f"v_mul_f32 {T0}, {T0}, {FAC[q]}")
                    A(f"v_accvgpr_write_b32 a{b+r}, {T0}")
        A("s_nop 1")
    rare_blocks = []
    def P1(p, tag):
        def maskbr():
            A("s_cmp_ge_u32 s40, s41")
            A(f"s_cbranch_scc1 PC_MASK_{tag}")
            A.label(f"PC_MASKRET_{tag}")
        def chk():
            A(f"v_cmp_gt_f32 vcc, {TM[0]}, {THR[0]}")
            A(f"v_cmp_gt_f32 s[50:51], {TM[1]}, {THR[1]}")
            A("s_or_b64 s[50:51], vcc, s[50:51]")
            A(f"s_cbranch_scc1 PC_RARE_{tag}")
            A.label(f"PC_RARERET_{tag}")
        rare_blocks.append((p, tag))
        return [maskbr] + maxq(p, 0) + maxq(p, 1) + [chk, "s_add_u32 s40, s40, 1"] + expq(p, 0)[:CUT]
    STEP = 32768
    def pack_l(gq, addr, off, tmp):
        out = []
        for d in range(2):
            for q in range(2):
                f, b = Oreg(gq, d, q)
                if f == "a":
                    t = tmp + ((d*2+q) % 2) * 16
                    out += [f"v_accvgpr_read_b32 v{t+r}, a{b+r}" for r in range(16)]
                    b = t
                out += [f"v_cvt_pk_bf16_f32 v{b+r}, v{b+2*r}, v{b+2*r+1}" for r in range(8)]
                out += [f"ds_write_b128 {addr}, {v(b+4*s_,4)} offset:{off + ((d*2+q)*2+s_)*1024}" for s_ in range(2)]
        return out
    def xaddr(dst, wreg):
        A(f"s_lshr_b32 s43, {wreg}, 1")
        A("s_mul_i32 s43, s43, 98304")
        A(f"s_and_b32 {dst}, {wreg}, 1")
        A(f"s_lshl_b32 {dst}, {dst}, 14")
        A(f"s_add_u32 {dst}, {dst}, s43")
        A(f"s_add_u32 {dst}, {dst}, 32768")
    def seg_head():
        A("s_sub_u32 s6, 31, s5")
        A("s_cmp_eq_u32 s34, 0")
        A("s_cselect_b32 s6, s6, s5")
        A("s_lshl_b32 s41, s6, 1")
        A("s_mov_b32 s42, 0")
        A(f"v_mov_b32 {LS[0]}, 0"); A(f"v_mov_b32 {LS[1]}, 0")
        xaddr("s45", "s3")
        A("s_lshl_b32 s43, s3, 15")
        A("s_lshl_b32 s44, s64, 1")
        A("s_add_u32 s43, s43, s44")
        A("s_lshr_b32 s44, s3, 1")
        A("s_xor_b32 s49, s34, 1")
        A("s_and_b32 s49, s49, s44")
        A("s_cselect_b32 s45, s43, s45")
        A(f"v_add_u32 v28, s45, {VL16}")
        A("s_mov_b32 s36, s35")
        A(f"s_add_u32 s43, s35, {STEP}")
        A(f"s_add_u32 s44, s35, {STEP+4096}")
        A("s_add_u32 s45, s35, 16384")
        A("s_add_u32 s38, s45, s64")
        A("s_add_u32 s39, s45, s65")
        A("s_cmp_gt_u32 s7, 1")
        A("s_cselect_b32 s43, s43, s38")
        A("s_cselect_b32 s44, s44, s39")
        A("s_waitcnt lgkmcnt(0)")
    seg_head()
    stream(X_items(0, ["s43", "s44"]), [])
    A.label("PC_X0DONE")
    A("s_nop 7"); A("s_nop 3")
    A("s_cmp_ge_u32 s40, s41")
    A("s_cbranch_scc0 PC_NOMASK0")
    mask_code(0)
    A.label("PC_NOMASK0")
    for x in maxq(0, 0) + maxq(0, 1): A(x)
    xhalf(A, "v_max_f32", TM[0], T0)
    xhalf(A, "v_max_f32", TM[1], T1)
    A("s_lshl_b32 s45, s34, 10")
    A(f"v_add_u32 {T1}, s45, {VSTAT}")
    A("s_cmp_lg_u32 s52, 0")
    A("s_cbranch_scc1 PC_NOPUB")
    A("s_lshl_b32 s43, s3, 2")
    A(f"v_add_u32 {T0}, s43, {T1}")
    A(f"v_xor_b32 {T2}, 1024, {T0}")
    A(f"v_mov_b32 v{SB[1]}, {f32bits(-BIG):#x}")
    for q in range(2):
        A(f"ds_write_b32 {T0}, {TM[q]} offset:{q*512}")
        A(f"ds_write_b32 {T2}, v{SB[1]} offset:{q*512}")
    A(f"v_and_b32 v{SB[1]+2}, 7, v2")
    A(f"v_lshlrev_b32 v{SB[1]+2}, 2, v{SB[1]+2}")
    A("s_lshl_b32 s45, s4, 6")
    A(f"s_add_u32 s45, s45, {F_KV*4+32}")
    poll(g, SB[1] + 3, f"v{SB[1]+2}", "s45")
    A("s_waitcnt lgkmcnt(0)")
    A("s_barrier")
    A.label("PC_NOPUB")
    for q in range(2):
        A(f"ds_read_b128 {v(SB[1]+q*4,4)}, {T1} offset:{q*512}")
    A("s_waitcnt lgkmcnt(0)")
    for q in range(2):
        b = SB[1] + q*4
        A(f"v_max3_f32 {MR[q]}, v{b}, v{b+1}, v{b+2}")
        A(f"v_max_f32 {MR[q]}, {MR[q]}, v{b+3}")
        A(f"v_add_f32 {THR[q]}, s69, {MR[q]}")
        A(f"v_cmp_gt_f32 vcc, {TM[q]}, {THR[q]}")
        A("s_nop 1")
        A(f"v_cndmask_b32 {MR[q]}, {MR[q]}, {TM[q]}, vcc")
        A(f"v_mul_f32 {MC[q]}, s68, {MR[q]}")
        A(f"v_add_f32 {THR[q]}, s69, {MR[q]}")
    A("s_add_u32 s40, s40, 1")
    for x in expq(0, 0)[:CUT]: A(x)
    A("s_cmp_eq_u32 s7, 1")
    A("s_cbranch_scc1 PC_TAILF")
    def body(p, tag, first=False):
        A(f"s_add_u32 s36, s35, {STEP}")
        A("s_add_u32 s37, s35, 16384")
        A("s_add_u32 s43, s37, s64")
        A("s_add_u32 s44, s37, s65")
        stream(X_items(p ^ 1, ["s43", "s44"]), expq(p, 0)[CUT:] + expq(p, 1))
        A(f"s_add_u32 s43, s35, {2*STEP}")
        A(f"s_add_u32 s44, s35, {2*STEP+4096}")
        A(f"s_add_u32 s45, s35, {STEP+16384}")
        A("s_add_u32 s38, s45, s64")
        A("s_add_u32 s39, s45, s65")
        A("s_cmp_gt_u32 s7, 2")
        A("s_cselect_b32 s43, s43, s38")
        A("s_cselect_b32 s44, s44, s39")
        if WOT:
            A(f"s_cmp_le_u32 s7, {WOT}")
            A("s_cselect_b32 s71, s70, 0x7ff00000")
            A("s_cselect_b32 s45, 4096, 0")
            A("s_add_u32 s70, s70, s45")
            A(f"v_lshlrev_b32 {T0}, 2, {VL16}")
            A(f"buffer_load_dword v{SB[p]+15}, {T0}, s[24:27], s71 offen")
        stream(Y_items(p, ["s43", "s44"], first), P1(p ^ 1, tag), first_gap=2)
        A("s_cmp_lg_u32 s42, 0")
        A(f"s_cbranch_scc1 PC_PEND_{tag}")
        A.label(f"PC_PENDRET_{tag}")
        A(f"s_add_u32 s35, s35, {STEP}")
        A("s_sub_u32 s7, s7, 1")
        A("s_cmp_eq_u32 s7, 1")
    body(0, "BF", first=True)
    A("s_cbranch_scc1 PC_TAIL1")
    A("s_branch PC_LOOPB")
    A.label("PC_LOOP")
    body(0, "B0")
    A("s_cbranch_scc1 PC_TAIL1")
    A.label("PC_LOOPB")
    body(1, "B1")
    A("s_cbranch_scc0 PC_LOOP")
    for (lab, p, first) in (("0", 0, False), ("1", 1, False), ("F", 0, True)):
        A.label(f"PC_TAIL{lab}")
        for x in expq(p, 0)[CUT:] + expq(p, 1): A(x)
        A("s_add_u32 s37, s35, 16384")
        A("s_cmp_lg_u32 s53, 0")
        A(f"s_cselect_b32 s43, s48, {KV_SZ:#x}")
        A("s_add_u32 s44, s43, 4096")
        items = Y_items(p, ["s43", "s44"], first)
        qr = [f"ds_read_b128 {a(QA+4*i,4)}, {VL16} offset:{i*1024}" for i in range(32)]
        stream(items[:12], qr)
        stream(items[12:20], pack_l(0, "v28", 0, 0))
        stream(items[20:], pack_l(1, "v28", 8192, 0))
        if lab != "F": A("s_branch PC_SEGEND")
    A.label("PC_SEGEND")
    ST(9)
    xhalf(A, "v_add_f32", LS[0], T0)
    xhalf(A, "v_add_f32", LS[1], T1)
    def put_stats(slot_sgpr):
        A(f"v_add_u32 {T0}, {slot_sgpr}, {VSTR}")
        for q in range(2):
            A(f"v_mov_b32 v{SB[1]+2*q}, {MR[q]}")
            A(f"v_mov_b32 v{SB[1]+2*q+1}, {LS[q]}")
            A(f"ds_write_b64 {T0}, {v(SB[1]+2*q,2)} offset:{q*2048}")
    A("s_cmp_eq_u32 s49, 0")
    A("s_cbranch_scc1 PC_NODUMP")
    A("s_lshl_b32 s45, s3, 3")
    A("s_add_u32 s45, s45, 16")
    put_stats("s45")
    A(f"v_xor_b32 {T2}, 0x4000, v28")
    A("s_mov_b32 s34, 1")
    A("s_cmp_eq_u32 s53, 0")
    A("s_cbranch_scc1 PC_EMPTIED")
    A("s_mov_b32 s7, s53")
    A("s_mov_b32 s53, 0")
    A("s_mov_b32 s52, 1")
    A("s_mov_b32 s40, 0")
    A("s_mov_b32 s35, s48")
    seg_head()
    stream(X_items(0, ["s43", "s44"]), pack_l(2, T2, 0, SB[1]) + pack_l(3, T2, 8192, SB[1]))
    A("s_branch PC_X0DONE")
    A.label("PC_EMPTIED")
    for x in pack_l(2, T2, 0, SB[0]) + pack_l(3, T2, 8192, SB[0]): A(x)
    for x in zeroO()[128:]: A(x)
    for q in range(2):
        A(f"v_mov_b32 {MR[q]}, {f32bits(-BIG):#x}"); A(f"v_mov_b32 {LS[q]}, 0")
    A.label("PC_NODUMP")
    A("s_lshl_b32 s45, s3, 3")
    put_stats("s45")
    A.label("PC_SENT")
    A("s_waitcnt lgkmcnt(0)")
    A("s_barrier")
    A("s_lshr_b32 s45, s3, 1")
    A("s_lshl_b32 s45, s45, 4")
    A(f"v_add_u32 {T0}, s45, {VSTR}")
    for q in range(2):
        A(f"ds_read_b128 {v(SB[0]+q*8,4)}, {T0} offset:{q*2048}")
        A(f"ds_read_b128 {v(SB[0]+q*8+4,4)}, {T0} offset:{q*2048+32}")
    A("s_cmp_ge_u32 s56, 50"); A("s_cselect_b32 s57, 1, 0")
    A("s_cmp_eq_u32 s3, 3"); A("s_cselect_b32 s58, s57, 0")
    A("s_cmp_eq_u32 s3, 2"); A("s_cselect_b32 s57, s57, 0")
    A("s_cmp_gt_u32 s56, 34"); A("s_cselect_b32 s59, 1, 0")
    A("s_cmp_gt_u32 s56, 50"); A("s_cselect_b32 s60, 1, 0")
    A("s_cmp_lt_u32 s3, 2"); A("s_cselect_b32 s59, s59, 0"); A("s_cselect_b32 s60, s60, 0")
    A("s_and_b32 s45, s3, 1")
    A("s_cmp_eq_u32 s45, 1")
    A("s_cselect_b64 s[62:63], -1, 0")
    A("s_waitcnt lgkmcnt(0)")
    for q in range(2):
        b = SB[0] + q*8
        A(f"v_max3_f32 {T0}, v{b}, v{b+2}, v{b+4}")
        A(f"v_max_f32 {T0}, {T0}, v{b+6}")
        for e in range(4):
            A(f"v_sub_f32 v{b+2*e}, v{b+2*e}, {T0}")
            A(f"v_mul_f32 v{b+2*e}, s68, v{b+2*e}")
            A(f"v_exp_f32 v{b+2*e}, v{b+2*e}")
        A("s_nop 0")
        A(f"v_mul_f32 {LS[q]}, v{b}, v{b+1}")
        for e in range(1, 4):
            A(f"v_fmac_f32 {LS[q]}, v{b+2*e}, v{b+2*e+1}")
        A(f"v_rcp_f32 {LS[q]}, {LS[q]}")
        A(f"v_cndmask_b32 {FAC[q]}, v{b}, v{b+2}, s[62:63]")
        A(f"v_cndmask_b32 {TM[q]}, v{b+2}, v{b}, s[62:63]")
    own = allO[8:]
    def store_addrs():
        A("s_sub_u32 s6, 31, s5")
        A("s_cmp_lt_u32 s3, 2")
        A("s_cselect_b32 s6, s6, s5")
        A("s_lshl_b32 s45, s6, 19")
        A("s_lshl_b32 s43, s4, 14")
        A("s_add_u32 s45, s45, s43")
        A("s_and_b32 s43, s3, 1")
        A("s_lshl_b32 s43, s43, 13")
        A("s_add_u32 s45, s45, s43")
        A("s_add_u32 s44, s45, 262144")
        A("s_add_u32 s46, s45, 4096")
        A("s_add_u32 s47, s44, 4096")
    def final_l(n_, tmp):
        gq, d, q = own[n_]
        f, b = Oreg(gq, d, q)
        t = tmp + (n_ % 2) * 16
        out = []
        if f == "a":
            out += [f"v_accvgpr_read_b32 v{t+r}, a{b+r}" for r in range(16)]
            b = t
        out += [f"v_pk_mul_f32 {v(t+r,2)}, {v(b+r,2)}, v[12:13] op_sel:[0,{q}] op_sel_hi:[1,{q}]" for r in range(0, 16, 2)]
        out += [f"v_cvt_pk_bf16_f32 v{t+r}, v{t+2*r}, v{t+2*r+1}" for r in range(8)]
        out += [f"buffer_store_dwordx4 {v(t+4*s_,4)}, {VL16}, s[20:23], s{[45,44,46,47][(gq-2)*2+q]} offen offset:{(2*d+s_)*1024}{SC}" for s_ in range(2)]
        return out
    def neq(dst, f2, absent_if, absent_val):
        A(f"v_cmp_neq_f32 vcc, 1.0, {f2[0]}")
        A(f"v_cmp_neq_f32 s[50:51], 1.0, {f2[1]}")
        A("s_or_b64 s[50:51], vcc, s[50:51]")
        A("s_cselect_b32 s43, 1, 0")
        A(f"s_cmp_eq_u32 {absent_if}, {absent_val}")
        A("s_cselect_b32 s43, 0, s43")
        A(f"s_or_b32 {dst}, {dst}, s43")
    FD = [[f"v{SB[0]+q*8+4+2*k}" for q in range(2)] for k in range(2)]
    A("s_mov_b32 s42, 0")
    neq("s42", FAC, "s57", 1); neq("s42", TM, "s58", 1); neq("s42", FD[0], "s59", 0); neq("s42", FD[1], "s60", 0)
    A("s_cmp_lg_u32 s42, 0")
    A("s_cbranch_scc1 PC_SLOW")
    A("s_xor_b32 s44, s3, 1")
    xaddr("s45", "s44")
    A("s_cmp_eq_u32 s58, 0"); A("s_cselect_b32 s45, s45, 0"); A("s_cselect_b32 s36, -1, 0")
    A(f"v_add_u32 {T0}, s45, {VL16}")
    A("s_lshl_b32 s45, s3, 14"); A("s_add_u32 s45, s45, 65536"); A("s_add_u32 s44, s45, 32768")
    A("s_cmp_lg_u32 s59, 0"); A("s_cselect_b32 s45, s45, 0"); A("s_cselect_b32 s37, -1, 0")
    A(f"v_add_u32 {T1}, s45, {VL16}")
    A("s_cmp_lg_u32 s60, 0"); A("s_cselect_b32 s44, s44, 0"); A("s_cselect_b32 s38, -1, 0")
    A(f"v_add_u32 {T2}, s44, {VL16}")
    SRC = [T0, T1, T2]
    FRB = 128
    def frd(n_): return [f"ds_read_b128 {v(FRB+(n_%4)*24+(k*2+s_)*4,4)}, {SRC[k]} offset:{(n_*2+s_)*1024}" for k in range(3) for s_ in range(2)]
    for n_ in range(3): emit(g, frd(n_))
    SELX = 32
    for k in range(3):
        for r in range(8): A(f"v_and_b32 v{SELX+k*8+r}, s{36+k}, v{SEL[0]+r}")
    store_addrs()
    pend = []
    for n_ in range(8):
        A(f"s_waitcnt lgkmcnt({6*min(2, 7-n_)})")
        acc = OR(*own[n_])
        items = [([], f"v_mfma_f32_32x32x16_bf16 {acc}, {v(SELX+k*8+4*s_,4)}, {v(FRB+(n_%4)*24+(k*2+s_)*4,4)}, {acc}", []) for k in range(3) for s_ in range(2)]
        stream(items, (frd(n_ + 3) if n_ + 3 < 8 else []) + pend)
        pend = final_l(n_ - 1, SB[1]) if n_ >= 1 else []
    for x in pend: A(x)
    for x in final_l(7, SB[1]): A(x)
    A("s_branch PC_DONE")
    A.label("PC_SLOW")
    A("s_cmp_lg_u32 s57, 0")
    A("s_cbranch_scc1 PC_NORESC")
    A(f"v_cmp_neq_f32 vcc, 1.0, {FAC[0]}")
    A(f"v_cmp_neq_f32 s[50:51], 1.0, {FAC[1]}")
    A("s_or_b64 s[50:51], vcc, s[50:51]")
    A("s_cbranch_scc0 PC_NORESC")
    rescaleO(own)
    A.label("PC_NORESC")
    RB = 128
    def receive(tag, fq):
        for i in range(16):
            A(f"ds_read_b128 {v(RB+4*i,4)}, {T1} offset:{i*1024}")
        A(f"v_cmp_neq_f32 vcc, 1.0, {fq[0]}")
        A(f"v_cmp_neq_f32 s[50:51], 1.0, {fq[1]}")
        A("s_or_b64 s[50:51], vcc, s[50:51]")
        A(f"s_cbranch_scc0 PC_RX_{tag}")
        A("s_waitcnt lgkmcnt(0)")
        for i in range(16):
            q = (i >> 1) & 1
            for r in range(4):
                x = f"v{RB+4*i+r}"
                A(f"v_lshlrev_b32 {T0}, 16, {x}")
                A(f"v_and_b32 {x}, 0xffff0000, {x}")
                A(f"v_mul_f32 {T0}, {T0}, {fq[q]}")
                A(f"v_mul_f32 {x}, {x}, {fq[q]}")
                A(f"v_cvt_pk_bf16_f32 {x}, {T0}, {x}")
        A("s_nop 1")
        A.label(f"PC_RX_{tag}")
        for i in range(16):
            gq, d, q, s_ = 2 + (i >> 3), (i >> 2) & 1, (i >> 1) & 1, i & 1
            A(f"s_waitcnt lgkmcnt({15-i})")
            acc = OR(gq, d, q)
            A(f"v_mfma_f32_32x32x16_bf16 {acc}, {v(SEL[s_],4)}, {v(RB+4*i,4)}, {acc}")
    A("s_cmp_lg_u32 s58, 0")
    A("s_cbranch_scc1 PC_NOP")
    A("s_xor_b32 s44, s3, 1")
    xaddr("s45", "s44")
    A(f"v_add_u32 {T1}, s45, {VL16}")
    receive("P", TM)
    A.label("PC_NOP")
    for k, fl in ((0, "s59"), (1, "s60")):
        A(f"s_cmp_eq_u32 {fl}, 0")
        A(f"s_cbranch_scc1 PC_NOD{k}")
        A("s_lshl_b32 s45, s3, 14")
        A(f"s_add_u32 s45, s45, {65536 + k*32768}")
        A(f"v_add_u32 {T1}, s45, {VL16}")
        receive(f"D{k}", [f"v{SB[0]+q*8+4+2*k}" for q in range(2)])
        A.label(f"PC_NOD{k}")
    store_addrs()
    A("s_nop 7")
    for n_ in range(8):
        for x in final_l(n_, SB[1]): A(x)
    A("s_branch PC_DONE")
    for (p, tag) in rare_blocks:
        A.label(f"PC_MASK_{tag}")
        mask_code(p)
        A(f"s_branch PC_MASKRET_{tag}")
        A.label(f"PC_RARE_{tag}")
        for q in range(2):
            xhalf(A, "v_max_f32", TM[q], T0)
            A(f"v_max_f32 {TM[q]}, {TM[q]}, {MR[q]}")
            A(f"v_sub_f32 {T1}, {MR[q]}, {TM[q]}")
            A(f"v_mul_f32 {T1}, s68, {T1}")
            A(f"v_exp_f32 {FAC[q]}, {T1}")
            A(f"v_mov_b32 {MR[q]}, {TM[q]}")
            A(f"v_mul_f32 {MC[q]}, s68, {MR[q]}")
            A(f"v_add_f32 {THR[q]}, s69, {MR[q]}")
            A(f"v_mul_f32 {LS[q]}, {LS[q]}, {FAC[q]}")
        A("s_mov_b32 s42, 1")
        A(f"s_branch PC_RARERET_{tag}")
        A.label(f"PC_PEND_{tag}")
        rescaleO()
        A("s_mov_b32 s42, 0")
        A(f"s_branch PC_PENDRET_{tag}")
    A.label("PC_DONE")
    ST(10)

def reduce4(ACC):
    o = ["v_add_u32 v4, s86, v5", "s_nop 7", "s_nop 2"]
    for b in range(4):
        for r in range(4):
            o.append(f"ds_write_b128 v4, {v(ACC+b*16+4*r,4)} offset:{b*4096 + r*1024}")
    o += ["s_waitcnt lgkmcnt(0)", "s_barrier", "s_lshl_b32 s45, s3, 12", "v_add_u32 v4, s45, v5", "v_add_u32 v28, 81920, v4"]
    for src in range(4):
        for r in range(4):
            o.append(f"ds_read_b128 {v(ACC+src*16+4*r,4)}, {'v4' if src < 2 else 'v28'} offset:{(src%2)*40960 + r*1024}")
    o.append("s_waitcnt lgkmcnt(0)")
    for r in range(0, 16, 2):
        o.append(f"v_pk_add_f32 {v(ACC+r,2)}, {v(ACC+r,2)}, {v(ACC+16+r,2)}")
        o.append(f"v_pk_add_f32 {v(ACC+32+r,2)}, {v(ACC+32+r,2)}, {v(ACC+48+r,2)}")
    for r in range(0, 16, 2):
        o.append(f"v_pk_add_f32 {v(ACC+r,2)}, {v(ACC+r,2)}, {v(ACC+32+r,2)}")
    return o

def add_resid(ACC, RES, OUT):
    o = []
    for r in range(8):
        o.append(f"v_cvt_pk_bf16_f32 v{ACC+16+r}, v{ACC+2*r}, v{ACC+2*r+1}")
    for r in range(8):
        o += [f"v_lshlrev_b32 v{ACC+2*r}, 16, v{ACC+16+r}", f"v_and_b32 v{ACC+2*r+1}, 0xffff0000, v{ACC+16+r}",
              f"v_lshlrev_b32 v{ACC+32+2*r}, 16, v{RES+r}", f"v_and_b32 v{ACC+32+2*r+1}, 0xffff0000, v{RES+r}"]
    for r in range(0, 16, 2):
        o.append(f"v_pk_add_f32 {v(ACC+r,2)}, {v(ACC+r,2)}, {v(ACC+32+r,2)}")
    for r in range(8):
        o.append(f"v_cvt_pk_bf16_f32 v{OUT+r}, v{ACC+2*r}, v{ACC+2*r+1}")
    return o

def xhalf_l(op, x, t):
    return [f"v_mov_b32 {t}, {x}", "s_nop 1", f"v_permlane32_swap_b32 {x}, {t}", f"{op} {x}, {x}, {t}"]

def mix(g, main, side, every):
    k = 0
    for i, x in enumerate(main):
        emit(g, [x])
        if (i + 1) % every == 0 and k < len(side) and not (isinstance(x, str) and x.startswith("s_nop")):
            emit(g, side[k]); k += 1
    return side[k:]

def phaseDEF(g):
    A, ST, vm = g.A, g.ST, g.vm
    vm.ops = []
    ACC = 32
    A("s_load_dwordx2 s[36:37], s[0:1], 0")
    A("s_load_dwordx2 s[38:39], s[0:1], 72")
    A("s_load_dwordx2 s[56:57], s[0:1], 40")
    A("s_load_dwordx4 s[60:63], s[0:1], 56")
    A("s_lshr_b32 s40, s2, 3")
    A("s_mul_i32 s6, s40, 9363")
    A("s_lshr_b32 s6, s6, 16")
    A("s_mul_i32 s7, s6, 7")
    A("s_sub_u32 s7, s40, s7")
    A("s_and_b32 s41, s2, 7")
    A("s_lshl_b32 s41, s41, 2")
    A("s_add_u32 s6, s6, s41")
    A("s_mul_i32 s86, s3, 40960")
    A(f"s_mul_i32 s42, s3, {1024*896}")
    A("s_lshl_b32 s44, s7, 7")
    A("s_add_u32 s42, s42, s44")
    A(f"s_mul_i32 s43, s6, {2*256*1024}")
    A("s_lshl_b32 s44, s3, 16")
    A("s_add_u32 s43, s43, s44")
    A(f"v_add_u32 v6, {256*1024}, v5")
    W = 20
    CW = int(os.environ.get("CW", "8"))
    NR = 16 + (256 - 8*CW) // 8
    wo = Stager(g, "s[32:35]", 896, "s42", "s86", [2048*i for i in range(W)], "v0", "v1", "v3", "v28", "a")
    wo.setup(("v32", "v33")); wo.setup_tr(("v32", "v33"))
    A("s_mov_b32 s58, s42"); A("s_mov_b32 s59, s43"); A("s_and_b32 s53, s2, 7")
    wo_dma0 = wo.dma
    def wo_dma(ks):
        pre = []
        if ROT and ks % 8 == 0:
            pre = [f"s_add_u32 s42, s53, {ks//8}", "s_and_b32 s42, s42, 7", f"s_mul_i32 s42, s42, {8*16*896}", "s_add_u32 s42, s42, s58"]
        return pre + wo_dma0(ks)
    wo.dma = wo_dma
    A("s_waitcnt vmcnt(0) lgkmcnt(0)")
    A("s_barrier")
    ST(23)
    srd(A, 32, 56, 4096*448*2); srd(A, 76, 60, 448*1792*2); srd(A, 80, 62, 448*1792*2)
    A("s_lshl_b32 s45, s5, 6"); A("s_lshl_b32 s44, s4, 2"); A("s_add_u32 s45, s45, s44")
    A(f"s_add_u32 s45, s45, {F_CTX*4}")
    set_flag(g, "s45")
    A("s_sub_u32 s45, 31, s5"); A("s_lshl_b32 s45, s45, 6"); A("s_add_u32 s45, s45, s44")
    A(f"s_add_u32 s45, s45, {F_CTX*4}")
    set_flag(g, "s45")
    A("s_cmp_lt_u32 s40, 28")
    A("s_cbranch_scc0 MEGA_FIN")
    for ks in range(W): emit(g, wo.dma(ks))
    ws_srd(A, 16, 54, H_OFF, H_SZ)
    srd(A, 24, 36, 2048*448*2)
    srd(A, 28, 38, 2048*448*2)
    ws_srd(A, 8, 54, HS_OFF, HS_SZ)
    A("s_lshr_b32 s46, s3, 1"); A("s_lshl_b32 s45, s7, 1"); A("s_add_u32 s46, s46, s45")
    A("s_and_b32 s47, s3, 1"); A("s_lshl_b32 s45, s6, 1"); A("s_add_u32 s47, s47, s45")
    A("v_and_b32 v7, 31, v2")
    A("v_lshrrev_b32 v8, 5, v2")
    A("s_lshl_b32 s45, s47, 5")
    A("v_add_u32 v7, s45, v7")
    A("v_mul_u32_u24 v9, 896, v7")
    A("v_lshl_add_u32 v9, v8, 3, v9")
    A("s_lshl_b32 s48, s46, 6")
    A("s_mul_i32 s49, s47, 28672")
    A("s_lshl_b32 s45, s46, 11")
    A("s_add_u32 s49, s49, s45")
    for gq in range(4):
        A(f"buffer_load_dwordx2 {v(12+2*gq,2)}, v9, s[24:27], s48 offen offset:{16*gq}")
    vm.issue(("x", 0), 4)
    def wreg(ks): return (v, 128 + 8*ks) if ks < 16 else (a, 8*CW + 8*(ks-16))
    for ks in range(NR + 2):
        if ks < NR:
            A(f"s_waitcnt vmcnt({vm.newer(lambda t: t == ('a', ks))})")
            rf, b = wreg(ks)
            emit(g, wo.tr(ks, b, b + 4, rf=rf))
        k2 = ks - 2
        if k2 >= 0:
            A(f"s_waitcnt lgkmcnt({4*min(2, NR-1-k2)})")
            if k2 + W < 64: emit(g, wo.dma(k2 + W))
    A("v_and_b32 v10, 15, v2")
    A("v_lshlrev_b32 v10, 2, v10")
    A("s_lshl_b32 s45, s6, 6")
    A(f"s_add_u32 s45, s45, {F_CTX*4}")
    ST(22)
    poll(g, 11, "v10", "s45", name="one")
    ST(11)
    def ldB(ks):
        o = (ks % 4) * 1024; sl = ks % CW
        pre = []
        if ROT and ks % 8 == 0:
            pre = [f"s_add_u32 s43, s53, {ks//8}", "s_and_b32 s43, s43, 7", "s_lshl_b32 s43, s43, 13", "s_add_u32 s43, s43, s59"]
        out = pre + [(f"buffer_load_dwordx4 {a(sl*8,4)}, v5, s[20:23], s43 offen offset:{o}{SC}", ("b", ks)),
               (f"buffer_load_dwordx4 {a(sl*8+4,4)}, v6, s[20:23], s43 offen offset:{o}{SC}", ("b", ks))]
        if ks % 4 == 3: out.append("s_add_u32 s43, s43, 4096")
        return out
    for ks in range(CW): emit(g, ldB(ks))
    WF = [96, 104, 112, 120]
    for ks in range(64):
        nxt = ks + 2
        n = vm.newer(lambda t: t == ("b", ks))
        if NR <= nxt < 64:
            n = min(n, vm.newer(lambda t: t == ("a", nxt)))
            A(f"s_waitcnt vmcnt({n})")
            emit(g, wo.tr(nxt, WF[nxt % 4], WF[nxt % 4] + 4))
        else:
            A(f"s_waitcnt vmcnt({n})")
        if ks >= NR:
            A(f"s_waitcnt lgkmcnt({4*min(2, 63-ks)})")
            rf, b = v, WF[ks % 4]
        else: rf, b = wreg(ks)
        for i in range(2):
            for q in range(2):
                acc = v(ACC + (i*2+q)*16, 16)
                A(f"v_mfma_f32_32x32x16_bf16 {acc}, {rf(b+4*i,4)}, {a((ks%CW)*8+4*q,4)}, {'0' if ks == 0 else acc}")
        if NR <= ks and ks + W < 64: emit(g, wo.dma(ks + W))
        if ks + CW < 64: emit(g, ldB(ks + CW))
    ST(12)
    HP = 20
    A("s_lshl_b32 s42, s7, 9"); A("s_lshl_b32 s45, s3, 7"); A("s_add_u32 s42, s42, s45")
    A("s_lshl_b32 s51, s7, 3"); A("s_lshl_b32 s45, s3, 1"); A("s_add_u32 s51, s51, s45")
    RS12 = [16384 + 2048*i for i in range(12)]
    w1 = Stager(g, "s[76:79]", 3584, "s42", "s86", RS12, "v0", "v1", "v3", "v8", "w1")
    w1.setup(("v96", "v97"))
    A("v_xor_b32 v8, 64, v3")
    vm.ops = []
    ep = reduce4(ACC) + add_resid(ACC, 12, HP)
    for s_ in range(2):
        ep.append((f"buffer_store_dwordx4 {v(HP+4*s_,4)}, v5, s[16:19], s49 offen offset:{1024*s_}{SC}", ("hs", 0)))
    for r in range(8):
        ep += [f"v_lshlrev_b32 v{ACC+2*r}, 16, v{HP+r}", f"v_and_b32 v{ACC+2*r+1}, 0xffff0000, v{HP+r}"]
    ep += [f"v_add_f32 v10, v{ACC}, v{ACC+1}"] + [f"v_add_f32 v10, v10, v{ACC+r}" for r in range(2, 16)]
    ep += xhalf_l("v_add_f32", "v10", "v12") + ["v_mul_f32 v13, 0x3d000000, v10", "v_mov_b32 v11, 0"]
    for r in range(16):
        ep += [f"v_sub_f32 v12, v{ACC+r}, v13", "v_fmac_f32 v11, v12, v12"]
    ep += xhalf_l("v_add_f32", "v11", "v12") + ["v_and_b32 v12, 31, v2", "v_lshlrev_b32 v12, 3, v12", "s_mul_i32 s45, s47, 3584", "s_lshl_b32 s44, s46, 8", "s_add_u32 s45, s45, s44"]
    ep.append((f"buffer_store_dwordx2 v[10:11], v12, s[8:11], s45 offen{SC}", ("hs", 0)))
    mix(g, ep, [w1.dma(ks) for ks in range(12)], 8)
    A(f"s_waitcnt vmcnt({vm.newer(lambda t: t[0] == 'hs')})")
    A("s_barrier")
    A("s_lshl_b32 s45, s6, 5"); A("s_lshl_b32 s44, s7, 2"); A("s_add_u32 s45, s45, s44")
    A(f"s_add_u32 s52, s45, {F_H1*4}")
    A(f"s_add_u32 s45, s45, {F_H*4}")
    set_flag(g, "s45")
    ST(13)
    for r in range(4): A(f"v_mov_b32 v{12+r}, 0x3f803f80")
    CS = 96
    def drain(stg, fn=None):
        for ks in range(28 + 2):
            if ks < 28:
                A(f"s_waitcnt vmcnt({vm.newer(lambda t: t == (stg.tag, ks))})")
                emit(g, stg.tr(ks, 4*ks, 4*(28+ks), rf=a))
            k2 = ks - 2
            if k2 >= 0:
                A(f"s_waitcnt lgkmcnt({4*min(2, 27-k2)})")
                if fn: fn(k2)
                if k2 + 12 < 28: emit(g, stg.dma(k2 + 12))
    def cs_mfma(ks):
        for i in range(2):
            acc = v(CS + i*16, 16)
            A(f"v_mfma_f32_32x32x16_bf16 {acc}, {a(4*(i*28+ks),4)}, v[12:15], {'0' if ks == 0 else acc}")
    drain(w1, cs_mfma)
    A("v_and_b32 v10, 7, v2")
    A("v_min_u32 v10, 6, v10")
    A("v_lshlrev_b32 v10, 2, v10")
    A("s_lshl_b32 s45, s6, 5")
    A(f"s_add_u32 s45, s45, {F_H*4}")
    poll(g, 11, "v10", "s45", name="one")
    ST(14)
    A("s_mul_i32 s42, s6, 57344")
    A("s_mul_i32 s43, s3, 14336")
    A("s_add_u32 s42, s42, s43")
    for i in range(14):
        if i % 4 == 0:
            A(f"s_add_u32 m0, s86, {i*1024}")
            A(f"s_add_u32 s44, s42, {i*1024}")
        A(f"buffer_load_dwordx4 v5, s[16:19], s44 offen offset:{(i%4)*1024}{SC} lds")
    A("v_and_b32 v10, 31, v2")
    A("v_lshlrev_b32 v10, 3, v10")
    A("s_mul_i32 s45, s6, 7168")
    A("s_add_u32 s44, s45, 3584")
    STB = [128, 156]
    for q in range(2):
        for i in range(14):
            A(f"buffer_load_dwordx2 {v(STB[q]+2*i,2)}, v10, s[8:11], {'s44' if q else 's45'} offen offset:{256*i}{SC}")
    A(f"s_mul_i32 s42, s3, {448*896}")
    A("s_lshl_b32 s44, s7, 7")
    A("s_add_u32 s42, s42, s44")
    w2 = Stager(g, "s[80:83]", 896, "s42", "s86", RS12, "v0", "v1", "v3", "v8", "w2")
    w2.setup(("v192", "v193"))
    A("v_add_u32 v6, 81920, v5")
    vm.ops = [("st", 0)] * 28
    A("s_waitcnt vmcnt(28)")
    A("s_barrier")
    MB_ = ["v16", "v17"]; RS = ["v18", "v19"]
    stats = [lambda: A(f"s_waitcnt vmcnt({vm.newer(lambda t: t[0] == 'st')})")]
    for q in range(2):
        b = STB[q]
        stats += [f"v_add_f32 v10, v{b}, v{b+2}"] + [f"v_add_f32 v10, v10, v{b+2*i}" for i in range(2, 14)]
        stats += ["v_mul_f32 v10, 0x3b124925, v10", f"v_add_f32 v11, v{b+1}, v{b+3}"] + [f"v_add_f32 v11, v11, v{b+2*i+1}" for i in range(2, 14)]
        stats += ["v_mov_b32 v4, 0"]
        for i in range(14):
            stats += [f"v_mul_f32 v{b+2*i}, 0x3d000000, v{b+2*i}", f"v_sub_f32 v{b+2*i}, v{b+2*i}, v10", f"v_fmac_f32 v4, v{b+2*i}, v{b+2*i}"]
        stats += ["v_mul_f32 v4, 0x42000000, v4", "v_add_f32 v11, v11, v4", "v_mul_f32 v11, 0x3b124925, v11"]
        stats += bf16_round_l(MB_[q], "v10") + bf16_round_l("v11", "v11") + ["v_add_f32 v11, 0x3727c5ac, v11"] + bf16_round_l("v11", "v11")
        stats += ["v_sqrt_f32 v11, v11", "s_nop 0"] + bf16_round_l("v11", "v11") + [f"v_rcp_f32 {RS[q]}, v11", "s_nop 0", f"v_mul_f32 {MB_[q]}, {MB_[q]}, {RS[q]}"]
    XF = [192, 200, 208, 216]
    def xr(ks):
        out = []
        for q in range(2):
            f = q*28 + ks; src = f // 14
            out.append(f"ds_read_b128 {v(XF[ks%4]+4*q,4)}, {'v5' if src < 2 else 'v6'} offset:{(src%2)*40960 + (f%14)*1024}")
        return out
    for ks in range(3): emit(g, xr(ks))
    for ks in range(28):
        sched = {}
        if ks + 3 < 28: spread(sched, xr(ks + 3), 0, 1)
        if ks < 12: sched.setdefault(2, []).extend(w2.dma(ks))
        A(f"s_waitcnt lgkmcnt({2*min(2, 27-ks)})")
        ms = []
        for i in range(2):
            for q in range(2):
                acc = v(ACC + (i*2+q)*16, 16)
                ms.append(f"v_mfma_f32_32x32x16_bf16 {acc}, {a(4*(i*28+ks),4)}, {v(XF[ks%4]+4*q,4)}, {'0' if ks == 0 else acc}")
        run_sched(A, ms, sched, stats if ks >= 4 else [], 4, vm)
    assert not stats
    ST(15)
    ws_srd(A, 20, 54, H1_OFF, H1_SZ)
    A(f"s_mul_i32 s44, s6, {2*112*1024}")
    A("s_lshl_b32 s45, s51, 11")
    A("s_add_u32 s44, s44, s45")
    A(f"s_add_u32 s45, s44, {112*1024}")
    A(f"s_mov_b32 s50, {f32bits(-1.4426950408889634):#x}")
    A("s_mov_b32 s51, s50")
    A("v_mov_b32 v10, 1.0"); A("v_mov_b32 v11, 1.0")
    T = 128
    ep = []
    for i in range(2):
        for q in range(2):
            b = ACC + (i*2+q)*16; cs = CS + i*16
            mbp = "v[16:17]"; rsp = "v[18:19]"; sel = f"op_sel:[0,{q}] op_sel_hi:[1,{q}]"
            for r in range(0, 16, 2): ep.append(f"v_pk_mul_f32 {v(T+r,2)}, {v(cs+r,2)}, {mbp} {sel}")
            for r in range(0, 16, 2): ep.append(f"v_pk_fma_f32 {v(b+r,2)}, {v(b+r,2)}, {rsp}, {v(T+r,2)} op_sel:[0,{q},0] op_sel_hi:[1,{q},1] neg_lo:[0,0,1] neg_hi:[0,0,1]")
            for r in range(0, 16, 2): ep.append(f"v_pk_mul_f32 {v(T+r,2)}, {v(b+r,2)}, s[50:51]")
            for r in range(16): ep.append(f"v_exp_f32 v{T+r}, v{T+r}")
            for r in range(0, 16, 2): ep.append(f"v_pk_add_f32 {v(T+r,2)}, {v(T+r,2)}, v[10:11]")
            for r in range(16): ep.append(f"v_rcp_f32 v{T+r}, v{T+r}")
            for r in range(0, 16, 2): ep.append(f"v_pk_mul_f32 {v(b+r,2)}, {v(b+r,2)}, {v(T+r,2)}")
            for r in range(8): ep.append(f"v_cvt_pk_bf16_f32 v{b+r}, v{b+2*r}, v{b+2*r+1}")
            for s_ in range(2):
                ep.append((f"buffer_store_dwordx4 {v(b+4*s_,4)}, v5, s[20:23], {'s45' if q else 's44'} offen offset:{(2*i+s_)*1024}{SC}", ("h1s", 0)))
    grp = []
    for ks in range(28 + 2):
        it = []
        if ks < 28:
            it.append(lambda ks=ks: A(f"s_waitcnt vmcnt({vm.newer(lambda t: t == ('w2', ks))})"))
            it += w2.tr(ks, 4*ks, 4*(28+ks), rf=a)
        k2 = ks - 2
        if k2 >= 0 and k2 + 12 < 28:
            it.append(f"s_waitcnt lgkmcnt({4*min(2, 27-k2)})")
            it += w2.dma(k2 + 12)
        grp.append(it)
    grp = mix(g, ep, grp, W2EV)
    A(f"s_waitcnt vmcnt({vm.newer(lambda t: t[0] == 'h1s')})")
    A("s_barrier")
    set_flag(g, "s52")
    ST(16)
    for it in grp: emit(g, it)
    A("v_and_b32 v10, 7, v2")
    A("v_min_u32 v10, 6, v10")
    A("v_lshlrev_b32 v10, 2, v10")
    A("s_lshl_b32 s45, s6, 5")
    A(f"s_add_u32 s45, s45, {F_H1*4}")
    poll(g, 11, "v10", "s45", name="one")
    ST(17)
    A(f"s_mul_i32 s42, s6, {2*112*1024}")
    A("s_mul_i32 s43, s3, 28672")
    A("s_add_u32 s42, s42, s43")
    A(f"v_add_u32 v6, {112*1024}, v5")
    def ldH(ks):
        sl = ks % 14
        out = [(f"buffer_load_dwordx4 {v(96+sl*8,4)}, v5, s[20:23], s42 offen offset:{(ks%4)*1024}{SC}", ("h", ks)),
               (f"buffer_load_dwordx4 {v(96+sl*8+4,4)}, v6, s[20:23], s42 offen offset:{(ks%4)*1024}{SC}", ("h", ks))]
        if ks % 4 == 3: out.append("s_add_u32 s42, s42, 4096")
        return out
    for ks in range(14): emit(g, ldH(ks))
    A("s_waitcnt lgkmcnt(0)")
    for ks in range(28):
        A(f"s_waitcnt vmcnt({vm.newer(lambda t: t == ('h', ks))})")
        for i in range(2):
            for q in range(2):
                acc = v(ACC + (i*2+q)*16, 16)
                A(f"v_mfma_f32_32x32x16_bf16 {acc}, {a(4*(i*28+ks),4)}, {v(96+(ks%14)*8+4*q,4)}, {'0' if ks == 0 else acc}")
        if ks + 14 < 28: emit(g, ldH(ks + 14))
    ST(18)
    emit(g, reduce4(ACC) + add_resid(ACC, HP, 12))
    for gq in range(4):
        A(f"buffer_store_dwordx2 {v(12+2*gq,2)}, v9, s[28:31], s48 offen offset:{16*gq}{os.environ.get('OUTSC', '')}")

def gen_mega(stamps=False):
    g = G()
    g.A = A = Asm()
    name = "mega_kernel"
    kernel_begin(A, name)
    A("s_cmp_ge_u32 s2, 256")
    A("s_cbranch_scc0 MEGA_GO")
    A("s_endpgm")
    A.label("MEGA_GO")
    if os.environ.get("PERM"):
        A(f"s_mul_i32 s2, s2, {os.environ['PERM']}")
        A("s_add_u32 s2, s2, 11")
        A("s_and_b32 s2, s2, 255")
    g.ST = Stamps(A, stamps)
    g.ST.tmp = "s[100:101]"
    g.vm = VM()
    g.ST2 = Stamps(A, True, "v63") if (stamps and os.environ.get("STG")) else None
    if stamps:
        A("v_mov_b32 v31, 0")
        g.ST(0); g.ST(20, real=True)
    phaseA(g)
    phaseC(g)
    phaseDEF(g)
    A.label("MEGA_FIN")
    if stamps:
        A("s_waitcnt vmcnt(0)")
        g.ST(19); g.ST(21, real=True)
        if os.environ.get("DBGOUT"):
            A("s_cmp_lg_u32 s2, 9"); A("s_cbranch_scc1 NODBG"); A("s_cmp_lg_u32 s3, 0"); A("s_cbranch_scc1 NODBG")
            A("v_readlane_b32 s45, v31, 0")
            A("s_nop 1")
            A("v_subrev_u32 v31, s45, v31")
            A("v_subrev_u32 v1, 5, v2")
            A("v_cmp_gt_u32 vcc, 15, v1")
            A("v_lshlrev_b32 v1, 2, v1")
            A("s_and_saveexec_b64 s[94:95], vcc")
            A("global_store_dword v1, v31, s[92:93] offset:4")
            A("s_mov_b64 exec, s[94:95]")
            A.label("NODBG")
        else:
            g.ST.flush(54, "s3", "v2")
    A.label("MEGA_END")
    A("s_endpgm")
    return name, A.text(), kernel_desc(name, 512, 102, 256), (256, 256, 163840)
```
